```python
import torch

def _softmax(x, axis=-1):
    return torch.softmax(x, dim=axis)
def _gelu(x):
    return torch.nn.functional.gelu(x, approximate="tanh")
def _silu(x):
    return torch.nn.functional.silu(x)
def _sigmoid(x):
    return torch.sigmoid(x)
def _layernorm(x, axis=-1, eps=1e-5):
    m = x.mean(dim=axis, keepdim=True)
    v = x.var(dim=axis, keepdim=True, unbiased=False)
    return (x - m) / torch.sqrt(v + eps)
def _scatter_add(tgt, idx, src, axis=0):
    return tgt.clone().index_add_(axis, idx, src)
def _segment_sum(src, seg, n):
    out = torch.zeros((n,) + src.shape[1:], dtype=src.dtype)
    return out.index_add_(0, seg, src)
def _pad(x, pw):
    flat = tuple(v for pair in reversed(pw) for v in pair)
    return torch.nn.functional.pad(x, flat)

kernel_name = 'gated_mix__compressed_kv_cla__glu_gated_glu__prompt'

def setup_inputs():

    _w = (lambda a: (lambda t: t.to(torch.bfloat16) if t.is_floating_point() else t)(torch.as_tensor(a)))
    def _A_setup():
        B, H, Sq, Sk, D, M = 1, 32, 2048, 2048, 128, 512
        Dc = 4 * D
        return {
            "x": _w((lambda *s: torch.randn(*s, dtype=torch.bfloat16) * 0.05)(B, Sq, M)),
            "c_kv": _w((lambda *s: torch.randn(*s, dtype=torch.bfloat16) * 0.8)(B, Sk, Dc)),
            "w_q": _w((lambda *s: torch.randn(*s, dtype=torch.bfloat16) * 6.4)(M, H, D) * (M ** -0.5)),
            "w_uk": _w((lambda *s: torch.randn(*s, dtype=torch.bfloat16) * 6.4)(Dc, H, D) * (Dc ** -0.5)),
            "w_uv": _w((lambda *s: torch.randn(*s, dtype=torch.bfloat16) * 0.8)(Dc, H, D) * (Dc ** -0.5)),
            "w_o": _w((lambda *s: torch.randn(*s, dtype=torch.bfloat16) * 0.8)(H, D, M) * ((H * D) ** -0.5)),
        }
    _A_in = _A_setup()

    def _B_setup():
        B, S, D, F = 1, 2048, 512, 1792
        return {
            "x": _w((lambda *s: torch.randn(*s, dtype=torch.bfloat16) * 0.05)(B, S, D)),
            "w_gate": _w((lambda *s: torch.randn(*s, dtype=torch.bfloat16) * 1.6)(D, F)),
            "w_up": _w((lambda *s: torch.randn(*s, dtype=torch.bfloat16) * 0.05)(D, F)),
            "w_down": _w((lambda *s: torch.randn(*s, dtype=torch.bfloat16) * 0.05)(F, D)),
        }
    _B_in = _B_setup()

    return {
        "A_x": _A_in["x"],
        "A_c_kv": _A_in["c_kv"],
        "A_w_q": _A_in["w_q"],
        "A_w_uk": _A_in["w_uk"],
        "A_w_uv": _A_in["w_uv"],
        "A_w_o": _A_in["w_o"],
        "B_x": _B_in["x"],
        "B_w_gate": _B_in["w_gate"],
        "B_w_up": _B_in["w_up"],
        "B_w_down": _B_in["w_down"],
        "gate_w": _w((lambda *s: torch.randn(*s, dtype=torch.bfloat16) * 0.05)(512) * 16.0),
    }

def reference(A_x, A_c_kv, A_w_q, A_w_uk, A_w_uv, A_w_o, B_x, B_w_gate, B_w_up, B_w_down, gate_w):
    def _A_ref(x, c_kv, w_q, w_uk, w_uv, w_o):
        B, Sq, M = x.shape[0], x.shape[1], x.shape[2]
        Sk = c_kv.shape[1]
        H, D = w_q.shape[1], w_q.shape[2]
        q = torch.einsum("bqm,mhd->bhqd", x, w_q)
        k = torch.einsum("bkc,chd->bhkd", c_kv, w_uk)
        v = torch.einsum("bkc,chd->bhkd", c_kv, w_uv)
        scores = torch.einsum("bhqd,bhkd->bhqk", q, k) * (D ** -0.5)
        off = Sk - Sq
        qi = torch.arange(Sq)[:, None]
        kj = torch.arange(Sk)[None, :]
        cmask = kj <= (qi + off)
        scores = torch.where(cmask[None, None], scores, -1e9)
        p = _softmax(scores, axis=-1)
        ctx = torch.einsum("bhqk,bhkd->bhqd", p, v)
        return torch.einsum("bhqd,hdm->bqm", ctx, w_o)

    def _B_ref(x, w_gate, w_up, w_down):
        g = torch.einsum("bsd,df->bsf", x, w_gate)
        u = torch.einsum("bsd,df->bsf", x, w_up)
        h = _sigmoid(g) * u
        return torch.einsum("bsf,fd->bsd", h, w_down)

    x = A_x
    g = _sigmoid((x * gate_w).sum(-1, keepdims=True))
    a = _A_ref(x, A_c_kv, A_w_q, A_w_uk, A_w_uv, A_w_o)
    b = _B_ref(x, B_w_gate, B_w_up, B_w_down)
    return g * a + (1 - g) * b
```

```python
import re

def rng(kind, a, n=1):
    return f"{kind}{a}" if n == 1 else f"{kind}[{a}:{a+n-1}]"
def v(a, n=1): return rng("v", a, n)
def a_(a, n=1): return rng("a", a, n)
def s(a, n=1): return rng("s", a, n)

_REG = re.compile(r"^-?(?:abs\()?\|?([vas])(?:(\d+)|\[(\d+):(\d+)\])\)?\|?$")
def regs_of(tok):
    tok = tok.strip()
    if tok in ("vcc", "vcc_lo", "vcc_hi"): return {("s", "vcc")}
    if tok in ("exec", "exec_lo", "exec_hi"): return {("s", "exec")}
    if tok == "m0": return {("s", "m0")}
    m = _REG.match(tok)
    if not m: return set()
    k = m.group(1)
    if m.group(2) is not None: return {(k, int(m.group(2)))}
    return {(k, i) for i in range(int(m.group(3)), int(m.group(4)) + 1)}

TRANS = ("v_exp_f32", "v_log_f32", "v_rcp_f32", "v_rsq_f32", "v_sqrt_f32", "v_sin_f32", "v_cos_f32")

class Ins:
    __slots__ = ("text", "op", "ops", "defs", "uses", "kind", "passes", "srcc", "srcab", "wide_data", "label", "mods")
    def __init__(self, text):
        self.text = text
        t = text.split(";")[0].strip()
        self.label = None
        self.defs, self.uses = set(), set()
        self.kind = "other"; self.passes = 0; self.srcc = set(); self.srcab = set(); self.wide_data = set()
        self.op = ""; self.ops = []; self.mods = ""
        if not t: self.kind = "blank"; return
        if t.endswith(":"): self.label = t[:-1]; self.kind = "label"; return
        if t.startswith("."): self.kind = "directive"; return
        p = t.split(None, 1)
        op = p[0]; self.op = op
        rest = p[1] if len(p) > 1 else ""
        ops = [x.strip() for x in rest.split(",")] if rest else []
        if ops:
            last = ops[-1].split()
            self.mods = " ".join(last[1:]); ops[-1] = last[0] if last else ""
        self.ops = ops
        R = regs_of
        base = re.sub(r"_e(32|64)$", "", op)
        if op.startswith("v_mfma"):
            self.kind = "mfma"; self.passes = 8 if "32x32" in op else 4
            self.defs = R(ops[0]); self.srcab = R(ops[1]) | R(ops[2]); self.srcc = R(ops[3]); self.uses = self.srcab | self.srcc
        elif op.startswith("ds_read") or op.startswith("ds_bpermute") or op.startswith("ds_swizzle"):
            self.kind = "ds"; self.defs = R(ops[0])
            for o in ops[1:]: self.uses |= R(o)
        elif op.startswith("ds_"):
            self.kind = "ds"
            for o in ops: self.uses |= R(o)
        elif op.startswith("buffer_load") or op.startswith("global_load"):
            self.kind = "vmem"
            if "lds" in self.mods.split() or "_lds_" in op:
                for o in ops: self.uses |= R(o)
                self.uses |= {("s", "m0")}; self.kind = "dma"
            else:
                self.defs = R(ops[0])
                for o in ops[1:]: self.uses |= R(o)
        elif op.startswith("buffer_store") or op.startswith("buffer_atomic"):
            self.kind = "vmem"
            for o in ops: self.uses |= R(o)
            if "x4" in op or "x3" in op: self.wide_data = R(ops[0])
            if op.startswith("buffer_atomic") and "sc0" in self.mods.split(): self.defs = R(ops[0])
        elif op.startswith("global_store") or op.startswith("global_atomic"):
            self.kind = "vmem"
            for o in ops: self.uses |= R(o)
            if "x4" in op or "x3" in op: self.wide_data = R(ops[1])
        elif op.startswith("buffer_"):
            self.kind = "vmem"
        elif op.startswith("v_"):
            self.kind = "valu"
            if base.startswith("v_permlane") and "swap" in base:
                self.defs = R(ops[0]) | R(ops[1]); self.uses = set(self.defs)
            elif base in ("v_nop",): pass
            else:
                self.defs = R(ops[0])
                st = 1
                if "_co_" in base or base.startswith("v_div_scale"):
                    self.defs |= R(ops[1]); st = 2
                for o in ops[st:]: self.uses |= R(o)
                if base.startswith("v_fmac") or base.startswith("v_writelane") or base.startswith("v_dot2c"): self.uses |= R(ops[0])
                if base.startswith("v_cmpx"): self.defs |= {("s", "exec")}
        elif op.startswith("s_load") or op.startswith("s_mem") or op.startswith("s_buffer_load"):
            self.kind = "smem"; self.defs = R(ops[0])
            for o in ops[1:]: self.uses |= R(o)
        elif op.startswith("s_"):
            self.kind = "salu"
            if op in ("s_waitcnt", "s_nop", "s_barrier", "s_endpgm", "s_sleep", "s_setprio") or op.startswith("s_cbranch") or op == "s_branch":
                self.kind = "ctl"
            elif op.startswith("s_cmp") or op.startswith("s_bitcmp") or op == "s_setpc_b64":
                for o in ops: self.uses |= R(o)
            else:
                self.defs = R(ops[0])
                for o in ops[1:]: self.uses |= R(o)
                if "saveexec" in op: self.defs |= {("s", "exec")}
                if op in ("s_addk_i32", "s_mulk_i32"): self.uses |= R(ops[0])
    def states(self):
        if self.kind in ("blank", "label", "directive"): return 0
        if self.op == "s_nop": return int(self.ops[0], 0) + 1
        return 1
    def __repr__(self): return self.text

def I(x): return x if isinstance(x, Ins) else Ins(x)
def flat(x):
    out = []
    if isinstance(x, (list, tuple)):
        for y in x: out += flat(y)
    elif isinstance(x, Ins): out.append(x)
    else:
        for ln in x.split("\n"):
            if ln.strip(): out.append(Ins(ln.strip()))
    return out

def interleave(main, fill):
    out = list(flat(fill.get(-1, [])))
    for i, m in enumerate(main):
        out += flat(m)
        out += flat(fill.get(i, []))
    for k in fill:
        assert -1 <= k < len(main), (k, len(main))
    return out

def spread(fill, items, lo, hi):
    n = len(items)
    for i, it in enumerate(items):
        pos = lo + (i * (hi - lo)) // n
        fill.setdefault(pos, []).append(it)

_LG = re.compile(r"lgkmcnt\((\d+)\)")
def lgkm_pass(code, state):
    st = list(state); needs = {}
    for idx, ins in enumerate(code):
        if ins.op == "s_waitcnt":
            m = _LG.search(ins.text)
            if m:
                n = int(m.group(1))
                if len(st) > n: st = st[len(st) - n:] if n else []
            continue
        touch = ins.uses | ins.defs
        last = -1
        for j, d in enumerate(st):
            if d & touch: last = j
        if ins.kind == "ds" and last >= 0 and not (st[last] & ins.uses) and not any(d & ins.uses for d in st):
            last = -1
        if last >= 0:
            n = len(st) - 1 - last
            needs[idx] = min(n, 15); st = st[last + 1:]
        if ins.kind == "ds": st.append(frozenset(ins.defs))
        assert ins.kind != "smem", "smem inside auto-wait region"
    return needs, st

def apply_waits(code, needs):
    out = []
    for idx, ins in enumerate(code):
        if idx in needs: out.append(Ins(f"s_waitcnt lgkmcnt({needs[idx]})"))
        out.append(ins)
    return out

def auto_wait(code, states_in):
    code = flat(code)
    for _ in range(4):
        merged = {}
        for st in states_in:
            needs, _o = lgkm_pass(code, st)
            for k, n in needs.items(): merged[k] = min(n, merged.get(k, 99))
        if not merged: break
        code = apply_waits(code, merged)
    outs = []
    for st in states_in:
        needs, o = lgkm_pass(code, st); assert not needs
        if o not in outs: outs.append(o)
    return code, outs

def auto_wait_loop(body, states_in):
    body = flat(body)
    code, outs = auto_wait(body, states_in)
    sts = list(states_in)
    for _ in range(4):
        new = [o for o in outs if o not in sts]
        if not new: break
        sts += new
        code, outs = auto_wait(body, sts)
    return code, outs

def need_states(p, c):
    n = 0
    vg = lambda S: {r for r in S if r[0] in "va"}
    sg = lambda S: {r for r in S if r[0] == "s"}
    if p.kind == "valu":
        pd = vg(p.defs); ps = sg(p.defs)
        if c.kind == "mfma" and pd & c.uses: n = max(n, 2)
        if c.kind == "valu":
            if c.op.startswith("v_permlane") and pd & c.uses: n = max(n, 2)
            if (c.op.startswith("v_readlane") or c.op.startswith("v_readfirstlane")) and pd & c.uses: n = max(n, 1)
            if "dpp" in c.op or "row_" in c.mods or "quad_perm" in c.mods:
                if pd & c.uses: n = max(n, 2)
            if re.sub(r"_e(32|64)$", "", p.op) in TRANS and pd & c.uses and re.sub(r"_e(32|64)$", "", c.op) not in TRANS: n = max(n, 1)
            if ps & c.uses: n = max(n, 4 if "lane" in c.op else 2)
        if c.kind in ("vmem", "dma") and ps & c.uses: n = max(n, 5)
        if ("s", "exec") in p.defs and c.kind == "mfma": n = max(n, 4)
    if p.kind == "salu" and ("s", "m0") in p.defs and c.kind == "dma": n = max(n, 1)
    if p.kind == "vmem" and p.wide_data and p.wide_data & c.defs: n = max(n, 2)
    if p.kind == "mfma":
        big = {4: 8, 8: 12}[p.passes]
        if c.kind == "mfma":
            if p.defs & c.srcab: n = max(n, big)
            if p.defs & c.srcc and not (p.defs == c.srcc and p.passes == c.passes): n = max(n, big - 2)
            if p.defs & c.defs and not (p.defs & c.srcc) and p.passes != c.passes: n = max(n, big)
        elif c.kind in ("valu", "vmem", "ds", "dma"):
            if p.defs & (c.uses | c.defs): n = max(n, big)
            if c.kind == "valu" and p.srcc & c.defs: n = max(n, p.passes - 1)
    return n

def check_hazards(code):
    code = [c for c in code]
    labels = {c.label: i for i, c in enumerate(code) if c.label}
    errs = []
    def succ(i):
        c = code[i]
        if c.op == "s_endpgm" or c.op == "s_setpc_b64": return []
        if c.op == "s_branch": return [labels[c.ops[0]]]
        if c.op.startswith("s_cbranch"): return [i + 1, labels[c.ops[0]]]
        return [i + 1] if i + 1 < len(code) else []
    for i, p in enumerate(code):
        if p.kind not in ("valu", "salu", "vmem", "mfma"): continue
        stack = [(j, 0) for j in succ(i)]; seen = {}
        while stack:
            j, d = stack.pop()
            if d >= 12 or seen.get(j, 99) <= d: continue
            seen[j] = d
            c = code[j]
            if c.kind not in ("blank", "label", "directive"):
                n = need_states(p, c)
                if n > d: errs.append((i, j, n, d, p.text, c.text))
            for k in succ(j): stack.append((k, d + c.states()))
    return errs

def text(code):
    out = []
    for c in code:
        out.append(c.text if c.kind in ("label", "directive") else "  " + c.text)
    return "\n".join(out) + "\n"
```

```python
import sys, struct, math
from asmlib import *

NAME = "gated_mix__compressed_kv_cla__glu_gated_glu__prompt"
def f2u(x): return struct.unpack("<I", struct.pack("<f", x))[0]

WS_K = 0
WS_V = 16 << 20
WS_A = 32 << 20
WS_F = 60 << 20
WS_T = 61 << 20
WS_BYTES = 64 << 20
NSL = 184

P_X, P_C, P_WQ, P_WUK, P_WUV, P_WO, P_BX, P_WG, P_WU, P_WD, P_GW, P_OUT, P_DBG, P_WS = range(4, 32, 2)
S_H, S_P, S_W, S_T0 = 32, 33, 34, 35
SRD_A, SRD_W0, SRD_W1, SRD_WS, SRD_DBG, SRD_K, SRD_V = 36, 40, 44, 48, 52, 56, 60
S_ACTA, S_ACTB, S_W0, S_W1, S_W1INC, S_WL, S_CNT, S_SL = 64, 65, 66, 67, 68, 69, 70, 71
S_T1, S_T2, S_T3, S_T4 = 72, 73, 74, 75
S_RH, S_CH = 76, 77
S_TRIP, S_TLO, S_THI, S_RING, S_KOFF, S_DLO, S_DHI, S_THR = 78, 79, 80, 81, 82, 83, 84, 85
S_RET = 86
S_TGT = 88
S_M0, S_M1 = 90, 92
S_STAMP = 94
S_GLU = 98

MF16 = "v_mfma_f32_16x16x32_bf16"
MF32 = "v_mfma_f32_32x32x16_bf16"

class Opt:
    stamps = False
    stop_after = 99
opt = Opt()

def srd(d, ptr, nbytes, add=None):
    c = []
    if add is None:
        c += [f"s_mov_b32 s{d}, s{ptr}", f"s_mov_b32 s{d+1}, s{ptr+1}"]
    else:
        c += [f"s_add_u32 s{d}, s{ptr}, {add}", f"s_addc_u32 s{d+1}, s{ptr+1}, 0"]
    c += [f"s_mov_b32 s{d+2}, {nbytes}", f"s_mov_b32 s{d+3}, 0x20000"]
    return c

nstamp = [0]
def stamp(vt=250):
    if not opt.stamps: return []
    n = nstamp[0]; nstamp[0] += 1
    return [f"s_memtime s[{S_STAMP}:{S_STAMP+1}]", f"s_memrealtime s[{S_STAMP+2}:{S_STAMP+3}]", "s_waitcnt lgkmcnt(0)",
            f"v_mov_b32 v{vt}, s{S_STAMP}", f"v_mov_b32 v{vt+1}, s{S_STAMP+2}",
            f"s_lshl_b32 s{S_STAMP}, s2, 2", f"s_add_u32 s{S_STAMP}, s{S_STAMP}, s{S_W}", f"s_lshl_b32 s{S_STAMP}, s{S_STAMP}, 8",
            f"s_add_u32 s{S_STAMP}, s{S_STAMP}, {WS_T + 8*n}",
            f"v_mov_b32 v{vt+2}, s{S_STAMP}",
            f"buffer_store_dwordx2 v[{vt}:{vt+1}], v{vt+2}, s[{SRD_WS}:{SRD_WS+3}], 0 offen"]

V_LANE = 1
V_G, V_L16 = 2, 3
V_RA = 4
V_RW = 8
V_RG = 16
V_DA = 20
V_DW0 = 24
V_DW1 = 28
V_DG = 32
V_STK, V_STV = 36, 37
V_QW, V_HS = 38, 39
V_T = 40
F_I = (64, 96)
F_J = (128, 160)
V_E = 192

def acc(i, j): return (i*8 + j)*4

def slot_off(par, which):
    return which*16384

def rd_act(J, par):
    c = []
    for j in range(4):
        for kh in range(2):
            c.append(f"ds_read_b128 {v(F_J[J] + (j*2+kh)*4, 4)}, {v(V_RA + par*2 + kh)} offset:{slot_off(par, 1+J) + j*2048}")
    return c
def rd_w(Ih, par, gu=False):
    c = []
    for i in range(4):
        for kh in range(2):
            for r in range(2):
                d = F_I[Ih] + (i*2+kh)*4 + r*2
                if not gu:
                    c.append(f"ds_read_b64_tr_b16 {v(d, 2)}, {v(V_RW + par*4 + i)} offset:{slot_off(par, 3*Ih) + kh*8192 + r*1024}")
                else:
                    c.append(f"ds_read_b64_tr_b16 {v(d, 2)}, {v(V_RG + par*2 + (i & 1))} offset:{slot_off(par, 3) + (i >> 1)*8192 + kh*4096 + r*512}")
    return c
def dma_piece(which, par):
    vo, sr, so = {0: (V_DW0, SRD_W0, S_W0), 1: (V_DA, SRD_A, S_ACTA), 2: (V_DA, SRD_A, S_ACTB), 3: (V_DW1, SRD_W1, S_W1)}[which]
    g = [[f"s_add_u32 m0, s{S_WL}, {par*65536 + which*16384}"]]
    for d in range(4):
        g.append([f"buffer_load_dwordx4 {v(vo+d)}, {s(sr,4)}, s{so} offen offset:{d*1024} lds"])
    inc = {0: 64*8192, 1: 128, 2: 128, 3: f"s{S_W1INC}"}[which]
    g.append([f"s_add_u32 s{so}, s{so}, {inc}"])
    return g

def quad_mfma(Ih, J, swap, zero=False):
    m = []
    for i in range(4):
        for j in range(4):
            for kh in range(2):
                d = a_(acc(Ih*4+i, J*4+j), 4)
                w = v(F_I[Ih] + (i*2+kh)*4, 4); x = v(F_J[J] + (j*2+kh)*4, 4)
                A, B = (x, w) if swap else (w, x)
                m.append(f"{MF16} {d}, {A}, {B}, {'0' if (zero and kh == 0) else d}")
    return m

def quadrant(mf, reads, dmas, extra=None):
    fill = {}
    n = len(reads)
    if n == 16:
        pos = [0,1,2,4,5,6,8,9,10,12,13,14,16,17,18,20]
    else:
        pos = [0,2,4,6,8,10,12,14]
    for it, p in zip(reads, pos): fill.setdefault(p, []).append(it)
    dpos = [3, 7, 11, 15, 19, 23]
    for it, p in zip(dmas, dpos): fill.setdefault(p, []).append(it)
    if extra:
        for p, it in extra.items(): fill.setdefault(p, []).append(it)
    if mf is None:
        out = []
        for p in sorted(fill): out += flat(fill[p])
        return out
    return interleave(mf, fill)

def bar(n): return [f"s_waitcnt vmcnt({n}) lgkmcnt(0)", "s_barrier"]

def gemm_step(st, phase, zero=False, dma=True, rd_next=True, glu=True, vm=(16, 16)):
    par = st & 1
    x = par; y = 1 - par
    sw1 = (phase == 1)
    gu = (phase == 2)
    D = (lambda w: dma_piece(w, par)) if dma else (lambda w: [])
    c = []
    W0 = {29: "s_waitcnt lgkmcnt(0)"}
    c += quadrant(quad_mfma(0, x, False, zero), rd_act(y, par), D(0), W0)
    c += quadrant(quad_mfma(0, y, False, zero), rd_w(1, par, gu) if glu else [], D(1 + x))
    c += flat(bar(vm[0]))
    c += quadrant(quad_mfma(1, y, sw1, zero) if glu else None, rd_w(0, 1 - par) if rd_next else [], D(1 + y))
    c += quadrant(quad_mfma(1, x, sw1, zero) if glu else None, rd_act(y, 1 - par) if rd_next else [], D(3))
    c += flat(bar(vm[1]))
    return c

def setup():
    c = []
    c += ["s_cmp_ge_u32 s2, 256", "s_cbranch_scc1 L_end"]
    c += ["s_load_dwordx16 s[4:19], s[0:1], 0", "s_load_dwordx8 s[20:27], s[0:1], 64", "s_load_dwordx4 s[28:31], s[0:1], 96"]
    c += [f"v_lshrrev_b32 v{V_T}, 6, v0", f"v_and_b32 v{V_LANE}, 63, v0", f"v_readfirstlane_b32 s{S_W}, v{V_T}"]
    c += [f"s_and_b32 s{S_T0}, s2, 7", f"s_lshl_b32 s{S_T0}, s{S_T0}, 2", f"s_lshr_b32 s{S_H}, s2, 3", f"s_and_b32 s{S_H}, s{S_H}, 3",
          f"s_add_u32 s{S_H}, s{S_H}, s{S_T0}", f"s_lshr_b32 s{S_P}, s2, 5"]
    c += [f"s_and_b32 s{S_W}, s{S_W}, 3", f"s_and_b32 s{S_RH}, s{S_W}, 1", f"s_lshr_b32 s{S_CH}, s{S_W}, 1", f"s_lshl_b32 s{S_WL}, s{S_W}, 12"]
    L, G, L16, T = V_LANE, V_G, V_L16, V_T
    c += [f"v_lshrrev_b32 v{G}, 4, v{L}", f"v_and_b32 v{L16}, 15, v{L}"]
    c += [f"v_lshrrev_b32 v{T}, 3, v{L}", f"v_lshlrev_b32 v{T}, 10, v{T}", f"v_and_b32 v{T+1}, 7, v{L}"]
    for d in range(4):
        c += [f"v_xor_b32 v{T+2}, v{T+1}, v{G}"]
        if d & 1: c += [f"v_xor_b32 v{T+2}, 4, v{T+2}"]
        c += [f"v_lshl_add_u32 v{V_DA+d}, v{T+2}, 4, v{T}"]
        if d: c += [f"v_add_u32 v{V_DA+d}, {d*8*1024 - d*1024}, v{V_DA+d}"]
    c += [f"v_lshlrev_b32 v{T}, 13, v{G}", f"v_lshlrev_b32 v{T+1}, 1, v{G}", f"v_xor_b32 v{T+1}, v{T+1}, v{L16}"]
    for d in range(4):
        if d == 2: c += [f"v_xor_b32 v{T+1}, 8, v{T+1}"]
        c += [f"v_lshl_add_u32 v{V_DW0+d}, v{T+1}, 4, v{T}"]
        if d: c += [f"v_add_u32 v{V_DW0+d}, {d*4*8192 - d*1024}, v{V_DW0+d}"]
        c += [f"v_mov_b32 v{V_DW1+d}, v{V_DW0+d}"]
    c += ["s_waitcnt lgkmcnt(0)"]
    c += srd(SRD_A, P_C, 2048*1024) + srd(SRD_W0, P_WUK, 512*8192) + srd(SRD_W1, P_WUV, 512*8192)
    c += [f"s_lshl_b32 s{S_ACTA}, s{S_P}, 18", f"s_lshl_b32 s{S_T0}, s{S_CH}, 17", f"s_add_u32 s{S_ACTA}, s{S_ACTA}, s{S_T0}",
          f"s_lshl_b32 s{S_T0}, s{S_RH}, 15", f"s_add_u32 s{S_ACTA}, s{S_ACTA}, s{S_T0}", f"s_add_u32 s{S_ACTB}, s{S_ACTA}, {64*1024}"]
    c += [f"s_lshl_b32 s{S_W0}, s{S_W}, 17", f"s_lshl_b32 s{S_T0}, s{S_H}, 8", f"s_add_u32 s{S_W0}, s{S_W0}, s{S_T0}", f"s_mov_b32 s{S_W1}, s{S_W0}",
          f"s_mov_b32 s{S_W1INC}, {64*8192}"]
    for which, par in ((0, 0), (1, 0), (2, 0), (3, 0), (0, 1), (2, 1)):
        g = dma_piece(which, par)
        c += [g[0], "s_nop 0"] + g[1:]
    c += srd(SRD_WS, P_WS, WS_BYTES) + srd(SRD_DBG, P_DBG, 256)
    c += [f"s_lshl_b32 s{S_T0}, s{S_P}, 5", f"s_add_u32 s{S_T0}, s{S_T0}, s{S_H}", f"s_lshl_b32 s{S_T0}, s{S_T0}, 2", f"s_add_u32 s{S_T0}, s{S_T0}, {WS_F}"]
    c += [f"v_lshrrev_b32 v{T}, 1, v{L16}", f"v_xor_b32 v{T}, v{T}, v{G}", f"v_lshlrev_b32 v{T}, 4, v{T}", f"v_lshl_add_u32 v{T}, v{L16}, 7, v{T}",
          f"s_lshl_b32 s{S_T0}, s{S_RH}, 13", f"v_add_u32 v{V_RA}, s{S_T0}, v{T}", f"v_xor_b32 v{V_RA+1}, 64, v{V_RA}",
          f"v_add_u32 v{V_RA+2}, 0x10000, v{V_RA}", f"v_add_u32 v{V_RA+3}, 0x10000, v{V_RA+1}"]
    c += [f"v_lshrrev_b32 v{T}, 2, v{L16}", f"v_and_b32 v{T+1}, 3, v{L16}", f"v_lshl_add_u32 v{T+2}, v{G}, 3, v{T}",
          f"v_and_b32 v{T+3}, 1, v{G}", f"v_lshl_add_u32 v{T+4}, v{T+3}, 2, v{T}",
          f"v_lshlrev_b32 v{T+5}, 8, v{T+2}", f"v_lshl_add_u32 v{T+5}, v{T+1}, 3, v{T+5}",
          f"s_lshl_b32 s{S_T0}, s{S_CH}, 2", f"v_xor_b32 v{T+4}, s{S_T0}, v{T+4}"]
    for i in range(4):
        c += [f"v_xor_b32 v{T+6}, {i}, v{T+4}", f"v_lshl_add_u32 v{V_RW+i}, v{T+6}, 5, v{T+5}", f"v_add_u32 v{V_RW+4+i}, 0x10000, v{V_RW+i}"]
    c += [f"v_lshrrev_b32 v{T+4}, 1, v{T}", f"v_lshl_add_u32 v{T+4}, v{T+3}, 1, v{T+4}",
          f"v_lshlrev_b32 v{T+5}, 7, v{T+2}", f"v_lshl_add_u32 v{T+5}, v{T+1}, 3, v{T+5}",
          f"s_lshl_b32 s{S_T0}, s{S_CH}, 1", f"v_xor_b32 v{T+4}, s{S_T0}, v{T+4}"]
    for fb in range(2):
        c += [f"v_xor_b32 v{T+6}, {fb}, v{T+4}", f"v_lshl_add_u32 v{V_RG+fb}, v{T+6}, 5, v{T+5}", f"v_add_u32 v{V_RG+2+fb}, 0x10000, v{V_RG+fb}"]
    c += [f"v_lshrrev_b32 v{T}, 3, v{L}", f"v_mul_u32_u24 v{T}, 3584, v{T}", f"v_and_b32 v{T+1}, 7, v{L}", f"v_lshlrev_b32 v{T+2}, 1, v{T+3}",
          f"v_xor_b32 v{T+1}, v{T+1}, v{T+2}"]
    for d in range(4):
        c += [f"v_xor_b32 v{T+2}, {4*(d & 1)}, v{T+1}", f"v_lshl_add_u32 v{V_DG+d}, v{T+2}, 4, v{T}"]
        if d: c += [f"v_add_u32 v{V_DG+d}, {d*8*3584 - d*1024}, v{V_DG+d}"]
    c += [f"v_lshrrev_b32 v{T}, 1, v{G}", f"v_lshlrev_b32 v{T+1}, 10, v{T+3}", f"v_lshl_add_u32 v{T+1}, v{T}, 9, v{T+1}",
          f"v_lshl_add_u32 v{V_QW}, v{L16}, 4, v{T+1}",
          f"v_lshrrev_b32 v{T+2}, 3, v{L16}", f"v_lshl_add_u32 v{T+1}, v{T+2}, 8, v{T+1}", f"v_and_b32 v{T+2}, 7, v{L}", f"v_lshl_add_u32 v{V_STK}, v{T+2}, 4, v{T+1}"]
    c += [f"v_lshlrev_b32 v{T+1}, 10, v{T}", f"v_lshl_add_u32 v{T+1}, v{T+3}, 9, v{T+1}", f"v_lshl_add_u32 v{V_STV}, v{L16}, 4, v{T+1}"]
    c += [f"s_lshl_b32 s{S_T0}, s{S_RH}, 15", f"s_lshl_b32 s{S_T1}, s{S_CH}, 12", f"s_add_u32 s{S_T0}, s{S_T0}, s{S_T1}", f"s_add_u32 s{S_T0}, s{S_T0}, 0x10000",
          f"v_add_u32 v{V_QW}, s{S_T0}, v{V_QW}", f"v_lshlrev_b32 v{V_HS}, 4, v{L}"]
    c += [f"s_lshr_b32 s{S_T0}, s{S_H}, 3", f"s_mul_i32 s{S_SL}, s{S_T0}, 7", f"s_lshr_b32 s{S_T0}, s{S_H}, 2", f"s_and_b32 s{S_T0}, s{S_T0}, 1",
          f"s_and_b32 s{S_T1}, s{S_H}, 3", f"s_lshl_b32 s{S_T2}, s{S_T0}, 2", f"s_add_u32 s{S_T2}, s{S_T2}, s{S_T1}",
          f"s_lshr_b32 s{S_T3}, s{S_P}, 2", f"s_cmp_eq_u32 s{S_T3}, s{S_T0}", f"s_cselect_b32 s{S_GLU}, 1, 0",
          f"s_cmp_eq_u32 s{S_T1}, 3", f"s_cselect_b32 s{S_T2}, 3, s{S_T2}", f"s_cselect_b32 s{S_GLU}, s{S_GLU}, 1", f"s_add_u32 s{S_SL}, s{S_SL}, s{S_T2}"]
    for i in range(256): c += [f"v_accvgpr_write_b32 a{i}, 0"]
    return flat(c)

def p2_switch():
    c = []
    c += srd(SRD_A, P_X, 2048*1024) + srd(SRD_W0, P_WQ, 512*8192)
    c += [f"s_cmp_eq_u32 s{S_CH}, 0", f"s_cselect_b32 s{SRD_W1}, s{P_WG}, s{P_WU}", f"s_cselect_b32 s{SRD_W1+1}, s{P_WG+1}, s{P_WU+1}",
          f"s_cmp_eq_u32 s{S_GLU}, 0", f"s_cselect_b32 s{SRD_W1+2}, 0, {512*3584}"]
    c += [f"s_sub_u32 s{S_T0}, 15, s{S_P}", f"s_cmp_eq_u32 s{S_CH}, 0", f"s_cselect_b32 s{S_T0}, s{S_P}, s{S_T0}", f"s_lshl_b32 s{S_ACTA}, s{S_T0}, 17",
          f"s_lshl_b32 s{S_T0}, s{S_RH}, 15", f"s_add_u32 s{S_ACTA}, s{S_ACTA}, s{S_T0}", f"s_add_u32 s{S_ACTB}, s{S_ACTA}, {64*1024}"]
    c += [f"s_lshl_b32 s{S_W0}, s{S_W}, 17", f"s_lshl_b32 s{S_T0}, s{S_H}, 8", f"s_add_u32 s{S_W0}, s{S_W0}, s{S_T0}"]
    c += [f"s_mul_i32 s{S_W1}, s{S_RH}, {32*3584}", f"s_lshl_b32 s{S_T0}, s{S_SL}, 7", f"s_add_u32 s{S_W1}, s{S_W1}, s{S_T0}", f"s_mov_b32 s{S_W1INC}, {64*3584}"]
    for d in range(4): c += [f"v_mov_b32 v{V_DW1+d}, v{V_DG+d}"]
    return flat(c)

def p1():
    c = []
    pre = flat(bar(16))
    g1, g3 = dma_piece(1, 1), dma_piece(3, 1)
    pre += flat(rd_w(0, 0)[:8] + [g1[0]] + rd_w(0, 0)[8:12] + g1[1:] + ["s_waitcnt lgkmcnt(4)"] + rd_w(0, 0)[12:] + [g3[0]] + rd_act(0, 0)[:4] + g3[1:] + ["s_waitcnt lgkmcnt(4)"] + rd_act(0, 0)[4:])
    pre += flat(bar(16))
    c += pre
    c += flat([f"s_mov_b32 s{S_CNT}, 0", "L_p1:"])
    body, _ = auto_wait(gemm_step(0, 1) + gemm_step(1, 1), [[]])
    c += body
    c += flat([f"s_add_u32 s{S_CNT}, s{S_CNT}, 1", f"s_cmp_lt_u32 s{S_CNT}, 3", "s_cbranch_scc1 L_p1", f"s_cmp_eq_u32 s{S_CNT}, 4", "s_cbranch_scc1 L_p1_done"])
    c += p2_switch()
    c += flat(["s_branch L_p1", "L_p1_done:"])
    return c

def pack_store(srcs, tmp, store):
    c = [f"v_accvgpr_read_b32 v{tmp+4+k}, a{r}" for k, r in enumerate(srcs)]
    c += [f"v_cvt_pk_bf16_f32 v{tmp+k}, v{tmp+4+2*k}, v{tmp+5+2*k}" for k in range(4)]
    c += [store]
    return c

def p1_epilogue():
    c = ["s_nop 7"]
    c += [f"s_lshl_b32 s{S_T0}, s{S_H}, 19", f"s_lshl_b32 s{S_T1}, s{S_P}, 16", f"s_add_u32 s{S_T0}, s{S_T0}, s{S_T1}", f"s_lshl_b32 s{S_T1}, s{S_RH}, 15",
          f"s_add_u32 s{S_T0}, s{S_T0}, s{S_T1}", f"s_lshl_b32 s{S_T1}, s{S_CH}, 12", f"s_add_u32 s{S_T0}, s{S_T0}, s{S_T1}", f"s_add_u32 s{S_T1}, s{S_T0}, {WS_V}"]
    c += [f"s_lshl_b32 s{S_T2}, s{S_P}, 5", f"s_add_u32 s{S_T2}, s{S_T2}, s{S_H}", f"s_lshl_b32 s{S_T2}, s{S_T2}, 2", f"s_add_u32 s{S_T2}, s{S_T2}, {WS_F}",
          f"v_mov_b32 v{V_T}, 0", f"buffer_store_dword v{V_T}, v{V_T}, {s(SRD_WS,4)}, s{S_T2} offen sc1"]
    n = 0
    for uu in range(4):
        for a in range(2):
            for e in range(2):
                j = 2*uu + a
                t = V_E + 12*(n % 5); n += 1
                srcs = [acc(2*e, j) + b for b in range(4)] + [acc(2*e+1, j) + b for b in range(4)]
                c += pack_store(srcs, t, f"buffer_store_dwordx4 {v(t,4)}, v{V_STK}, {s(SRD_WS,4)}, s{S_T0} offen offset:{a*128 + e*2048} sc1")
        for ib in range(4):
            t = V_E + 12*(n % 5); n += 1
            srcs = [acc(4+ib, 2*uu) + b for b in range(4)] + [acc(4+ib, 2*uu+1) + b for b in range(4)]
            c += pack_store(srcs, t, f"buffer_store_dwordx4 {v(t,4)}, v{V_STV}, {s(SRD_WS,4)}, s{S_T1} offen offset:{(ib & 1)*256 + (ib >> 1)*2048} sc1")
        c += [f"s_add_u32 s{S_T0}, s{S_T0}, 8192", f"s_add_u32 s{S_T1}, s{S_T1}, 8192"]
    return flat(c)

def signal(idx_sgpr_expr, label):
    c = [f"s_cmp_lg_u32 s{S_W}, 0", f"s_cbranch_scc1 {label}"] + idx_sgpr_expr
    c += [f"v_mov_b32 v{V_T}, 1", f"v_mov_b32 v{V_T+1}, 0", "s_mov_b64 exec, 1",
          f"buffer_atomic_add v{V_T}, v{V_T+1}, {s(SRD_DBG,4)}, s{S_T0} offen sc1", "s_mov_b64 exec, -1", f"{label}:"]
    return flat(c)

def p2(glu):
    sfx = "g" if glu else "n"
    c = []
    for st in range(8):
        dma = st < 6
        vm = (16, 16)
        if st == 0: vm = (8 + 33 + 8, 33 + 16)
        if st == 6: vm = (8, 0)
        if st == 7: vm = (0, 0)
        code = gemm_step(st, 2, zero=(st == 0), dma=dma, rd_next=(st < 7), glu=glu, vm=vm)
        code, _ = auto_wait(code, [[]])
        c += code
        if st == 1:
            c += signal([f"s_lshl_b32 s{S_T0}, s{S_H}, 2"], f"L_sig_kv_{sfx}")
    return c
```

```python
from gen1 import *

QSCALE = math.log2(math.e) / math.sqrt(128.0)
LOG2E = math.log2(math.e)

A_O = (0, 64); A_Q = (128, 160); A_KF = 192; A_VF = 224
def VS(g, b): return 64 + g*32 + b*16
def VN(g): return 128 + g*16
def VP(g, b): return 160 + g*16 + b*8
V_X = 192
V_L = (208, 209); V_SUM = (210, 211); V_CK = 212
V3_RD, V3_DM, V3_THR, V3_NINF, V3_ST = 213, 214, 215, 216, 217
V3_T = 220

def poll(label, vaddr, srd, soff, expect_v, vt):
    return flat([f"s_mov_b32 s{S_T4}, 0", f"{label}:",
                 f"buffer_load_dword v{vt}, v{vaddr}, {s(srd,4)}, {soff} offen sc1", "s_waitcnt vmcnt(0)",
                 f"v_cmp_lt_u32 vcc, v{vt}, v{expect_v}", f"s_add_u32 s{S_T4}, s{S_T4}, 1", f"s_cbranch_vccz {label}_ok",
                 f"s_cmp_lt_u32 s{S_T4}, 100000", f"s_cbranch_scc1 {label}", f"{label}_ok:"])

def dma4(srd_, so):
    return [f"buffer_load_dwordx4 v{V3_DM}, {s(srd_,4)}, s{so} offen offset:{d*1024} sc1 lds" for d in range(4)]

def stage_dma():
    g = [f"s_add_u32 m0, s{S_RING}, 16384"] + dma4(SRD_V, S_KOFF)
    g2 = [f"s_add_u32 s{S_KOFF}, s{S_KOFF}, 16384", f"s_mov_b32 m0, s{S_RING}", f"s_add_u32 s{S_RING}, s{S_RING}, 32768"] + dma4(SRD_K, S_KOFF) + [f"s_and_b32 s{S_RING}, s{S_RING}, 0x1ffff"]
    return g, g2

def p3_issue_first():
    c = []
    c += [f"s_lshl_b32 s{S_T0}, s{S_H}, 19", f"s_add_u32 s{SRD_K}, s{P_WS}, s{S_T0}", f"s_addc_u32 s{SRD_K+1}, s{P_WS+1}, 0",
          f"s_add_u32 s{SRD_V}, s{SRD_K}, {WS_V}", f"s_addc_u32 s{SRD_V+1}, s{SRD_K+1}, 0",
          f"s_sub_u32 s{S_T0}, 16, s{S_P}", f"s_lshl_b32 s{SRD_K+2}, s{S_T0}, 15", f"s_mov_b32 s{SRD_V+2}, s{SRD_K+2}",
          f"s_mov_b32 s{SRD_K+3}, 0x20000", f"s_mov_b32 s{SRD_V+3}, 0x20000"]
    c += [f"v_lshl_add_u32 v{V3_DM}, v{V_LANE}, 4, s{S_WL}", f"v_mov_b32 v{V_T}, 0", f"v_mov_b32 v{V_T+1}, 8", f"s_lshl_b32 s{S_T0}, s{S_H}, 2"]
    c += poll("L_poll_kv", V_T, SRD_DBG, f"s{S_T0}", V_T+1, V_T+2)
    c += [f"s_mov_b32 s{S_KOFF}, 0", f"s_add_u32 m0, s{S_WL}, 0x20000", f"s_mov_b32 s{S_RING}, s{S_WL}"] + dma4(SRD_K, S_KOFF)
    for _ in range(2):
        g, g2 = stage_dma()
        c += [g[0], "s_nop 0"] + g[1:] + g2
    return flat(c)

def p2_epilogue_q():
    c = [f"s_mov_b32 s{S_T0}, {f2u(QSCALE):#x}"]
    n = 0
    for j in range(8):
        for e in range(2):
            t = 64 + 12*(n % 8); n += 1
            srcs = [acc(2*e, j) + b for b in range(4)] + [acc(2*e+1, j) + b for b in range(4)]
            c += [f"v_accvgpr_read_b32 v{t+4+k}, a{r}" for k, r in enumerate(srcs)]
            c += [f"v_mul_f32 v{t+4+k}, s{S_T0}, v{t+4+k}" for k in range(8)]
            c += [f"v_cvt_pk_bf16_f32 v{t+k}, v{t+4+2*k}, v{t+5+2*k}" for k in range(4)]
            c += [f"ds_write_b128 v{V_QW}, {v(t,4)} offset:{(j >> 1)*8192 + e*2048 + (j & 1)*256}"]
            if n % 8 == 0: c += ["s_waitcnt lgkmcnt(0)"]
    return flat(c)

def p2_epilogue_h():
    c = [f"s_sub_u32 s{S_T0}, 15, s{S_P}", f"s_cmp_eq_u32 s{S_RH}, 0", f"s_cselect_b32 s{S_T0}, s{S_P}, s{S_T0}",
         f"s_mul_i32 s{S_T0}, s{S_T0}, {2*NSL}", f"s_lshl_b32 s{S_T1}, s{S_SL}, 1", f"s_add_u32 s{S_T0}, s{S_T0}, s{S_T1}", f"s_add_u32 s{S_T0}, s{S_T0}, s{S_CH}",
         f"s_lshl_b32 s{S_T0}, s{S_T0}, 12", f"s_add_u32 s{S_T0}, s{S_T0}, {WS_A}", f"s_mov_b32 s{S_T1}, {f2u(-LOG2E):#x}"]
    for j in range(8):
        t = 64 + 20*(j % 4)
        gs = [acc(4, j) + b for b in range(4)] + [acc(5, j) + b for b in range(4)]
        us = [acc(6, j) + b for b in range(4)] + [acc(7, j) + b for b in range(4)]
        c += [f"v_accvgpr_read_b32 v{t+4+k}, a{r}" for k, r in enumerate(gs)]
        c += [f"v_mul_f32 v{t+4+k}, s{S_T1}, v{t+4+k}" for k in range(8)]
        for k in range(8): c += [f"v_exp_f32 v{t+4+k}, v{t+4+k}", f"v_accvgpr_read_b32 v{t+12+k}, a{us[k]}"]
        c += [f"v_add_f32 v{t+4+k}, 1.0, v{t+4+k}" for k in range(8)]
        c += [f"v_rcp_f32 v{t+4+k}, v{t+4+k}" for k in range(8)]
        c += [f"v_mul_f32 v{t+4+k}, v{t+4+k}, v{t+12+k}" for k in range(8)]
        c += [f"v_cvt_pk_bf16_f32 v{t+k}, v{t+4+2*k}, v{t+5+2*k}" for k in range(4)]
        c += [f"buffer_store_dwordx4 {v(t,4)}, v{V_HS}, {s(SRD_WS,4)}, s{S_T0} offen offset:{(j & 3)*1024} sc1"]
        if j == 3: c += [f"s_add_u32 s{S_T0}, s{S_T0}, {NSL*4096}"]
    return flat(c)

def sm_stream(g, b):
    S = VS(g, b); X = V_X + 8*g; P = VP(g, b); sm = V_SUM[g]
    e = lambda j: f"v_exp_f32 v{X + j % 8}, v{S + j}"
    c = [e(0), e(1), e(2)]
    for j in range(1, 16):
        c.append(f"v_add_f32 v{sm}, v{X}, v{X+1}" if j == 1 else f"v_add_f32 v{sm}, v{sm}, v{X + j % 8}")
        if j & 1: c.append(f"v_cvt_pk_bf16_f32 v{P + j//2}, v{X + (j-1) % 8}, v{X + j % 8}")
        if j + 2 < 16: c.append(e(j + 2))
    return c

def cost(ins):
    ins = I(ins)
    if ins.kind in ("label", "blank", "directive"): return 0
    if ins.op in TRANS: return 8
    if ins.kind == "dma": return 8
    return 4

def place(n, pinned, stream, last):
    base = [sum(cost(x) for x in flat(pinned.get(i, []))) for i in range(n)]
    fill = {}; k = 0; cap = 0
    for gp in range(last + 1):
        rem = sum(cost(x) for x in stream[k:]) + sum(base[gp:last + 1])
        level = rem / (last + 1 - gp)
        used = base[gp]
        while k < len(stream) and (used + cost(stream[k]) / 2 <= level or gp == last):
            fill.setdefault(gp, []).append(stream[k]); used += cost(stream[k]); k += 1
        cap = max(cap, used)
    out = {}
    for i in set(list(pinned) + list(fill)):
        out[i] = flat(pinned.get(i, [])) + flat(fill.get(i, []))
    return out, cap

def merge_streams(ss):
    if len(ss) == 1: return ss[0]
    out = []
    for x in zip(*ss): out += list(x)
    return out

def qk_mfma(groups, b):
    m = []
    for f in range(8):
        for g in groups:
            d = v(VS(g, b), 16)
            m.append(f"{MF32} {d}, {a_(A_KF + 4*f, 4)}, {a_(A_Q[g] + 4*f, 4)}, {v(VN(g), 16) if f == 0 else d}")
    return m
def pv_mfma(groups, b):
    m = []
    for f in range(8):
        db, mm = f >> 1, f & 1
        for g in groups:
            d = a_(A_O[g] + 16*db, 16)
            m.append(f"{MF32} {d}, {a_(A_VF + 4*f, 4)}, {v(VP(g, b) + 4*mm, 4)}, {d}")
    return m
def rdk(f, uu): return f"ds_read_b128 {a_(A_KF + 4*f, 4)}, v{V3_RD} offset:{uu*8192 + f*1024}"
def rdv(f, uu): return f"ds_read_b128 {a_(A_VF + 4*f, 4)}, v{V3_RD} offset:{16384 + uu*8192 + f*1024}"

outofline = []
def iteration(name, it, qk, sm, pv, fixg, dma, rd_k=True, rd_v=True, vmn=16, tail=()):
    c = []
    if fixg is not None:
        T = S_TLO if fixg == 0 else S_THI
        Dg = S_DLO if fixg == 0 else S_DHI
        c += [f"s_cmp_eq_u32 s{S_TRIP}, s{T}", f"s_cbranch_scc1 {name}_fix", f"{name}_fixr:"]
        outofline.extend(flat([f"{name}_fix:", f"s_lshl_b32 s{S_T0}, s{S_TRIP}, 1", f"s_add_u32 s{S_T0}, s{S_T0}, {it}", f"s_sub_u32 s{S_T0}, s{S_T0}, s{Dg}",
                               f"s_lshl_b32 s{S_T0}, s{S_T0}, 5", f"s_call_b64 s[{S_RET}:{S_RET+1}], L_fix{fixg}", f"s_branch {name}_fixr"]))
    mq = qk_mfma(qk, it); mp = pv_mfma(pv, it)
    mf = mq + mp
    nq, n = len(mq), len(mf)
    pin = {}
    add = lambda p, x: pin.setdefault(p, []).append(x)
    uu = 1 - it
    kstep = max(len(qk), 1); vstep = len(pv)
    barpos = None
    if it == 1:
        barpos = 2 if nq else -1
        add(barpos, [f"s_waitcnt vmcnt({vmn}) lgkmcnt(0)", "s_barrier"])
        if rd_k or rd_v: add(barpos, [f"v_add_u32 v{V3_RD}, 0x8000, v{V3_RD}", f"v_and_b32 v{V3_RD}, 0x1ffff, v{V3_RD}"])
    if rd_k:
        for f in range(8):
            p = f*kstep + kstep - 1
            if it == 1:
                p = max(p, 3 + (f*(nq - 3))//8)
            if f == 7 and it == 0: add(p, "s_waitcnt lgkmcnt(7)")
            add(p, rdk(f, uu))
    if rd_v:
        for f in range(8):
            if f == 7 and rd_k: add(nq + f*vstep + vstep - 1, "s_waitcnt lgkmcnt(7)")
            add(nq + f*vstep + vstep - 1, rdv(f, uu))
    if dma:
        g, g2 = stage_dma()
        if it == 0:
            for k, x in enumerate(g2): add((k*(n - 1))//len(g2), x)
        else:
            for k, x in enumerate(g): add(nq + (k*(n - 1 - nq))//len(g), x)
    streams = [sm_stream(g, 1 - it) for g in sm]
    post = []
    if streams:
        st = merge_streams(streams)
        if len(sm) == 2:
            st = st + [f"v_add_f32 v{V_CK}, v{V_SUM[0]}, v{V_SUM[1]}", f"v_cmp_nge_f32 vcc, s{S_THR}, v{V_CK}"]
        else:
            st = st + [f"v_cmp_nge_f32 vcc, s{S_THR}, v{V_SUM[sm[0]]}"]
        post = [f"s_cbranch_vccnz {name}_rare", f"{name}_rarer:"] + [f"v_add_f32 v{V_L[g]}, v{V_L[g]}, v{V_SUM[g]}" for g in sm]
        outofline.extend(flat([f"{name}_rare:"] + [f"s_call_b64 s[{S_RET}:{S_RET+1}], L_rare{g}{1-it}" for g in sm] + [f"s_branch {name}_rarer"]))
    else: st = []
    add(n - 1, post + list(tail))
    pre = pin.pop(-1, [])
    fill, cap = place(n, pin, st, n - 2)
    fill[-1] = pre
    c += interleave(mf, fill)
    return flat(c), cap

def body(kind):
    nx = [f"s_add_u32 s{S_TRIP}, s{S_TRIP}, 1"]
    if kind == "D":
        A, c1 = iteration("L_DA", 0, [0, 1], [0, 1], [0, 1], 0, True)
        B, c2 = iteration("L_DB", 1, [0, 1], [0, 1], [0, 1], 0, True, tail=[f"s_cmp_eq_u32 s{S_TRIP}, s{S_TLO}", f"s_addk_i32 s{S_TRIP}, 1"][:0])
    elif kind == "T":
        A, c1 = iteration("L_TA", 0, [1], [0, 1], [0, 1], 1, True)
        B, c2 = iteration("L_TB", 1, [1], [1], [0, 1], 1, True)
    elif kind == "S":
        A, c1 = iteration("L_SA", 0, [1], [1], [1], 1, True)
        B, c2 = iteration("L_SB", 1, [1], [1], [1], 1, True)
    else:
        A, c1 = iteration("L_EA", 0, [], [1], [1], None, False, rd_k=False)
        B, c2 = iteration("L_EB", 1, [], [], [1], None, False, rd_k=False, rd_v=False, vmn=0)
    print("body", kind, "caps", c1, c2, file=sys.stderr)
    return A + B

def rowmax(S, t):
    c = [f"v_max3_f32 v{t}, v{S}, v{S+1}, v{S+2}"]
    for j in range(3, 15, 2): c += [f"v_max3_f32 v{t}, v{t}, v{S+j}, v{S+j+1}"]
    c += [f"v_max_f32 v{t}, v{t}, v{S+15}", f"v_mov_b32 v{t+1}, v{t}", "s_nop 1", f"v_permlane32_swap_b32 v{t}, v{t+1}", f"v_max_f32 v{t}, v{t}, v{t+1}"]
    return c

def rare(g, b):
    t = V3_T
    c = [f"L_rare{g}{b}:", "s_nop 15"]
    c += rowmax(VS(g, b), t)
    c += [f"v_max_f32 v{t}, 0, v{t}", f"v_exp_f32 v{t+1}, -v{t}"]
    for j in range(16):
        c += [f"v_sub_f32 v{r+j}, v{r+j}, v{t}" for r in (VN(g), VS(g, 0), VS(g, 1))]
    c += [f"v_mul_f32 v{V_L[g]}, v{V_L[g]}, v{t+1}"]
    for j in range(0, 64, 4):
        c += [f"v_accvgpr_read_b32 v{t+2+k}, a{A_O[g]+j+k}" for k in range(4)]
        c += [f"v_mul_f32 v{t+2+k}, v{t+2+k}, v{t+1}" for k in range(4)]
        c += [f"v_accvgpr_write_b32 a{A_O[g]+j+k}, v{t+2+k}" for k in range(4)]
    c += sm_stream(g, b)
    c += ["s_nop 1", f"s_setpc_b64 s[{S_RET}:{S_RET+1}]"]
    return flat(c)

def fix(g):
    t = V3_T
    c = [f"L_fix{g}:", "s_nop 7", f"v_subrev_u32 v{t}, s{S_T0}, v{V3_THR}"]
    def kc(j):
        ap, b = j >> 2, j & 3
        return 16*(ap & 1) + 8*(ap >> 1) + b
    ms = [f"s[{S_M0}:{S_M0+1}]", f"s[{S_M1}:{S_M1+1}]", "vcc"]
    cmp_ = lambda j: f"v_cmp_gt_i32 {ms[j % 3]}, {kc(j)}, v{t}"
    c += [cmp_(0), cmp_(1)]
    for j in range(16):
        c += [cmp_(j + 2) if j + 2 < 16 else "s_nop 0"]
        c += [f"v_cndmask_b32 v{VN(g)+j}, v{VN(g)+j}, v{V3_NINF}, {ms[j % 3]}"]
    c += ["s_nop 1", f"s_setpc_b64 s[{S_RET}:{S_RET+1}]"]
    return flat(c)

def o_epilogue(g):
    t = V3_T
    Dg = S_DLO if g == 0 else S_DHI
    c = [f"s_lshr_b32 s{S_T0}, s{Dg}, 1", f"s_mul_i32 s{S_T0}, s{S_T0}, {NSL}", f"s_lshl_b32 s{S_T1}, s{S_H}, 2", f"s_add_u32 s{S_T0}, s{S_T0}, s{S_T1}",
         f"s_lshl_b32 s{S_T0}, s{S_T0}, 12", f"s_and_b32 s{S_T1}, s{Dg}, 1", f"s_lshl_b32 s{S_T1}, s{S_T1}, 11", f"s_add_u32 s{S_T0}, s{S_T0}, s{S_T1}",
         f"s_add_u32 s{S_T0}, s{S_T0}, {WS_A + 56*4096}"]
    c += [f"v_mov_b32 v{t}, v{V_L[g]}", f"v_mov_b32 v{t+1}, v{V_L[g]}", "s_nop 1", f"v_permlane32_swap_b32 v{t}, v{t+1}", f"v_add_f32 v{t}, v{t}, v{t+1}", f"v_rcp_f32 v{t}, v{t}"]
    for db in range(4):
        for m in range(2):
            q = t + 4 + 12*m
            c += [f"v_accvgpr_read_b32 v{q+4+k}, a{A_O[g] + 16*db + 8*m + k}" for k in range(8)]
            c += [f"v_mul_f32 v{q+4+k}, v{q+4+k}, v{t}" for k in range(8)]
            c += [f"v_cvt_pk_bf16_f32 v{q+k}, v{q+4+2*k}, v{q+5+2*k}" for k in range(4)]
            c += [f"buffer_store_dwordx4 {v(q,4)}, v{V3_ST}, {s(SRD_WS,4)}, s{S_T0} offen offset:{m*512} sc1"]
        c += [f"s_add_u32 s{S_T0}, s{S_T0}, 4096"]
    return flat(c)

def p3():
    L = V_LANE; t = V3_T
    c = []
    c += [f"s_lshl_b32 s{S_T0}, s{S_P}, 1", f"s_add_u32 s{S_TLO}, s{S_T0}, s{S_CH}", f"s_sub_u32 s{S_THI}, 31, s{S_TLO}",
          f"s_lshl_b32 s{S_T0}, s{S_P}, 2", f"s_add_u32 s{S_DLO}, s{S_T0}, s{S_W}", f"s_sub_u32 s{S_DHI}, 63, s{S_DLO}", f"s_mov_b32 s{S_THR}, {f2u(2.0**30):#x}"]
    c += [f"v_lshlrev_b32 v{V3_RD}, 4, v{L}", f"v_and_b32 v{t}, 31, v{L}", f"v_lshrrev_b32 v{t+1}, 5, v{L}", f"v_lshlrev_b32 v{t+2}, 2, v{t+1}", f"v_sub_u32 v{V3_THR}, v{t}, v{t+2}",
          f"v_mov_b32 v{V3_NINF}, 0xff800000",
          f"v_lshrrev_b32 v{t}, 4, v{t}", f"v_lshlrev_b32 v{t}, 10, v{t}", f"v_lshl_add_u32 v{t}, v{t+1}, 8, v{t}", f"v_lshl_add_u32 v{V3_ST}, v{V_L16}, 4, v{t}"]
    c += [f"s_lshl_b32 s{S_T0}, s{S_W}, 13", f"s_add_u32 s{S_T1}, s{S_T0}, 0x10000", f"s_sub_u32 s{S_T2}, {0x10000 + 7*8192}, s{S_T0}",
          f"v_add_u32 v{t}, s{S_T1}, v{V3_RD}", f"v_add_u32 v{t+1}, s{S_T2}, v{V3_RD}", f"v_add_u32 v{t+2}, 0x20000, v{V3_RD}"]
    c += ["s_waitcnt vmcnt(8) lgkmcnt(0)", "s_barrier"]
    for g in range(2):
        c += [f"ds_read_b128 {a_(A_Q[g] + 4*f, 4)}, v{t+g} offset:{f*1024}" for f in range(8)]
        if g == 0: c += [f"v_mov_b32 v{VN(0)+j}, 0" for j in range(32)] + ["s_waitcnt lgkmcnt(0)"]
    c += [f"v_accvgpr_write_b32 a{j}, 0" for j in range(64)]
    c += ["s_waitcnt lgkmcnt(0)", "s_barrier"]
    c += [f"ds_read_b128 {a_(A_KF + 4*f, 4)}, v{t+2} offset:{f*1024}" for f in range(8)]
    g, g2 = stage_dma()
    c += [g[0], "s_nop 0"] + g[1:] + g2 + [g[0], "s_nop 0"] + g[1:]
    c += [f"v_accvgpr_write_b32 a{j}, 0" for j in range(64, 128)]
    c += [f"v_mov_b32 v{V_L[0]}, 0", f"v_mov_b32 v{V_L[1]}, 0", f"s_mov_b32 s{S_TRIP}, 0"]
    def fixcall(u, nm):
        return [f"s_cmp_lg_u32 s{S_TLO}, 0", f"s_cbranch_scc1 {nm}", f"s_sub_u32 s{S_T0}, {u}, s{S_DLO}", f"s_lshl_b32 s{S_T0}, s{S_T0}, 5",
                f"v_mov_b32 v{t+20}, v{t+2}", f"s_call_b64 s[{S_RET}:{S_RET+1}], L_fix0", f"v_mov_b32 v{t+2}, v{t+20}", f"{nm}:"]
    c += fixcall(0, "L_pf0")
    pro = []
    fill = {}
    for f in range(8): fill[2*f + 1] = [f"ds_read_b128 {a_(A_KF + 4*f, 4)}, v{t+2} offset:{8192 + f*1024}"]
    pro += flat(["s_waitcnt lgkmcnt(0)"]) + interleave(qk_mfma([0, 1], 0), fill)
    pro += flat([rdv(f, 0) for f in range(4)] + ["s_nop 7"])
    for g in range(2):
        pro += flat(rowmax(VS(g, 0), t + 4 + 2*g))
        for j in range(16):
            pro += flat([f"v_sub_f32 v{r+j}, v{r+j}, v{t + 4 + 2*g}" for r in (VN(g), VS(g, 0))])
    pro += flat(["s_waitcnt lgkmcnt(0)"] + [rdv(f, 0) for f in range(4, 8)])
    c += pro
    c += fixcall(1, "L_pf1")
    pin = {2*f + 1: [rdk(f, 0)] for f in range(8)}
    st = merge_streams([sm_stream(0, 0), sm_stream(1, 0)]) + [f"v_add_f32 v{V_L[g]}, v{V_L[g]}, v{V_SUM[g]}" for g in range(2)]
    fill, _ = place(16, pin, st, 15)
    c += ["s_nop 1"] + interleave(qk_mfma([0, 1], 1), fill)
    c += ["s_nop 7", "s_waitcnt lgkmcnt(0)"]
    c = flat(c)
    def waits(code, states): return auto_wait_loop(code, states)
    D, so = waits(body("D"), [[]])
    T, so2 = auto_wait(body("T"), [[]] + so)
    Sb, so3 = waits(body("S"), so2)
    E, _ = auto_wait(body("E"), so2 + so3)
    c += flat([f"s_cmp_eq_u32 s{S_TRIP}, s{S_TLO}", "s_cbranch_scc1 L_T", "L_D:", f"s_add_u32 s{S_TRIP}, s{S_TRIP}, 1"])
    c += D
    c += flat([f"s_cmp_lg_u32 s{S_TRIP}, s{S_TLO}", "s_cbranch_scc1 L_D", "L_T:", f"s_add_u32 s{S_TRIP}, s{S_TRIP}, 1"])
    c += T
    c += flat([f"s_cmp_lg_u32 s{S_CH}, 0", "s_cbranch_scc1 L_noepi"])
    c += flat([f"s_cmp_eq_u32 s{S_GLU}, 0", "s_cbranch_scc1 L_sig_h"])
    c += signal([f"s_lshl_b32 s{S_T0}, s{S_P}, 2", f"s_add_u32 s{S_T0}, s{S_T0}, 128"], "L_sig_h")
    c += flat([f"s_call_b64 s[{S_RET}:{S_RET+1}], L_epi0", "L_noepi:"])
    c += flat([f"s_cmp_eq_u32 s{S_TRIP}, s{S_THI}", "s_cbranch_scc1 L_E", "L_S:", f"s_add_u32 s{S_TRIP}, s{S_TRIP}, 1"])
    c += Sb
    c += flat([f"s_cmp_lg_u32 s{S_TRIP}, s{S_THI}", "s_cbranch_scc1 L_S", "L_E:"])
    c += E
    c += flat([f"s_cmp_eq_u32 s{S_CH}, 0", "s_cbranch_scc1 L_epi_hi", f"s_call_b64 s[{S_RET}:{S_RET+1}], L_epi0", "s_barrier", "L_epi_hi:", "s_nop 7"])
    c += o_epilogue(1)
    outofline.extend(flat(["L_epi0:", "s_nop 7"]) + o_epilogue(0) + flat([f"s_setpc_b64 s[{S_RET}:{S_RET+1}]"]))
    for g in range(2):
        outofline.extend(fix(g))
        for b in range(2): outofline.extend(rare(g, b))
    return c
```

```python
from gen3 import *

S4_RT, S4_CT, S4_AO, S4_WO, S4_LB = S_ACTA, S_ACTB, S_W0, S_W1, S_W1INC
V4_DW = 4
V4_RH = 8
V4_RC = 12
V4_A = 16
V4_G = 20
V4_T = 24
V4_ACC = (64, 128)
A4_X = 0; A4_W = 128

def p4_loads(buf, srdw):
    c = []
    for sl in range(2):
        c.append([f"s_add_u32 m0, s{S4_LB}, {buf*8192 + sl*4096}"])
        for rb in range(4):
            c.append([f"buffer_load_dwordx4 {a_(A4_X + buf*32 + (rb*2+sl)*4, 4)}, v{V4_A}, {s(SRD_WS,4)}, s{S4_AO} offen offset:{rb*1024} sc1"])
            c.append([f"buffer_load_dwordx4 v{V4_DW+rb}, {s(srdw,4)}, s{S4_WO} offen offset:{rb*1024} lds"])
        c.append([f"s_add_u32 s{S4_AO}, s{S4_AO}, 4096", f"s_add_u32 s{S4_WO}, s{S4_WO}, 32768"])
    return c

def p4_iter(buf, part, vm, loads, zero=False):
    base = V4_RC if part else V4_RH
    ro = 1024 if part else 2048
    rd = []
    for i in range(4):
        for sl in range(2):
            for r in range(2):
                rd.append(f"ds_read_b64_tr_b16 {a_(A4_W + (i*2+sl)*4 + 2*r, 2)}, v{base+i} offset:{buf*8192 + sl*4096 + r*ro}")
    mf = []
    for i in range(4):
        for j in range(4):
            for sl in range(2):
                d = v(V4_ACC[part] + (j*4+i)*4, 4)
                mf.append(f"{MF16} {d}, {a_(A4_W + (i*2+sl)*4, 4)}, {a_(A4_X + buf*32 + (j*2+sl)*4, 4)}, {'0' if zero and sl == 0 else d}")
    fill = {-1: [f"s_waitcnt vmcnt({vm})"] + rd[:12] + loads[:4]}
    for k, x in enumerate(rd[12:]): fill.setdefault(k, []).append(x)
    spread(fill, loads[4:], 4, 32) if len(loads) > 4 else None
    c, _ = auto_wait(interleave(mf, fill), [[]])
    return c

def p4_part(part, npairs, srdw):
    c = []
    for n in range(min(3, npairs)): c += flat(p4_loads(n, srdw))
    def it(n):
        ld = p4_loads((n + 3) % 4, srdw) if n + 3 < npairs else []
        vm = 16*min(2, npairs - 1 - n)
        return p4_iter(n % 4, part, vm, ld, zero=(n == 0))
    if part == 0:
        for n in range(npairs): c += it(n)
    else:
        c += it(0)
        c += flat([f"s_mov_b32 s{S_CNT}, 0", "L_p4:"])
        for n in range(1, 5): c += it(n)
        c += flat([f"s_add_u32 s{S_CNT}, s{S_CNT}, 1", f"s_cmp_lt_u32 s{S_CNT}, 3", "s_cbranch_scc1 L_p4"])
        for n in range(13, 16): c += it(n)
    return c

def p4():
    L, G, L16, T = V_LANE, V_G, V_L16, V4_T
    c = []
    c += ["s_waitcnt vmcnt(0)", "s_barrier"]
    c += [f"s_cmp_lg_u32 s{S_W}, 0", "s_cbranch_scc1 L_sig_c",
          f"s_lshl_b32 s{S_T2}, s{S_P}, 5", f"s_add_u32 s{S_T2}, s{S_T2}, s{S_H}", f"s_lshl_b32 s{S_T2}, s{S_T2}, 2", f"s_add_u32 s{S_T2}, s{S_T2}, {WS_F}",
          f"v_mov_b32 v{T}, 0", f"v_mov_b32 v{T+1}, 1", "s_mov_b64 exec, 1", f"buffer_store_dword v{T+1}, v{T}, {s(SRD_WS,4)}, s{S_T2} offen sc1", "s_mov_b64 exec, -1", "L_sig_c:"]
    c += stamp()
    c += [f"s_mov_b32 s{S4_RT}, s{S_H}", f"s_mov_b32 s{S4_CT}, s{S_P}", f"s_lshl_b32 s{S4_LB}, s{S_W}, 15"]
    c += srd(SRD_A, P_X, 2048*1024) + srd(SRD_W0, P_WD, 1792*1024) + srd(SRD_W1, P_WO, 4096*1024) + srd(SRD_K, P_GW, 1024) + srd(SRD_V, P_OUT, 2048*1024)
    c += [f"v_lshlrev_b32 v{T}, 4, v{G}", f"v_lshl_add_u32 v{T+1}, v{L16}, 10, v{T}",
          f"s_lshl_b32 s{S_T0}, s{S4_RT}, 16", f"s_lshl_b32 s{S_T1}, s{S_W}, 14", f"s_add_u32 s{S_T0}, s{S_T0}, s{S_T1}"]
    for ks in range(16):
        c += [f"buffer_load_dwordx4 {v(64 + 4*ks, 4)}, v{T+1}, {s(SRD_A,4)}, s{S_T0} offen offset:{ks*64}",
              f"buffer_load_dwordx4 {v(128 + 4*ks, 4)}, v{T}, {s(SRD_K,4)}, 0 offen offset:{ks*64}"]
    c += [f"v_lshlrev_b32 v{V4_A}, 4, v{L}"]
    c += [f"v_lshrrev_b32 v{T+2}, 3, v{L}", f"v_lshlrev_b32 v{T+2}, 10, v{T+2}", f"v_and_b32 v{T+3}, 7, v{L}", f"v_lshlrev_b32 v{T+4}, 1, v{G}", f"v_xor_b32 v{T+3}, v{T+3}, v{T+4}",
          f"v_lshl_add_u32 v{V4_DW}, v{T+3}, 4, v{T+2}"]
    for d in range(1, 4): c += [f"v_add_u32 v{V4_DW+d}, {d*8192 - d*1024}, v{V4_DW}"]
    c += [f"v_lshrrev_b32 v{T+2}, 2, v{L16}", f"v_and_b32 v{T+3}, 3, v{L16}", f"v_and_b32 v{T+4}, 1, v{G}", f"v_lshrrev_b32 v{T+5}, 1, v{T+2}", f"v_lshl_add_u32 v{T+5}, v{T+4}, 1, v{T+5}",
          f"v_lshl_add_u32 v{T+6}, v{G}, 2, v{T+2}",
          f"v_lshrrev_b32 v{T+7}, 1, v{G}", f"v_lshlrev_b32 v{T+7}, 4, v{T+7}", f"v_lshl_add_u32 v{T+7}, v{T+4}, 2, v{T+7}", f"v_add_u32 v{T+7}, v{T+7}, v{T+2}",
          f"v_lshl_add_u32 v{T+3}, v{T+3}, 3, s{S4_LB}", f"v_lshl_add_u32 v{T+6}, v{T+6}, 7, v{T+3}", f"v_lshl_add_u32 v{T+7}, v{T+7}, 7, v{T+3}"]
    for i in range(4):
        c += [f"v_xor_b32 v{T+8}, {i}, v{T+5}", f"v_lshl_add_u32 v{V4_RH+i}, v{T+8}, 5, v{T+6}", f"v_lshl_add_u32 v{V4_RC+i}, v{T+8}, 5, v{T+7}"]
    c += [f"s_lshr_b32 s{S_T0}, s{S4_RT}, 1", f"s_sub_u32 s{S_T1}, 15, s{S_T0}", f"s_min_u32 s{S_T3}, s{S_T0}, s{S_T1}"]
    c += [f"v_lshlrev_b32 v{T+2}, 2, v{L}", f"v_mov_b32 v{T+3}, 0", f"s_add_u32 s{S_T0}, s{S_T3}, 32",
          f"v_cmp_gt_u32 vcc, 32, v{L}", f"v_cmp_eq_u32 s[{S_M0}:{S_M0+1}], s{S_T0}, v{L}", "s_nop 1", f"v_cndmask_b32 v{T+3}, v{T+3}, 8, vcc", f"v_cndmask_b32 v{T+3}, v{T+3}, 28, s[{S_M0}:{S_M0+1}]"]
    c += poll("L_poll_h", T+2, SRD_DBG, "0", T+3, T+4)
    mf = [f"{MF16} {v(T+8,4)}, {v(128+4*ks,4)}, {v(64+4*ks,4)}, {'0' if ks == 0 else v(T+8,4)}" for ks in range(16)]
    c += mf
    c += [f"s_mul_i32 s{S4_AO}, s{S4_RT}, {NSL}", f"s_mul_i32 s{S_T0}, s{S_W}, 14", f"s_add_u32 s{S4_AO}, s{S4_AO}, s{S_T0}", f"s_lshl_b32 s{S4_AO}, s{S4_AO}, 12", f"s_add_u32 s{S4_AO}, s{S4_AO}, {WS_A}",
          f"s_lshl_b32 s{S4_WO}, s{S_T0}, 15", f"s_lshl_b32 s{S_T1}, s{S4_CT}, 7", f"s_add_u32 s{S4_WO}, s{S4_WO}, s{S_T1}", f"s_mov_b32 s{S_T0}, {f2u(-LOG2E):#x}"]
    c += [f"v_mul_f32 v{T+8}, s{S_T0}, v{T+8}", f"v_exp_f32 v{T+8}, v{T+8}", f"s_lshl_b32 s{S_T0}, s{S_W}, 6", f"v_add_f32 v{T+8}, 1.0, v{T+8}", f"v_rcp_f32 v{T+8}, v{T+8}",
          f"s_add_u32 s{S_T0}, s{S_T0}, 0x20000", f"v_lshl_add_u32 v{T+9}, v{L16}, 2, s{S_T0}", f"ds_write_b32 v{T+9}, v{T+8}", "s_waitcnt lgkmcnt(0)"]
    c = flat(c)
    c += p4_part(0, 7, SRD_W0)
    c += flat(stamp())
    c += flat([f"v_and_b32 v{T+2}, 31, v{L}", f"v_lshlrev_b32 v{T+2}, 2, v{T+2}", f"v_mov_b32 v{T+3}, 1", f"s_lshl_b32 s{S_T0}, s{S_T3}, 7", f"s_add_u32 s{S_T0}, s{S_T0}, {WS_F}"])
    c += poll("L_poll_c", T+2, SRD_WS, f"s{S_T0}", T+3, T+4)
    c += flat(stamp())
    c += flat([f"s_mul_i32 s{S4_AO}, s{S4_RT}, {NSL}", f"s_lshl_b32 s{S_T0}, s{S_W}, 5", f"s_add_u32 s{S4_AO}, s{S4_AO}, s{S_T0}", f"s_lshl_b32 s{S4_AO}, s{S4_AO}, 12", f"s_add_u32 s{S4_AO}, s{S4_AO}, {WS_A + 56*4096}",
               f"s_lshl_b32 s{S4_WO}, s{S_T0}, 15", f"s_lshl_b32 s{S_T1}, s{S4_CT}, 7", f"s_add_u32 s{S4_WO}, s{S4_WO}, s{S_T1}", "s_barrier"])
    c += p4_part(1, 16, SRD_W1)
    c += flat(stamp())
    e = [f"v_lshlrev_b32 v{T+2}, 2, v{L16}", f"v_add_u32 v{T+2}, 0x20000, v{T+2}"]
    e += [f"ds_read_b32 v{V4_G+j}, v{T+2} offset:{64*j}" for j in range(4)]
    e += [f"v_add_u32 v{T+3}, s{S4_LB}, v{V4_A}", "s_waitcnt lgkmcnt(0)", "s_nop 3"]
    for j in range(4):
        for i in range(4):
            o = (j*4+i)*4
            e += [f"v_sub_f32 v{V4_ACC[1]+o+b}, v{V4_ACC[1]+o+b}, v{V4_ACC[0]+o+b}" for b in range(4)]
            e += [f"v_fmac_f32 v{V4_ACC[0]+o+b}, v{V4_ACC[1]+o+b}, v{V4_G+j}" for b in range(4)]
            e += [f"ds_write_b128 v{T+3}, {v(V4_ACC[0]+o, 4)} offset:{(j*4+i)*1024}"]
        e += ["s_waitcnt lgkmcnt(4)"]
    e += [f"v_and_b32 v{T+4}, 7, v{L}", f"v_lshrrev_b32 v{T+5}, 3, v{L}", f"v_lshrrev_b32 v{T+6}, 1, v{T+4}", f"v_and_b32 v{T+7}, 1, v{T+4}",
          f"v_lshlrev_b32 v{T+6}, 10, v{T+6}", f"v_lshl_add_u32 v{T+6}, v{T+7}, 9, v{T+6}", f"v_lshl_add_u32 v{T+6}, v{T+5}, 4, v{T+6}", f"v_add_u32 v{T+6}, s{S_WL}, v{T+6}",
          f"v_add_u32 v{T+7}, 0x10000, v{T+6}",
          f"v_lshlrev_b32 v{T+5}, 10, v{T+5}", f"v_lshl_add_u32 v{T+5}, v{T+4}, 4, v{T+5}",
          f"s_lshl_b32 s{S_T0}, s{S4_RT}, 16", f"s_lshl_b32 s{S_T1}, s{S_W}, 14", f"s_add_u32 s{S_T0}, s{S_T0}, s{S_T1}", f"s_lshl_b32 s{S_T1}, s{S4_CT}, 7", f"s_add_u32 s{S_T0}, s{S_T0}, s{S_T1}",
          f"s_add_u32 s{S_T1}, s{S_T0}, 8192"]
    e += ["s_waitcnt lgkmcnt(0)", "s_barrier"]
    for q in range(2):
        R = 128 + q*32
        for w in range(4):
            for hf in range(2):
                e += [f"ds_read_b128 {v(R + w*8 + hf*4, 4)}, v{T+6 + (w >> 1)} offset:{(w & 1)*32768 + q*128 + hf*256}"]
    for q in range(2):
        R = 128 + q*32
        for w in range(1, 4):
            e += [f"v_add_f32 v{R+k}, v{R+k}, v{R+w*8+k}" for k in range(8)]
        e += [f"v_cvt_pk_bf16_f32 v{R+8+k}, v{R+2*k}, v{R+2*k+1}" for k in range(4)]
        e += [f"buffer_store_dwordx4 {v(R+8,4)}, v{T+5}, {s(SRD_V,4)}, s{S_T1 if q else S_T0} offen"]
    e, _ = auto_wait(e, [[]])
    c += e
    return c

def build():
    nstamp[0] = 0
    del outofline[:]
    c = setup()
    c += flat(stamp())
    c += p1()
    c += flat(stamp())
    c += p1_epilogue()
    c += flat(stamp())
    c += flat([f"s_cmp_eq_u32 s{S_GLU}, 0", "s_cbranch_scc1 L_p2n"])
    c += p2(True)
    c += flat(["L_p2_done:"])
    c += flat(stamp())
    c += p3_issue_first()
    c += flat(stamp())
    c += p2_epilogue_q()
    c += flat([f"s_cmp_eq_u32 s{S_GLU}, 0", "s_cbranch_scc1 L_noh"])
    c += p2_epilogue_h()
    c += flat(["L_noh:"])
    c += flat(stamp())
    c += p3()
    c += flat(stamp())
    c += p4()
    c += flat(["s_waitcnt vmcnt(0)"])
    c += flat(stamp())
    c += flat(["L_end:", "s_endpgm"])
    c += flat(["L_p2n:"]) + p2(False) + flat(["s_branch L_p2_done"])
    c += outofline
    errs = check_hazards(c)
    for e in errs[:40]: print("HAZARD", e, file=sys.stderr)
    assert not errs
    hdr = open("cdna_kernels/" + NAME + ".s.ref").read().split("; Override launch")[0]
    out = hdr + f"""; Generated by my own generator script (fused persistent kernel, 256 workgroups, one per CU).
; @launch grid=(256,1,1) block=(256,1,1) lds=163840
.amdgcn_target "amdgcn-amd-amdhsa--gfx950"
.text
.globl {NAME}_kernel
.p2align 8
.type {NAME}_kernel,@function
{NAME}_kernel:
""" + text(c) + f""".section .rodata,"a"
.p2align 6
.amdhsa_kernel {NAME}_kernel
  .amdhsa_next_free_vgpr 512
  .amdhsa_next_free_sgpr 102
  .amdhsa_accum_offset 256
  .amdhsa_group_segment_fixed_size 0
  .amdhsa_kernarg_size 112
  .amdhsa_user_sgpr_count 2
  .amdhsa_user_sgpr_kernarg_segment_ptr 1
  .amdhsa_system_sgpr_workgroup_id_x 1
.end_amdhsa_kernel
"""
    return out

if __name__ == "__main__":
    opt.stamps = "--stamps" in sys.argv
    o = build()
    open(sys.argv[1], "w").write(o)
    print("nstamps", nstamp[0], "bytes", len(o), file=sys.stderr)
```

```python
import re

def rng(kind, a, n=1):
    return f"{kind}{a}" if n == 1 else f"{kind}[{a}:{a+n-1}]"
def v(a, n=1): return rng("v", a, n)
def a_(a, n=1): return rng("a", a, n)
def s(a, n=1): return rng("s", a, n)

_REG = re.compile(r"^-?(?:abs\()?\|?([vas])(?:(\d+)|\[(\d+):(\d+)\])\)?\|?$")
def regs_of(tok):
    tok = tok.strip()
    if tok in ("vcc", "vcc_lo", "vcc_hi"): return {("s", "vcc")}
    if tok in ("exec", "exec_lo", "exec_hi"): return {("s", "exec")}
    if tok == "m0": return {("s", "m0")}
    m = _REG.match(tok)
    if not m: return set()
    k = m.group(1)
    if m.group(2) is not None: return {(k, int(m.group(2)))}
    return {(k, i) for i in range(int(m.group(3)), int(m.group(4)) + 1)}

TRANS = ("v_exp_f32", "v_log_f32", "v_rcp_f32", "v_rsq_f32", "v_sqrt_f32", "v_sin_f32", "v_cos_f32")

class Ins:
    __slots__ = ("text", "op", "ops", "defs", "uses", "kind", "passes", "srcc", "srcab", "wide_data", "label", "mods")
    def __init__(self, text):
        self.text = text
        t = text.split(";")[0].strip()
        self.label = None
        self.defs, self.uses = set(), set()
        self.kind = "other"; self.passes = 0; self.srcc = set(); self.srcab = set(); self.wide_data = set()
        self.op = ""; self.ops = []; self.mods = ""
        if not t: self.kind = "blank"; return
        if t.endswith(":"): self.label = t[:-1]; self.kind = "label"; return
        if t.startswith("."): self.kind = "directive"; return
        p = t.split(None, 1)
        op = p[0]; self.op = op
        rest = p[1] if len(p) > 1 else ""
        rest = re.sub(r"\s+(op_sel|op_sel_hi|neg_lo|neg_hi):\[[^\]]*\]", "", rest)
        ops = [x.strip() for x in rest.split(",")] if rest else []
        if ops:
            last = ops[-1].split()
            self.mods = " ".join(last[1:]); ops[-1] = last[0] if last else ""
        self.ops = ops
        R = regs_of
        base = re.sub(r"_e(32|64)$", "", op)
        if op.startswith("v_mfma"):
            self.kind = "mfma"; self.passes = 8 if "32x32" in op else 4
            self.defs = R(ops[0]); self.srcab = R(ops[1]) | R(ops[2]); self.srcc = R(ops[3]); self.uses = self.srcab | self.srcc
        elif op.startswith("ds_read") or op.startswith("ds_bpermute") or op.startswith("ds_swizzle"):
            self.kind = "ds"; self.defs = R(ops[0])
            for o in ops[1:]: self.uses |= R(o)
        elif op.startswith("ds_"):
            self.kind = "ds"
            for o in ops: self.uses |= R(o)
        elif op.startswith("buffer_load") or op.startswith("global_load"):
            self.kind = "vmem"
            if "lds" in self.mods.split() or "_lds_" in op:
                for o in ops: self.uses |= R(o)
                self.uses |= {("s", "m0")}; self.kind = "dma"
            else:
                self.defs = R(ops[0])
                for o in ops[1:]: self.uses |= R(o)
        elif op.startswith("buffer_store") or op.startswith("buffer_atomic"):
            self.kind = "vmem"
            for o in ops: self.uses |= R(o)
            if "x4" in op or "x3" in op: self.wide_data = R(ops[0])
            if op.startswith("buffer_atomic") and "sc0" in self.mods.split(): self.defs = R(ops[0])
        elif op.startswith("global_store") or op.startswith("global_atomic"):
            self.kind = "vmem"
            for o in ops: self.uses |= R(o)
            if "x4" in op or "x3" in op: self.wide_data = R(ops[1])
        elif op.startswith("buffer_"):
            self.kind = "vmem"
        elif op.startswith("v_"):
            self.kind = "valu"
            if base.startswith("v_permlane") and "swap" in base:
                self.defs = R(ops[0]) | R(ops[1]); self.uses = set(self.defs)
            elif base in ("v_nop",): pass
            else:
                self.defs = R(ops[0])
                st = 1
                if "_co_" in base or base.startswith("v_div_scale"):
                    self.defs |= R(ops[1]); st = 2
                for o in ops[st:]: self.uses |= R(o)
                if base.startswith("v_fmac") or base.startswith("v_writelane") or base.startswith("v_dot2c"): self.uses |= R(ops[0])
                if base.startswith("v_cmpx"): self.defs |= {("s", "exec")}
        elif op.startswith("s_load") or op.startswith("s_mem") or op.startswith("s_buffer_load"):
            self.kind = "smem"; self.defs = R(ops[0])
            for o in ops[1:]: self.uses |= R(o)
        elif op.startswith("s_"):
            self.kind = "salu"
            if op in ("s_waitcnt", "s_nop", "s_barrier", "s_endpgm", "s_sleep", "s_setprio") or op.startswith("s_cbranch") or op == "s_branch":
                self.kind = "ctl"
            elif op.startswith("s_cmp") or op.startswith("s_bitcmp") or op == "s_setpc_b64":
                for o in ops: self.uses |= R(o)
            else:
                self.defs = R(ops[0])
                for o in ops[1:]: self.uses |= R(o)
                if "saveexec" in op: self.defs |= {("s", "exec")}
                if op in ("s_addk_i32", "s_mulk_i32"): self.uses |= R(ops[0])
    def states(self):
        if self.kind in ("blank", "label", "directive"): return 0
        if self.op == "s_nop": return int(self.ops[0], 0) + 1
        return 1
    def __repr__(self): return self.text

def I(x): return x if isinstance(x, Ins) else Ins(x)
def flat(x):
    out = []
    if isinstance(x, (list, tuple)):
        for y in x: out += flat(y)
    elif isinstance(x, Ins): out.append(x)
    else:
        for ln in x.split("\n"):
            if ln.strip(): out.append(Ins(ln.strip()))
    return out

def interleave(main, fill):
    out = list(flat(fill.get(-1, [])))
    for i, m in enumerate(main):
        out += flat(m)
        out += flat(fill.get(i, []))
    for k in fill:
        assert -1 <= k < len(main), (k, len(main))
    return out

def spread(fill, items, lo, hi):
    n = len(items)
    for i, it in enumerate(items):
        pos = lo + (i * (hi - lo)) // n
        fill.setdefault(pos, []).append(it)

_LG = re.compile(r"lgkmcnt\((\d+)\)")
def lgkm_pass(code, state):
    st = list(state); needs = {}
    for idx, ins in enumerate(code):
        if ins.op == "s_waitcnt":
            m = _LG.search(ins.text)
            if m:
                n = int(m.group(1))
                if len(st) > n: st = st[len(st) - n:] if n else []
            continue
        touch = ins.uses | ins.defs
        last = -1
        for j, d in enumerate(st):
            if d & touch: last = j
        if ins.kind == "ds" and last >= 0 and not (st[last] & ins.uses) and not any(d & ins.uses for d in st):
            last = -1
        if last >= 0:
            n = len(st) - 1 - last
            needs[idx] = min(n, 15); st = st[last + 1:]
        if ins.kind == "ds": st.append(frozenset(ins.defs))
        assert ins.kind != "smem" or ins.op.startswith("s_mem"), "smem inside auto-wait region"
    return needs, st

def apply_waits(code, needs):
    out = []
    for idx, ins in enumerate(code):
        if idx in needs: out.append(Ins(f"s_waitcnt lgkmcnt({needs[idx]})"))
        out.append(ins)
    return out

def auto_wait(code, states_in):
    code = flat(code)
    for _ in range(4):
        merged = {}
        for st in states_in:
            needs, _o = lgkm_pass(code, st)
            for k, n in needs.items(): merged[k] = min(n, merged.get(k, 99))
        if not merged: break
        code = apply_waits(code, merged)
    outs = []
    for st in states_in:
        needs, o = lgkm_pass(code, st); assert not needs
        if o not in outs: outs.append(o)
    return code, outs

def auto_wait_loop(body, states_in):
    body = flat(body)
    code, outs = auto_wait(body, states_in)
    sts = list(states_in)
    for _ in range(4):
        new = [o for o in outs if o not in sts]
        if not new: break
        sts += new
        code, outs = auto_wait(body, sts)
    return code, outs

def need_states(p, c):
    n = 0
    vg = lambda S: {r for r in S if r[0] in "va"}
    sg = lambda S: {r for r in S if r[0] == "s"}
    if p.kind == "valu":
        pd = vg(p.defs); ps = sg(p.defs)
        if c.kind == "mfma" and pd & c.uses: n = max(n, 2)
        if c.kind == "valu":
            if c.op.startswith("v_permlane") and pd & c.uses: n = max(n, 2)
            if (c.op.startswith("v_readlane") or c.op.startswith("v_readfirstlane")) and pd & c.uses: n = max(n, 1)
            if "dpp" in c.op or "row_" in c.mods or "quad_perm" in c.mods:
                if pd & c.uses: n = max(n, 2)
            if re.sub(r"_e(32|64)$", "", p.op) in TRANS and pd & c.uses and re.sub(r"_e(32|64)$", "", c.op) not in TRANS: n = max(n, 1)
            if ps & c.uses: n = max(n, 4 if "lane" in c.op else 2)
        if c.kind in ("vmem", "dma") and ps & c.uses: n = max(n, 5)
        if ("s", "exec") in p.defs and c.kind == "mfma": n = max(n, 4)
    if p.kind == "salu" and ("s", "m0") in p.defs and c.kind == "dma": n = max(n, 1)
    if p.kind == "vmem" and p.wide_data and p.wide_data & c.defs: n = max(n, 2)
    if p.kind == "mfma":
        big = {4: 8, 8: 12}[p.passes]
        if c.kind == "mfma":
            if p.defs & c.srcab: n = max(n, big)
            if p.defs & c.srcc and not (p.defs == c.srcc and p.passes == c.passes): n = max(n, big - 2)
            if p.defs & c.defs and not (p.defs & c.srcc) and p.passes != c.passes: n = max(n, big)
        elif c.kind in ("valu", "vmem", "ds", "dma"):
            if p.defs & (c.uses | c.defs): n = max(n, big)
            if c.kind == "valu" and p.srcc & c.defs: n = max(n, p.passes - 1)
    return n

def check_hazards(code):
    code = [c for c in code]
    labels = {c.label: i for i, c in enumerate(code) if c.label}
    errs = []
    def succ(i):
        c = code[i]
        if c.op == "s_endpgm" or c.op == "s_setpc_b64": return []
        if c.op == "s_branch": return [labels[c.ops[0]]]
        if c.op.startswith("s_cbranch"): return [i + 1, labels[c.ops[0]]]
        return [i + 1] if i + 1 < len(code) else []
    for i, p in enumerate(code):
        if p.kind not in ("valu", "salu", "vmem", "mfma"): continue
        stack = [(j, 0) for j in succ(i)]; seen = {}
        while stack:
            j, d = stack.pop()
            if d >= 12 or seen.get(j, 99) <= d: continue
            seen[j] = d
            c = code[j]
            if c.kind not in ("blank", "label", "directive"):
                n = need_states(p, c)
                if n > d: errs.append((i, j, n, d, p.text, c.text))
            for k in succ(j): stack.append((k, d + c.states()))
    return errs

def text(code):
    out = []
    for c in code:
        out.append(c.text if c.kind in ("label", "directive") else "  " + c.text)
    return "\n".join(out) + "\n"

class VmWait(Ins):
    __slots__ = ("need", "lg0")
    def __init__(self, need, lg0=True):
        Ins.__init__(self, "s_waitcnt vmcnt(0)" + (" lgkmcnt(0)" if lg0 else ""))
        self.need = set(need); self.lg0 = lg0
class Tagged(Ins):
    __slots__ = ("tag",)
    def __init__(self, text, tag):
        Ins.__init__(self, text); self.tag = tag
def tag(items, t):
    out = []
    for x in flat(items):
        out.append(Tagged(x.text, t) if x.kind in ("vmem", "dma") else x)
    return out
def vm_pass(code, state):
    st = list(state); out = []
    for ins in code:
        if isinstance(ins, VmWait):
            last = -1
            for j, t in enumerate(st):
                if t in ins.need: last = j
            n = min(63, len(st) - 1 - last)
            st = st[len(st) - n:] if n else []
            out.append(Ins(f"s_waitcnt vmcnt({n})" + (" lgkmcnt(0)" if ins.lg0 else "")))
            continue
        if ins.kind in ("vmem", "dma"):
            t = getattr(ins, "tag", None)
            if t != "uncounted": st.append(t)
        out.append(ins)
    return out, st

def cost(ins):
    ins = I(ins)
    if ins.kind in ("label", "blank", "directive"): return 0
    if ins.op in TRANS: return 8
    if ins.kind in ("dma", "vmem"): return 8
    return 4

def place(n, pinned, stream, last, first=0):
    stream = flat(stream)
    base = [sum(cost(x) for x in flat(pinned.get(i, []))) for i in range(n)]
    fill = {}; k = 0; cap = 0
    for gp in range(first, last + 1):
        rem = sum(cost(x) for x in stream[k:]) + sum(base[gp:last + 1])
        level = rem / (last + 1 - gp)
        used = base[gp]
        while k < len(stream) and (used + cost(stream[k]) / 2 <= level or gp == last):
            fill.setdefault(gp, []).append(stream[k]); used += cost(stream[k]); k += 1
        cap = max(cap, used)
    out = {}
    for i in set(list(pinned) + list(fill)):
        out[i] = flat(pinned.get(i, [])) + flat(fill.get(i, []))
    return out, cap
```

```python
import sys, struct, math
from asmlib import *

NAME = "gated_mix__compressed_kv_cla__glu_gated_glu__prompt"
def f2u(x): return struct.unpack("<I", struct.pack("<f", x))[0]
QSCALE = math.log2(math.e) / math.sqrt(128.0)
LOG2E = math.log2(math.e)

WS_K = 0
WS_V = 16 << 20
WS_A = 32 << 20
WS_X = 56 << 20
WS_F = 64 << 20
WS_G = WS_F + 65536
WS_T = 65 << 20
WS_BYTES = 72 << 20
NSL = 184

P_X, P_C, P_WQ, P_WUK, P_WUV, P_WO, P_BX, P_WG, P_WU, P_WD, P_GW, P_OUT, P_DBG, P_WS = range(4, 32, 2)
S_H, S_P, S_W, S_T0 = 32, 33, 34, 35
SRD_A, SRD_W0, SRD_W1, SRD_WS, SRD_DBG, SRD_K, SRD_V = 36, 40, 44, 48, 52, 56, 60
S_ACTA, S_ACTB, S_W0, S_W1, S_WL, S_CNT, S_SL = 64, 65, 66, 67, 69, 70, 71
S_STK = 68
S_T1, S_T2, S_T3, S_T4 = 72, 73, 74, 75
S_RH, S_CH = 76, 77
S_TRIP, S_TLO, S_THI, S_RING, S_KOFF, S_DLO, S_DHI, S_THR = 78, 79, 80, 81, 82, 83, 84, 85
S_RET = 86
S_LAST, S_THRB = 88, 89
S_M0, S_M1 = 90, 92
S_STAMP = 94
S_GLU, S_STV = 98, 99
S_XO = 3
S_M2 = 16

MF16 = "v_mfma_f32_16x16x32_bf16"
MF32 = "v_mfma_f32_32x32x16_bf16"

class Opt:
    stamps = False
    pfcode = 1
    pf4 = 1
    nt1 = 1
    nt2 = 0
    ntt = 0
    pf2 = 1
    st0 = 0
    st1 = 22
    align = 0
opt = Opt()
outofline = []

def srd(d, ptr, nbytes):
    return [f"s_mov_b32 s{d}, s{ptr}", f"s_mov_b32 s{d+1}, s{ptr+1}", f"s_mov_b32 s{d+2}, {nbytes}", f"s_mov_b32 s{d+3}, 0x20000"]

nstamp = [0]
def stamp(vt=0):
    if not opt.stamps: return []
    n = nstamp[0]; nstamp[0] += 1
    head = [f"s_memtime s[{S_STAMP}:{S_STAMP+1}]", f"s_memrealtime s[{S_STAMP+2}:{S_STAMP+3}]", "s_waitcnt lgkmcnt(0)",
            f"v_mov_b32 v{vt}, s{S_STAMP}", f"v_mov_b32 v{vt+1}, s{S_STAMP+2}"]
    if n == 0: head = [f"v_mov_b32 v{vt}, s100", f"v_mov_b32 v{vt+1}, s100"]
    c = head + [f"s_lshl_b32 s{S_STAMP}, s2, 2", f"s_add_u32 s{S_STAMP}, s{S_STAMP}, s{S_W}", f"s_lshl_b32 s{S_STAMP}, s{S_STAMP}, 8",
            f"s_add_u32 s{S_STAMP}, s{S_STAMP}, {WS_T + 8*n}",
            f"buffer_store_dwordx2 v[{vt}:{vt+1}], off, s[{SRD_WS}:{SRD_WS+3}], s{S_STAMP}", "s_nop 0"]
    c = tag(c, "uncounted")
    return c + (stamp(vt) if n == 0 else [])

def lane_to(r):
    return [f"v_mbcnt_lo_u32_b32 v{r}, -1, 0", f"v_mbcnt_hi_u32_b32 v{r}, -1, v{r}"]

def spin(label, vaddr, srd_, soff, expect_v, vt, ret):
    outofline.extend(flat([f"{label}:", f"s_mov_b32 s{S_T4}, 0", f"{label}_l:",
                 f"buffer_load_dword v{vt}, v{vaddr}, {s(srd_,4)}, {soff} offen sc1", "s_waitcnt vmcnt(0)",
                 f"v_cmp_lt_u32 vcc, v{vt}, v{expect_v}", f"s_add_u32 s{S_T4}, s{S_T4}, 1", f"s_cbranch_vccz {ret}",
                 f"s_cmp_lt_u32 s{S_T4}, 100000", f"s_cbranch_scc1 {label}_l", f"s_branch {ret}"]))

def signal(idx, label, vt):
    c = [f"s_cmp_lg_u32 s{S_W}, 0", f"s_cbranch_scc1 {label}"] + idx
    c += [f"v_mov_b32 v{vt}, 1", "s_mov_b64 exec, 1", f"buffer_atomic_add v{vt}, off, {s(SRD_DBG,4)}, s{S_T0} sc1", "s_mov_b64 exec, -1", f"{label}:"]
    return tag(c, "uncounted")

V_RA = 2
V_RW = 6
V_RG = 14
V_DA = 18
V_DW = 22
V_DG = 26
V_STK, V_STV = 30, 31
F_I = 32
F_J = 64
V_PK = 128

def acc(i, j): return (i*8 + j)*4
def fi(ip, ii, kh): return F_I + (ip & 1)*16 + (ii*2 + kh)*4
def fj(j, kh): return F_J + (j*2 + kh)*4

def rd_j(j, par):
    return [f"ds_read_b128 {v(fj(j, kh), 4)}, {v(V_RA + par*2 + kh)} offset:{(1 + (j >> 2))*16384 + (j & 3)*2048}" for kh in range(2)]
def rd_i(ip, par, gu):
    c = []
    for ii in range(2):
        for kh in range(2):
            for r in range(2):
                d = fi(ip, ii, kh) + 2*r
                if gu and ip >= 2:
                    c.append(f"ds_read_b64_tr_b16 {v(d, 2)}, {v(V_RG + par*2 + (ip & 1))} offset:{3*16384 + ii*8192 + kh*4096 + r*512}")
                else:
                    c.append(f"ds_read_b64_tr_b16 {v(d, 2)}, {v(V_RW + par*4 + (ip & 1)*2 + ii)} offset:{3*(ip >> 1)*16384 + kh*8192 + r*1024}")
    return c
def dma_piece(which, st, gu=False):
    par = st & 1
    vo, sr, so = {0: (V_DW, SRD_W0, S_W0), 1: (V_DA, SRD_A, S_ACTA), 2: (V_DA, SRD_A, S_ACTB), 3: (V_DG if gu else V_DW, SRD_W1, S_W1)}[which]
    g = [f"s_add_u32 m0, s{S_WL}, {par*65536 + which*16384}"]
    nt = "nt " if (which in (0, 3) and (opt.nt1 if st < 8 else opt.nt2)) else ""
    g += [f"buffer_load_dwordx4 {v(vo+d)}, {s(sr,4)}, s{so} offen offset:{d*1024} {nt}lds" for d in range(4)]
    inc = {0: 64*8192, 1: 128, 2: 128, 3: 64*3584 if gu else 64*8192}[which]
    g += [f"s_add_u32 s{so}, s{so}, {inc}"]
    return tag(g, (which, st))

def quad_mfma(ip, swap, zero):
    m = []
    for j in range(8):
        for ii in range(2):
            for kh in range(2):
                d = a_(acc(2*ip + ii, j), 4)
                w = v(fi(ip, ii, kh), 4); x = v(fj(j, kh), 4)
                A, B = (x, w) if swap else (w, x)
                m.append(f"{MF16} {d}, {A}, {B}, {'0' if (zero and kh == 0) else d}")
    return m

def gemm_step(st, glu=True, streams=None, pre=None, vm_need=None, post=None, altmf=None):
    par = st & 1
    p2 = st >= 8
    streams = streams or {}; pre = pre or {}; vm_need = vm_need or {}; post = post or {}; altmf = altmf or {}
    c = []
    for q in range(4):
        pin = {}
        add = lambda p, x: pin.setdefault(p, []).append(x)
        mf = quad_mfma(q, (not p2) and q >= 2, st in (0, 8))
        skip = (not glu) and p2 and q >= 2
        if q < 3:
            rds = rd_i(q + 1, par, p2) if (glu or not p2 or q == 0) else []
            for k, x in enumerate(rds): add(2*k, x)
            if q == 0: add(15, "s_waitcnt lgkmcnt(8)")
            if q == 1: add(29, "s_waitcnt lgkmcnt(0)")
        elif st < 15:
            for k, x in enumerate(rd_i(0, 1 - par, False)): add([0, 1, 2, 5, 6, 9, 10, 13][k], x)
            for j in range(8):
                a, b = rd_j(j, 1 - par)
                add(4*j + 3, a); add(min(4*j + 4, 31), b)
            add(31, "s_waitcnt lgkmcnt(8)")
        w, ds_ = [(3, st + 1), (1, st + 2), (2, st + 2), (0, st + 2)][q]
        if ds_ <= 15:
            g = dma_piece(w, ds_, gu=(ds_ >= 8))
            pos = [1, 5, 9, 13, 17, 19] if q < 3 else [14, 17, 21, 25, 29, 30]
            for x, p in zip(g, pos): add(p, x)
        fill, cap = place(32, pin, streams.get(q, []), 31)
        c += flat(pre.get(q, []))
        if skip:
            c += flat(altmf.get(q, []))
            for p in sorted(fill):
                for x in fill[p]:
                    c.append(x)
                    if x.op.startswith("s_add_u32") and ("s", "m0") in x.defs: c.append(Ins("s_nop 0"))
        else:
            c += interleave(mf, fill)
        if q == 0: c += [VmWait([(3, st)] + vm_need.get(q, [])), Ins("s_barrier")]
        if q == 2: c += [VmWait([(0, st + 1), (1, st + 1), (2, st + 1)] + vm_need.get(q, [])), Ins("s_barrier")]
        c += flat(post.get(q, []))
    return c

def setup():
    c = []
    c += ["s_cmp_ge_u32 s2, 256", "s_cbranch_scc1 L_end"]
    if opt.stamps: c += ["s_memrealtime s[100:101]"]
    c += ["s_load_dwordx16 s[4:19], s[0:1], 0", "s_load_dwordx8 s[20:27], s[0:1], 64", "s_load_dwordx4 s[28:31], s[0:1], 96"]
    L, G, L16, T = 128, 129, 130, 132
    c += [f"v_lshrrev_b32 v{T}, 6, v0", f"v_and_b32 v{L}, 63, v0", f"v_readfirstlane_b32 s{S_W}, v{T}"]
    c += [f"s_and_b32 s{S_T0}, s2, 7", f"s_lshl_b32 s{S_T0}, s{S_T0}, 2", f"s_lshr_b32 s{S_H}, s2, 3", f"s_and_b32 s{S_H}, s{S_H}, 3",
          f"s_add_u32 s{S_H}, s{S_H}, s{S_T0}", f"s_lshr_b32 s{S_P}, s2, 5"]
    c += [f"s_and_b32 s{S_W}, s{S_W}, 3", f"s_and_b32 s{S_RH}, s{S_W}, 1", f"s_lshr_b32 s{S_CH}, s{S_W}, 1", f"s_lshl_b32 s{S_WL}, s{S_W}, 12"]
    c += [f"v_lshrrev_b32 v{G}, 4, v{L}", f"v_and_b32 v{L16}, 15, v{L}"]
    c += [f"v_lshlrev_b32 v{T}, 13, v{G}", f"v_lshlrev_b32 v{T+1}, 1, v{G}", f"v_xor_b32 v{T+1}, v{T+1}, v{L16}", f"v_xor_b32 v{T+2}, 8, v{T+1}",
          f"v_lshl_add_u32 v{V_DW}, v{T+1}, 4, v{T}", f"v_lshl_add_u32 v{T+2}, v{T+2}, 4, v{T}", f"v_add_u32 v{V_DW+1}, {4*8192 - 1024}, v{V_DW}",
          f"v_add_u32 v{V_DW+2}, {8*8192 - 2048}, v{T+2}", f"v_add_u32 v{V_DW+3}, {12*8192 - 3072}, v{T+2}"]
    c += [f"v_lshrrev_b32 v{T}, 3, v{L}", f"v_lshlrev_b32 v{T}, 10, v{T}", f"v_and_b32 v{T+1}, 7, v{L}", f"v_xor_b32 v{T+1}, v{T+1}, v{G}", f"v_xor_b32 v{T+2}, 4, v{T+1}",
          f"v_lshl_add_u32 v{V_DA}, v{T+1}, 4, v{T}", f"v_lshl_add_u32 v{T+2}, v{T+2}, 4, v{T}", f"v_add_u32 v{V_DA+1}, {8192 - 1024}, v{T+2}",
          f"v_add_u32 v{V_DA+2}, {2*(8192 - 1024)}, v{V_DA}", f"v_add_u32 v{V_DA+3}, {3*(8192 - 1024)}, v{T+2}"]
    c += [f"s_lshl_b32 s{S_ACTA}, s{S_P}, 18", f"s_lshl_b32 s{S_T0}, s{S_CH}, 17", f"s_add_u32 s{S_ACTA}, s{S_ACTA}, s{S_T0}",
          f"s_lshl_b32 s{S_T0}, s{S_RH}, 15", f"s_add_u32 s{S_ACTA}, s{S_ACTA}, s{S_T0}", f"s_add_u32 s{S_ACTB}, s{S_ACTA}, {64*1024}"]
    c += [f"s_lshl_b32 s{S_W0}, s{S_W}, 17", f"s_lshl_b32 s{S_T0}, s{S_H}, 8", f"s_add_u32 s{S_W0}, s{S_W0}, s{S_T0}", f"s_mov_b32 s{S_W1}, s{S_W0}"]
    c += ["s_waitcnt lgkmcnt(0)"]
    c += srd(SRD_W0, P_WUK, 512*8192) + srd(SRD_A, P_C, 2048*1024) + srd(SRD_W1, P_WUV, 512*8192)
    def piece(w, st):
        g = dma_piece(w, st); return [g[0], "s_nop 0"] + g[1:]
    for which in range(4): c += piece(which, 0)
    c += srd(SRD_WS, P_WS, WS_BYTES) + srd(SRD_DBG, P_DBG, 256)
    c += [f"v_lshrrev_b32 v{T}, 1, v{L16}", f"v_xor_b32 v{T}, v{T}, v{G}", f"v_lshlrev_b32 v{T}, 4, v{T}", f"v_lshl_add_u32 v{T}, v{L16}, 7, v{T}",
          f"s_lshl_b32 s{S_T0}, s{S_RH}, 13", f"v_add_u32 v{V_RA}, s{S_T0}, v{T}", f"v_xor_b32 v{V_RA+1}, 64, v{V_RA}",
          f"v_add_u32 v{V_RA+2}, 0x10000, v{V_RA}", f"v_add_u32 v{V_RA+3}, 0x10000, v{V_RA+1}"]
    c += [f"v_lshrrev_b32 v{T}, 2, v{L16}", f"v_and_b32 v{T+1}, 3, v{L16}", f"v_lshl_add_u32 v{T+2}, v{G}, 3, v{T}",
          f"v_and_b32 v{T+3}, 1, v{G}", f"v_lshl_add_u32 v{T+4}, v{T+3}, 2, v{T}",
          f"v_lshlrev_b32 v{T+5}, 8, v{T+2}", f"v_lshl_add_u32 v{T+5}, v{T+1}, 3, v{T+5}",
          f"s_lshl_b32 s{S_T0}, s{S_CH}, 2", f"v_xor_b32 v{T+4}, s{S_T0}, v{T+4}"]
    for i in range(4):
        c += [f"v_xor_b32 v{T+6}, {i}, v{T+4}", f"v_lshl_add_u32 v{V_RW+i}, v{T+6}, 5, v{T+5}", f"v_add_u32 v{V_RW+4+i}, 0x10000, v{V_RW+i}"]
    c += [f"v_lshrrev_b32 v{T+4}, 1, v{T}", f"v_lshl_add_u32 v{T+4}, v{T+3}, 1, v{T+4}",
          f"v_lshlrev_b32 v{T+5}, 7, v{T+2}", f"v_lshl_add_u32 v{T+5}, v{T+1}, 3, v{T+5}",
          f"s_lshl_b32 s{S_T0}, s{S_CH}, 1", f"v_xor_b32 v{T+4}, s{S_T0}, v{T+4}"]
    for fb in range(2):
        c += [f"v_xor_b32 v{T+6}, {fb}, v{T+4}", f"v_lshl_add_u32 v{V_RG+fb}, v{T+6}, 5, v{T+5}", f"v_add_u32 v{V_RG+2+fb}, 0x10000, v{V_RG+fb}"]
    c += [f"v_lshrrev_b32 v{T}, 3, v{L}", f"v_mul_u32_u24 v{T}, 3584, v{T}", f"v_and_b32 v{T+1}, 7, v{L}", f"v_lshlrev_b32 v{T+2}, 1, v{T+3}",
          f"v_xor_b32 v{T+1}, v{T+1}, v{T+2}"]
    for d in range(4):
        c += [f"v_xor_b32 v{T+2}, {4*(d & 1)}, v{T+1}", f"v_lshl_add_u32 v{V_DG+d}, v{T+2}, 4, v{T}"]
        if d: c += [f"v_add_u32 v{V_DG+d}, {d*8*3584 - d*1024}, v{V_DG+d}"]
    c += [f"v_lshrrev_b32 v{T}, 1, v{G}", f"v_lshlrev_b32 v{T+1}, 10, v{T+3}", f"v_lshl_add_u32 v{T+1}, v{T}, 9, v{T+1}",
          f"v_lshrrev_b32 v{T+2}, 3, v{L16}", f"v_lshl_add_u32 v{T+1}, v{T+2}, 8, v{T+1}", f"v_and_b32 v{T+2}, 7, v{L}", f"v_lshl_add_u32 v{V_STK}, v{T+2}, 4, v{T+1}"]
    c += [f"v_lshlrev_b32 v{T+1}, 10, v{T}", f"v_lshl_add_u32 v{T+1}, v{T+3}, 9, v{T+1}", f"v_lshl_add_u32 v{V_STV}, v{L16}, 4, v{T+1}"]
    c += [f"s_lshl_b32 s{S_T0}, s{S_H}, 19", f"s_lshl_b32 s{S_T1}, s{S_P}, 16", f"s_add_u32 s{S_T0}, s{S_T0}, s{S_T1}", f"s_lshl_b32 s{S_T1}, s{S_RH}, 15",
          f"s_add_u32 s{S_T0}, s{S_T0}, s{S_T1}", f"s_lshl_b32 s{S_T1}, s{S_CH}, 12", f"s_add_u32 s{S_STK}, s{S_T0}, s{S_T1}", f"s_add_u32 s{S_STV}, s{S_STK}, {WS_V}"]
    c += [f"s_lshr_b32 s{S_T0}, s{S_H}, 3", f"s_mul_i32 s{S_SL}, s{S_T0}, 7", f"s_lshr_b32 s{S_T0}, s{S_H}, 2", f"s_and_b32 s{S_T0}, s{S_T0}, 1",
          f"s_and_b32 s{S_T1}, s{S_H}, 3", f"s_lshl_b32 s{S_T2}, s{S_T0}, 2", f"s_add_u32 s{S_T2}, s{S_T2}, s{S_T1}",
          f"s_lshr_b32 s{S_T3}, s{S_P}, 2", f"s_cmp_eq_u32 s{S_T3}, s{S_T0}", f"s_cselect_b32 s{S_GLU}, 1, 0",
          f"s_cmp_eq_u32 s{S_T1}, 3", f"s_cselect_b32 s{S_T2}, 3, s{S_T2}", f"s_cselect_b32 s{S_GLU}, s{S_GLU}, 1", f"s_add_u32 s{S_SL}, s{S_SL}, s{S_T2}"]
    c += [f"s_and_b32 s{S_T0}, s{S_H}, 7", f"s_lshl_b32 s{S_T1}, s{S_P}, 3", f"s_add_u32 s{S_T0}, s{S_T0}, s{S_T1}", f"s_lshl_b32 s{S_T0}, s{S_T0}, 17",
          f"s_lshl_b32 s{S_T1}, s{S_W}, 11", f"s_add_u32 s{S_T0}, s{S_T0}, s{S_T1}", f"s_add_u32 s{S_XO}, s{S_T0}, {WS_X}"]
    c += piece(1, 1) + piece(2, 1)
    if opt.pfcode:
        c += tag(["s_getpc_b64 s[88:89]", f"s_lshr_b32 s{S_T0}, s2, 3", f"s_mul_i32 s{S_T0}, s{S_T0}, {opt.pfcode*128}", f"v_min_u32 v{T+10}, {opt.pfcode - 1}, v{L}",
                  f"v_lshl_add_u32 v{T+10}, v{T+10}, 7, s{S_T0}", f"global_load_dword v{T+11}, v{T+10}, s[88:89]"], "pf")
    return flat(c)

def sw_act_w0():
    c = srd(SRD_A, P_X, 2048*1024) + srd(SRD_W0, P_WQ, 512*8192)
    c += [f"s_sub_u32 s{S_T0}, 15, s{S_P}", f"s_cmp_eq_u32 s{S_CH}, 0", f"s_cselect_b32 s{S_T0}, s{S_P}, s{S_T0}", f"s_lshl_b32 s{S_ACTA}, s{S_T0}, 17",
          f"s_lshl_b32 s{S_T0}, s{S_RH}, 15", f"s_add_u32 s{S_ACTA}, s{S_ACTA}, s{S_T0}", f"s_add_u32 s{S_ACTB}, s{S_ACTA}, {64*1024}"]
    c += [f"s_lshl_b32 s{S_W0}, s{S_W}, 17", f"s_lshl_b32 s{S_T0}, s{S_H}, 8", f"s_add_u32 s{S_W0}, s{S_W0}, s{S_T0}"]
    return c
def sw_w1():
    c = [f"s_cmp_eq_u32 s{S_CH}, 0", f"s_cselect_b32 s{SRD_W1}, s{P_WG}, s{P_WU}", f"s_cselect_b32 s{SRD_W1+1}, s{P_WG+1}, s{P_WU+1}",
         f"s_mul_i32 s{SRD_W1+2}, s{S_GLU}, {512*3584}"]
    c += [f"s_mul_i32 s{S_W1}, s{S_RH}, {32*3584}", f"s_lshl_b32 s{S_T0}, s{S_SL}, 7", f"s_add_u32 s{S_W1}, s{S_W1}, s{S_T0}"]
    return c

def kv_chunks():
    out = {0: [], 1: [], 2: [], 3: []}
    n = 0
    for e in range(2):
        for j in range(8):
            srcs = [acc(2*e, j) + b for b in range(4)] + [acc(2*e+1, j) + b for b in range(4)]
            out[e].append((n, srcs, ("K", j >> 1, (j & 1)*128 + e*2048))); n += 1
    for ib in range(4):
        for uu in range(4):
            srcs = [acc(4+ib, 2*uu) + b for b in range(4)] + [acc(4+ib, 2*uu+1) + b for b in range(4)]
            out[2 + (ib >> 1)].append((n, srcs, ("V", uu, (ib & 1)*256 + (ib >> 1)*2048))); n += 1
    for ip in (2, 3): out[ip].sort(key=lambda x: x[2][1])
    return out
def conv_stream(ip):
    c = []
    for n, srcs, _ in kv_chunks()[ip]:
        for k in range(0, 4, 2):
            P = V_PK + 4*n + k
            c += [f"v_accvgpr_read_b32 v{P}, a{srcs[2*k]}", f"v_accvgpr_read_b32 v0, a{srcs[2*k+1]}",
                  f"v_accvgpr_read_b32 v{P+1}, a{srcs[2*k+2]}", f"v_accvgpr_read_b32 v1, a{srcs[2*k+3]}",
                  f"v_cvt_pk_bf16_f32 v{P}, v{P}, v0", f"v_cvt_pk_bf16_f32 v{P+1}, v{P+1}, v1"]
    return c
def kv_stores():
    ch = kv_chunks()
    out = []
    for kind, ips, vo, so in (("K", (0, 1), V_STK, S_STK), ("V", (2, 3), V_STV, S_STV)):
        for uu in range(4):
            grp = [x for ip in ips for x in ch[ip] if x[2][1] == uu]
            for k, (n, _, (_k, _u, off)) in enumerate(grp):
                g = [f"buffer_store_dwordx4 {v(V_PK + 4*n, 4)}, v{vo}, {s(SRD_WS,4)}, s{so} offen offset:{off} sc1"]
                if k == 3 and uu < 3: g += [f"s_add_u32 s{so}, s{so}, 8192"]
                out.append(tag(g, "kv"))
    return out
def init_stores():
    c = lane_to(132) + ["v_lshlrev_b32 v132, 4, v132"] + [f"v_mov_b32 v{128+k}, -1" for k in range(4)] + ["v_mov_b32 v133, 0"]
    c += [f"s_lshr_b32 s{S_T1}, s{S_H}, 3"]
    for q in range(1, 4):
        c += [f"s_xor_b32 s{S_T0}, s{S_T1}, {q}", f"s_lshl_b32 s{S_T0}, s{S_T0}, 15", f"s_add_u32 s{S_T0}, s{S_T0}, s{S_XO}", f"s_add_u32 s{S_T0}, s{S_T0}, {q*8192}"]
        c += [f"buffer_store_dwordx4 v[128:131], v132, {s(SRD_WS,4)}, s{S_T0} offen offset:{k*1024} sc1" for k in range(2)]
    c += [f"s_lshl_b32 s{S_T2}, s{S_P}, 5", f"s_add_u32 s{S_T2}, s{S_T2}, s{S_H}", f"s_lshl_b32 s{S_T2}, s{S_T2}, 2", f"s_add_u32 s{S_T2}, s{S_T2}, {WS_F}",
          f"buffer_store_dword v133, off, {s(SRD_WS,4)}, s{S_T2} sc1"]
    return tag(c, "init")

def touch(k):
    nt = "nt" if opt.ntt else ""
    T = 128
    st = lane_to(T)
    if k == 0:
        pre = srd(SRD_K, P_X, 2048*1024); n = 16; nt = ""
        st += [f"v_lshlrev_b32 v{T+1}, 7, v{T}", f"s_lshl_b32 s{S_T0}, s2, 2", f"s_add_u32 s{S_T0}, s{S_T0}, s{S_W}", f"s_lshl_b32 s{S_T0}, s{S_T0}, 11"]
    elif k == 1:
        pre = srd(SRD_K, P_WQ, 512*8192); n = 32
        st += [f"v_lshrrev_b32 v{T+1}, 1, v{T}", f"v_lshlrev_b32 v{T+1}, 13, v{T+1}", f"v_and_b32 v{T+2}, 1, v{T}", f"v_lshl_add_u32 v{T+1}, v{T+2}, 7, v{T+1}",
               f"s_lshl_b32 s{S_T0}, s{S_P}, 2", f"s_add_u32 s{S_T0}, s{S_T0}, s{S_W}", f"s_lshl_b32 s{S_T0}, s{S_T0}, 17", f"s_lshl_b32 s{S_T1}, s{S_H}, 8", f"s_add_u32 s{S_T0}, s{S_T0}, s{S_T1}"]
    else:
        pre = [f"s_cmp_eq_u32 s{S_CH}, 0", f"s_cselect_b32 s{SRD_K}, s{P_WG}, s{P_WU}", f"s_cselect_b32 s{SRD_K+1}, s{P_WG+1}, s{P_WU+1}", f"s_mov_b32 s{SRD_K+2}, {512*3584}"]; n = 32
        st += [f"v_mul_u32_u24 v{T+1}, 3584, v{T}", f"s_lshl_b32 s{S_T0}, s{S_P}, 1", f"s_add_u32 s{S_T0}, s{S_T0}, s{S_RH}", f"s_mul_i32 s{S_T0}, s{S_T0}, {32*3584}",
               f"s_lshl_b32 s{S_T1}, s{S_SL}, 7", f"s_add_u32 s{S_T0}, s{S_T0}, s{S_T1}"]
    sh = {16: 4, 32: 5}[n]
    st += [f"v_lshrrev_b32 v{T+2}, {sh}, v{T}", f"v_lshl_add_u32 v{T+1}, v{T+2}, 28, v{T+1}"]
    st = flat(st) + tag([f"buffer_load_dword v{T+3}, v{T+1}, {s(SRD_K,4)}, s{S_T0} offen {nt}"], "pf")
    return pre, st

def p1(vm):
    c = [VmWait([(0, 0), (1, 0), (2, 0)]), Ins("s_barrier")]
    g = dma_piece(0, 1)
    rds = rd_i(0, 0, False)
    for j in range(8): rds += rd_j(j, 0)
    c += flat(rds[:12] + [g[0]] + rds[12:14] + g[1:] + rds[14:] + ["s_waitcnt lgkmcnt(8)"])
    for st in range(6):
        pre = {}; streams = {}
        if opt.pf2 and st in (1, 2, 3):
            a, b = touch(st - 1); pre[1] = a; streams[1] = b
        c += gemm_step(st, pre=pre, streams=streams)
    cv = conv_stream(0) + conv_stream(1)
    c += gemm_step(6, pre={1: sw_act_w0()})
    c += gemm_step(7, pre={0: sw_w1()}, streams={1: cv[:66], 2: cv[66:138], 3: cv[138:192]})
    c, lgo = auto_wait(c, [[]])
    c, vm = vm_pass(c, vm)
    return c, vm, lgo
```

```python
from g1 import *

A_Q = (0, 32); A_KF = 64; A_VF = 96; A_O = (128, 192)
def VS(g, b): return 64 + g*32 + b*16
def VN(g): return 128 + g*16
def VP(g, b): return 160 + g*16 + b*8
V_X = 192
V_L = (208, 209); V_SUM = (210, 211); V_CK = 212
V3_RD, V3_DM, V3_THR, V3_NINF, V3_ST, V_QW, V_LANE = 213, 214, 215, 216, 217, 218, 219
V3_T = 220
V_PA, V_PE, V_PV = 250, 251, 252
S_FLO, S_FHI = S_STK, S_STV

def dma4(srd_, so, t):
    return tag([f"buffer_load_dwordx4 v{V3_DM}, {s(srd_,4)}, s{so} offen offset:{d*1024} sc1 lds" for d in range(4)], t)
def stage_dma(t=None):
    g = flat([f"s_add_u32 m0, s{S_RING}, 16384"]) + dma4(SRD_V, S_KOFF, t)
    g2 = flat([f"s_add_u32 s{S_KOFF}, s{S_KOFF}, 16384", f"s_mov_b32 m0, s{S_RING}", f"s_add_u32 s{S_RING}, s{S_RING}, 32768"]) + dma4(SRD_K, S_KOFF, t) + flat([f"s_and_b32 s{S_RING}, s{S_RING}, 0x1ffff"])
    return g, g2

def p3_setup():
    L = V_LANE; t = V3_T
    pre = [f"s_lshl_b32 s{S_T0}, s{S_H}, 19", f"s_add_u32 s{SRD_K}, s{P_WS}, s{S_T0}", f"s_addc_u32 s{SRD_K+1}, s{P_WS+1}, 0",
           f"s_add_u32 s{SRD_V}, s{SRD_K}, {WS_V}", f"s_addc_u32 s{SRD_V+1}, s{SRD_K+1}, 0"]
    c = [f"s_sub_u32 s{S_T0}, 16, s{S_P}", f"s_lshl_b32 s{SRD_K+2}, s{S_T0}, 15", f"s_mov_b32 s{SRD_V+2}, s{SRD_K+2}",
         f"s_mov_b32 s{SRD_K+3}, 0x20000", f"s_mov_b32 s{SRD_V+3}, 0x20000"]
    c += lane_to(L)
    c += [f"v_mov_b32 v{V_PA}, 0", f"v_mov_b32 v{V_PE}, 8", f"s_lshl_b32 s{S_T3}, s{S_H}, 2"]
    c += tag([f"buffer_load_dword v{V_PV}, v{V_PA}, {s(SRD_DBG,4)}, s{S_T3} offen sc1"], "poll")
    c += [f"v_lshl_add_u32 v{V3_DM}, v{L}, 4, s{S_WL}", f"s_mov_b32 s{S_KOFF}, 0", f"s_mov_b32 s{S_RING}, s{S_WL}"]
    c += [f"s_lshl_b32 s{S_T0}, s{S_P}, 1", f"s_add_u32 s{S_TLO}, s{S_T0}, s{S_CH}", f"s_sub_u32 s{S_THI}, 31, s{S_TLO}",
          f"s_lshl_b32 s{S_T0}, s{S_P}, 2", f"s_add_u32 s{S_DLO}, s{S_T0}, s{S_W}", f"s_sub_u32 s{S_DHI}, 63, s{S_DLO}", f"s_mov_b32 s{S_THR}, {f2u(2.0**30):#x}",
          f"s_mul_i32 s{S_FLO}, s{S_RH}, -32", f"s_sub_u32 s{S_FHI}, -32, s{S_FLO}"]
    c += [f"v_lshlrev_b32 v{V3_RD}, 4, v{L}", f"v_and_b32 v{t}, 31, v{L}", f"v_lshrrev_b32 v{t+1}, 5, v{L}", f"v_lshlrev_b32 v{t+2}, 2, v{t+1}", f"v_sub_u32 v{V3_THR}, v{t}, v{t+2}",
          f"v_mov_b32 v{V3_NINF}, 0xff800000", f"v_and_b32 v{t+3}, 15, v{L}",
          f"v_lshrrev_b32 v{t}, 4, v{t}", f"v_lshlrev_b32 v{t}, 10, v{t}", f"v_lshl_add_u32 v{t+2}, v{t+1}, 8, v{t}", f"v_lshl_add_u32 v{V3_ST}, v{t+3}, 4, v{t+2}"]
    c += [f"v_lshl_add_u32 v{t}, v{t+1}, 9, v{t}", f"v_lshl_add_u32 v{t}, v{t+3}, 4, v{t}",
          f"s_lshl_b32 s{S_T0}, s{S_RH}, 15", f"s_lshl_b32 s{S_T1}, s{S_CH}, 12", f"s_add_u32 s{S_T0}, s{S_T0}, s{S_T1}", f"s_add_u32 s{S_T0}, s{S_T0}, 0x10000",
          f"v_add_u32 v{V_QW}, s{S_T0}, v{t}", f"s_mov_b32 s{S_T2}, {f2u(QSCALE):#x}"]
    return pre, c

def first_dmas():
    c = flat([f"s_add_u32 m0, s{S_WL}, 0x20000", "s_nop 0"]) + dma4(SRD_K, S_KOFF, "k0")
    for n in range(2):
        g, g2 = stage_dma(f"st{n}")
        c += [g[0], Ins("s_nop 0")] + g[1:] + g2
    return c

def q_stream(js):
    c = []
    n = 0
    for j in js:
        for e in range(2):
            t = 128 + 12*(n % 5); n += 1
            srcs = [acc(2*e, j) + b for b in range(4)] + [acc(2*e+1, j) + b for b in range(4)]
            c += [f"v_accvgpr_read_b32 v{t+4+k}, a{r}" for k, r in enumerate(srcs)]
            c += [f"v_mul_f32 v{t+4+k}, s{S_T2}, v{t+4+k}" for k in range(8)]
            c += [f"v_cvt_pk_bf16_f32 v{t+k}, v{t+4+2*k}, v{t+5+2*k}" for k in range(4)]
            c += [f"ds_write_b128 v{V_QW}, {v(t,4)} offset:{(j >> 1)*8192 + e*2048 + (j & 1)*256}"]
    return c

def blk_to(dst):
    return [f"s_sub_u32 s{dst}, 15, s{S_P}", f"s_cmp_eq_u32 s{S_RH}, 0", f"s_cselect_b32 s{dst}, s{S_P}, s{dst}"]

def h_epilogue():
    c = blk_to(S_T0) + [f"s_mul_i32 s{S_T0}, s{S_T0}, {4*NSL}", f"s_lshl_b32 s{S_T1}, s{S_SL}, 1", f"s_add_u32 s{S_T0}, s{S_T0}, s{S_T1}", f"s_add_u32 s{S_T0}, s{S_T0}, s{S_CH}",
         f"s_lshl_b32 s{S_T0}, s{S_T0}, 11", f"s_add_u32 s{S_T0}, s{S_T0}, {WS_A}", f"s_mov_b32 s{S_T1}, {f2u(-LOG2E):#x}"]
    for j in range(8):
        t = 2 + 20*(j % 3)
        t += t & 2
        gs = [acc(4, j) + b for b in range(4)] + [acc(6, j) + b for b in range(4)]
        us = [acc(5, j) + b for b in range(4)] + [acc(7, j) + b for b in range(4)]
        c += [f"v_accvgpr_read_b32 v{t+4+k}, a{r}" for k, r in enumerate(gs)]
        c += [f"v_mul_f32 v{t+4+k}, s{S_T1}, v{t+4+k}" for k in range(8)]
        for k in range(8): c += [f"v_exp_f32 v{t+4+k}, v{t+4+k}", f"v_accvgpr_read_b32 v{t+12+k}, a{us[k]}"]
        c += [f"v_add_f32 v{t+4+k}, 1.0, v{t+4+k}" for k in range(8)]
        c += [f"v_rcp_f32 v{t+4+k}, v{t+4+k}" for k in range(8)]
        c += [f"v_mul_f32 v{t+4+k}, v{t+4+k}, v{t+12+k}" for k in range(8)]
        c += [f"v_cvt_pk_bf16_f32 v{t+k}, v{t+4+2*k}, v{t+5+2*k}" for k in range(4)]
        c += [f"buffer_store_dwordx4 {v(t,4)}, v{V3_RD}, {s(SRD_WS,4)}, s{S_T0} offen offset:{(j & 1)*1024} sc1"]
        if j & 1: c += [f"s_add_u32 s{S_T0}, s{S_T0}, {NSL*2048}"]
    return flat(c)

A_GF = 160
def g_epilogue():
    c = blk_to(S_T0) + [f"s_lshl_b32 s{S_T0}, s{S_T0}, 9", f"s_add_u32 s{S_T0}, s{S_T0}, {WS_G}", f"s_mov_b32 s{S_T1}, {f2u(-LOG2E):#x}",
         f"v_and_b32 v2, 15, v{V_LANE}", "v_lshlrev_b32 v2, 2, v2"]
    c += [f"v_accvgpr_read_b32 v{4+j}, a{128+4*j}" for j in range(8)]
    c += [f"v_mul_f32 v{4+j}, s{S_T1}, v{4+j}" for j in range(8)]
    c += [f"v_exp_f32 v{4+j}, v{4+j}" for j in range(8)]
    c += [f"v_add_f32 v{4+j}, 1.0, v{4+j}" for j in range(8)]
    c += [f"v_rcp_f32 v{4+j}, v{4+j}" for j in range(8)]
    c += [f"buffer_store_dword v{4+j}, v2, {s(SRD_WS,4)}, s{S_T0} offen offset:{64*j} sc1" for j in range(8)]
    return flat(c)

def p2(glu, vm, lg):
    sfx = "g" if glu else "n"
    c = []
    sts = kv_stores()
    cv = conv_stream(2) + conv_stream(3)
    pre3, set3 = p3_setup()
    fd = first_dmas()
    if not glu:
        c += flat(["s_nop 7"] + cv + lane_to(0) + ["v_lshrrev_b32 v0, 4, v0", "v_lshlrev_b32 v0, 4, v0"] + srd(SRD_K, P_GW, 1024))
        c += tag([f"buffer_load_dwordx4 {a_(A_GF + 4*k, 4)}, v0, {s(SRD_K,4)}, 0 offen offset:{64*k}" for k in range(16)], "gate")
    k = 0
    sig_done = False
    for st in range(8, 16):
        streams = {q: [] for q in range(4)}; pre = {}; need = {}; post = {}; alt = {}
        if st == 8 and glu:
            streams = {0: cv[:66], 1: cv[66:132], 2: cv[132:], 3: []}
        for q in range(4):
            qi = (st - 8)*4 + q
            k1 = 0 if qi < opt.st0 else min(len(sts), ((qi + 1 - opt.st0)*len(sts) + (opt.st1 - opt.st0) - 1)//(opt.st1 - opt.st0))
            if q == 2 and k >= len(sts) and not sig_done:
                need[2] = ["kv"]; post[2] = signal([f"s_lshl_b32 s{S_T0}, s{S_H}, 2"], f"L_sig_kv_{sfx}", 0); sig_done = True
            streams[q] = merge_streams([flat(streams[q]), flat(sts[k:k1])]); k = k1
        if st == 14:
            ini = init_stores()
            streams[0] = ini[:14]; streams[1] = ini[14:26]; streams[2] = ini[26:]
        if not glu:
            if st == 8: need[0] = ["gate"]
            alt[2] = [f"{MF16} {a_(128+4*j,4)}, {a_(A_GF + 4*((st-8)*2+kh), 4)}, {v(fj(j,kh),4)}, {'0' if st == 8 and kh == 0 else a_(128+4*j,4)}" for j in range(8) for kh in range(2)]
        if st == 14:
            assert sig_done or not glu
            pre[3] = pre3; streams[3] = list(streams[3]) + set3
        if st == 15:
            need[0] = ["poll"]
            post[0] = [f"v_cmp_lt_u32 vcc, v{V_PV}, v{V_PE}", f"s_cbranch_vccnz L_spin_kv{sfx}", f"L_spin_kv{sfx}_r:"]
            spin(f"L_spin_kv{sfx}", V_PA, SRD_DBG, f"s{S_T3}", V_PE, V_PV, f"L_spin_kv{sfx}_r")
            qs = q_stream(range(8))
            streams[1] = fd
            streams[2] = (["s_nop 7"] if not glu else []) + qs[:63]; streams[3] = qs[63:147]
            post[3] = qs[147:]
        code = gemm_step(st, glu, streams, pre, need, post, alt)
        code, lg = auto_wait(code, lg)
        c += code
    assert sig_done
    c, vm = vm_pass(c, vm)
    c += stamp()
    c += h_epilogue() if glu else g_epilogue()
    return c

def sm_stream(g, b):
    S = VS(g, b); X = V_X + 8*g; P = VP(g, b); sm = V_SUM[g]
    e = lambda j: f"v_exp_f32 v{X + j % 8}, v{S + j}"
    c = [e(0), e(1), e(2)]
    for j in range(1, 16):
        c.append(f"v_add_f32 v{sm}, v{X}, v{X+1}" if j == 1 else f"v_add_f32 v{sm}, v{sm}, v{X + j % 8}")
        if j & 1: c.append(f"v_cvt_pk_bf16_f32 v{P + j//2}, v{X + (j-1) % 8}, v{X + j % 8}")
        if j + 2 < 16: c.append(e(j + 2))
    return c
def merge_streams(ss):
    ss = [x for x in ss if x]
    if not ss: return []
    out = []; n = max(len(x) for x in ss); pos = [0]*len(ss)
    for k in range(1, n + 1):
        for i, x in enumerate(ss):
            while pos[i] < len(x)*k//n: out.append(x[pos[i]]); pos[i] += 1
    return out

def qk_mfma(groups, b):
    m = []
    for f in range(8):
        for g in groups:
            d = v(VS(g, b), 16)
            m.append(f"{MF32} {d}, {a_(A_KF + 4*f, 4)}, {a_(A_Q[g] + 4*f, 4)}, {v(VN(g), 16) if f == 0 else d}")
    return m
def pv_mfma(groups, b):
    m = []
    for f in range(8):
        db, mm = f >> 1, f & 1
        for g in groups:
            d = a_(A_O[g] + 16*db, 16)
            m.append(f"{MF32} {d}, {a_(A_VF + 4*f, 4)}, {v(VP(g, b) + 4*mm, 4)}, {d}")
    return m
def rdk(f, uu): return f"ds_read_b128 {a_(A_KF + 4*f, 4)}, v{V3_RD} offset:{uu*8192 + f*1024}"
def rdv(f, uu): return f"ds_read_b128 {a_(A_VF + 4*f, 4)}, v{V3_RD} offset:{16384 + uu*8192 + f*1024}"

def fix_stream(g, thr):
    def kc(j):
        ap, b = j >> 2, j & 3
        return 16*(ap & 1) + 8*(ap >> 1) + b
    ms = [f"s[{S_M0}:{S_M0+1}]", f"s[{S_M1}:{S_M1+1}]", f"s[{S_M2}:{S_M2+1}]"]
    cmp_ = lambda j: f"v_cmp_gt_i32 {ms[j % 3]}, {kc(j)}, v{thr}"
    c = [cmp_(0), cmp_(1)]
    for j in range(16):
        c += [cmp_(j + 2) if j + 2 < 16 else "s_nop 0"]
        c += [f"v_cndmask_b32 v{VN(g)+j}, v{VN(g)+j}, v{V3_NINF}, {ms[j % 3]}"]
    return c
def fixcall(g, it):
    F = S_FLO if g == 0 else S_FHI
    return [f"s_add_u32 s{S_T0}, s{F}, {32*it}", f"s_call_b64 s[{S_RET}:{S_RET+1}], L_fix{g}"]

def iteration(name, it, qk, sm, pv, pend, dma=True, rd_k=True, rd_v=True, vmn=16, loop=None, inl_fix=None, extra=()):
    c = []
    mq = qk_mfma(qk, it); mp = pv_mfma(pv, it)
    mf = mq + mp
    nq, n = len(mq), len(mf)
    pin = {}
    add = lambda p, x: pin.setdefault(p, []).append(x)
    uu = 1 - it
    kstep = max(len(qk), 1); vstep = len(pv)
    if it == 1:
        barpos = 2 if nq else -1
        if rd_k or rd_v: add(0, [f"v_add_u32 v{V3_RD}, 0x8000, v{V3_RD}"]); add(1, [f"v_and_b32 v{V3_RD}, 0x1ffff, v{V3_RD}"])
        add(barpos, [f"s_waitcnt vmcnt({vmn}) lgkmcnt(0)", "s_barrier", ".pad16"])
    if rd_k:
        for f in range(8):
            p = f*kstep + kstep - 1
            if it == 1: p = max(p, 3 + (f*(nq - 3))//8)
            if f == 6 and it == 0: add(p, "s_waitcnt lgkmcnt(6)")
            add(p, rdk(f, uu))
    if rd_v:
        for f in range(8):
            if f == 6 and rd_k: add(nq + f*vstep + vstep - 1, "s_waitcnt lgkmcnt(6)")
            add(nq + f*vstep + vstep - 1, rdv(f, uu))
    if dma:
        g, g2 = stage_dma()
        if it == 0:
            for k, x in enumerate(g2): add((k*(n - 2))//len(g2), x)
        else:
            for k, x in enumerate(g): add(nq + (k*(n - 2 - nq))//len(g), x)
    thr = S_THR
    if loop and it == 1:
        thr = S_THRB
        add(0, [f"s_add_u32 s{S_TRIP}, s{S_TRIP}, 1"]); add(1, [f"s_cmp_eq_u32 s{S_TRIP}, s{S_LAST}", f"s_cselect_b32 s{S_THRB}, -1.0, s{S_THR}"])
    st = [f"v_add_f32 v{V_L[g]}, v{V_L[g]}, v{V_SUM[g]}" for g in pend]
    body = merge_streams([sm_stream(g, 1 - it) for g in sm])
    if inl_fix is not None:
        F = S_FLO if inl_fix == 0 else S_FHI
        fx = [f"v_subrev_u32 v{V3_T}, s{F}, v{V3_THR}", f"v_subrev_u32 v{V3_T}, 32, v{V3_T}"] + fix_stream(inl_fix, V3_T)
        body = body[:10] + merge_streams([body[10:], fx])
    st += body + list(extra)
    post = []
    if sm:
        ck = V_SUM[sm[0]]
        if len(sm) == 2:
            st += [f"v_add_f32 v{V_CK}, v{V_SUM[0]}, v{V_SUM[1]}"]; ck = V_CK
        st += [f"v_cmp_nge_f32 vcc, s{thr}, v{ck}"]
        calls = [f"s_call_b64 s[{S_RET}:{S_RET+1}], L_rare{g}{1-it}" for g in sm]
        if loop and it == 1:
            post = [f"s_cbranch_vccz {loop}", f"v_cmp_nge_f32 vcc, s{S_THR}, v{ck}", f"s_cbranch_vccnz {name}_rare", f"{name}_rarer:"]
            outofline.extend(flat([f"{name}_rare:"] + calls + [f"s_cmp_lg_u32 s{S_TRIP}, s{S_LAST}", f"s_cbranch_scc1 {loop}", f"s_branch {name}_rarer"]))
        else:
            post = [f"s_cbranch_vccnz {name}_rare", f"{name}_rarer:"]
            outofline.extend(flat([f"{name}_rare:"] + calls + [f"s_branch {name}_rarer"]))
    add(n - 1, post)
    pre = pin.pop(-1, [])
    for p in pin:
        pin[p] = [Ins("s_nop 0 ; PAD") if x.text == ".pad16" else x for x in flat(pin[p])]
        if any(x.text.endswith("PAD") for x in pin[p]): pin[p] += [Ins("s_nop 0 ; PAD")]*3
    fill, cap = place(n, pin, st, n - 2)
    for p in fill: fill[p] = [x for x in fill[p] if not x.text.endswith("PAD")]
    fill[-1] = [x for x in flat(pre) if x.text != ".pad16"]
    c += interleave(mf, fill)
    return flat(c), cap

def body(kind):
    B2, H = [0, 1], [1]
    if kind == "D":
        A, c1 = iteration("L_DA", 0, B2, B2, B2, B2)
        B, c2 = iteration("L_DB", 1, B2, B2, B2, B2, loop="L_D")
    elif kind == "Dp":
        A, c1 = iteration("L_DpA", 0, B2, B2, B2, B2, inl_fix=0)
        B, c2 = iteration("L_DpB", 1, B2, B2, B2, B2)
    elif kind == "T":
        A, c1 = iteration("L_TA", 0, H, B2, B2, B2)
        B, c2 = iteration("L_TB", 1, H, H, B2, B2)
        def cond(it):
            outofline.extend(flat([f"L_Tfix{it}:"] + fixcall(1, it) + [f"s_branch L_Tfix{it}_r"]))
            return flat([f"s_cmp_eq_u32 s{S_TLO}, 15", f"s_cbranch_scc1 L_Tfix{it}", f"L_Tfix{it}_r:"])
        pf = []
        if opt.pf4:
            pf = flat([f"s_cmp_eq_u32 s{S_CH}, 0", f"s_cselect_b32 s{SRD_A}, s{P_WO}, s{P_WD}", f"s_cselect_b32 s{SRD_A+1}, s{P_WO+1}, s{P_WD+1}",
              f"s_cselect_b32 s{S_T0}, 64, 28", f"s_lshl_b32 s{SRD_A+2}, s{S_T0}, 16",
              f"s_lshl_b32 s{S_T0}, s{S_RH}, 8", f"s_add_u32 s{S_T0}, s{S_T0}, s2", f"s_lshl_b32 s{S_T0}, s{S_T0}, 13",
              f"v_lshlrev_b32 v{V_PA}, 7, v{V_LANE}", f"buffer_load_dword v253, v{V_PA}, {s(SRD_A,4)}, s{S_T0} offen"])
        A = pf + cond(0) + A; B = cond(1) + B
    elif kind == "S":
        A, c1 = iteration("L_SA", 0, H, H, H, H)
        B, c2 = iteration("L_SB", 1, H, H, H, H, loop="L_S")
    elif kind == "Sp":
        A, c1 = iteration("L_SpA", 0, H, H, H, H, inl_fix=1)
        B, c2 = iteration("L_SpB", 1, H, H, H, H)
    else:
        A, c1 = iteration("L_EA", 0, [], H, H, H, dma=False, rd_k=False)
        B, c2 = iteration("L_EB", 1, [], [], H, H, dma=False, rd_k=False, rd_v=False, vmn=0)
    print("body", kind, "caps", c1, c2, file=sys.stderr)
    return A + B

def rowmax(S, t):
    c = [f"v_max3_f32 v{t}, v{S}, v{S+1}, v{S+2}"]
    for j in range(3, 15, 2): c += [f"v_max3_f32 v{t}, v{t}, v{S+j}, v{S+j+1}"]
    c += [f"v_max_f32 v{t}, v{t}, v{S+15}", f"v_mov_b32 v{t+1}, v{t}", "s_nop 1", f"v_permlane32_swap_b32 v{t}, v{t+1}", f"v_max_f32 v{t}, v{t}, v{t+1}"]
    return c

def rare(g, b):
    t = V3_T
    c = [f"L_rare{g}{b}:", "s_nop 15"]
    c += rowmax(VS(g, b), t)
    c += [f"v_max_f32 v{t}, 0, v{t}", f"v_exp_f32 v{t+1}, -v{t}"]
    for j in range(16):
        c += [f"v_sub_f32 v{r+j}, v{r+j}, v{t}" for r in (VN(g), VS(g, 0), VS(g, 1))]
    c += [f"v_mul_f32 v{V_L[g]}, v{V_L[g]}, v{t+1}"]
    for j in range(0, 64, 4):
        c += [f"v_accvgpr_read_b32 v{t+2+k}, a{A_O[g]+j+k}" for k in range(4)]
        c += [f"v_mul_f32 v{t+2+k}, v{t+2+k}, v{t+1}" for k in range(4)]
        c += [f"v_accvgpr_write_b32 a{A_O[g]+j+k}, v{t+2+k}" for k in range(4)]
    c += sm_stream(g, b)
    c += ["s_nop 1", f"s_setpc_b64 s[{S_RET}:{S_RET+1}]"]
    return flat(c)

def fix(g):
    c = [f"L_fix{g}:", f"v_subrev_u32 v{V3_T}, s{S_T0}, v{V3_THR}"] + fix_stream(g, V3_T) + ["s_nop 1", f"s_setpc_b64 s[{S_RET}:{S_RET+1}]"]
    return flat(c)

def o_epilogue(g):
    t = V3_T
    Dg = S_DLO if g == 0 else S_DHI
    c = [f"s_mul_i32 s{S_T0}, s{Dg}, {NSL}", f"s_lshl_b32 s{S_T1}, s{S_H}, 2", f"s_add_u32 s{S_T0}, s{S_T0}, s{S_T1}",
         f"s_lshl_b32 s{S_T0}, s{S_T0}, 11", f"s_add_u32 s{S_T0}, s{S_T0}, {WS_A + 56*2048}"]
    c += [f"v_mov_b32 v{t}, v{V_L[g]}", f"v_mov_b32 v{t+1}, v{V_L[g]}", "s_nop 1", f"v_permlane32_swap_b32 v{t}, v{t+1}", f"v_add_f32 v{t}, v{t}, v{t+1}", f"v_rcp_f32 v{t}, v{t}"]
    for db in range(4):
        for m in range(2):
            q = t + 4 + 12*m
            c += [f"v_accvgpr_read_b32 v{q+4+k}, a{A_O[g] + 16*db + 8*m + k}" for k in range(8)]
            c += [f"v_mul_f32 v{q+4+k}, v{q+4+k}, v{t}" for k in range(8)]
            c += [f"v_cvt_pk_bf16_f32 v{q+k}, v{q+4+2*k}, v{q+5+2*k}" for k in range(4)]
            c += [f"buffer_store_dwordx4 {v(q,4)}, v{V3_ST}, {s(SRD_WS,4)}, s{S_T0} offen offset:{m*512 + (db & 1)*2048} sc1"]
        if db == 1: c += [f"s_add_u32 s{S_T0}, s{S_T0}, 4096"]
    return tag(c, "ctx")

def align(): return flat([f".p2align {opt.align}"]) if opt.align else []

def p3(pre_e):
    t = V3_T
    c = []
    c += [f"s_lshl_b32 s{S_T0}, s{S_W}, 13", f"s_add_u32 s{S_T1}, s{S_T0}, 0x10000", f"s_sub_u32 s{S_T2}, {0x10000 + 7*8192}, s{S_T0}",
          f"v_add_u32 v{t+4}, s{S_T1}, v{V3_RD}", f"v_add_u32 v{t+5}, s{S_T2}, v{V3_RD}", f"v_add_u32 v{t+2}, 0x20000, v{V3_RD}"]
    c += ["s_waitcnt vmcnt(16) lgkmcnt(0)", "s_barrier"]
    for f in range(8):
        c += [f"ds_read_b128 {a_(A_KF + 4*f, 4)}, v{t+2} offset:{f*1024}"]
        c += [f"ds_read_b128 {a_(A_Q[g] + 4*f, 4)}, v{t+4+g} offset:{f*1024}" for g in range(2)]
        c += [f"v_mov_b32 v{VN(0)+4*f+j}, 0" for j in range(4)]
    c += [f"v_mov_b32 v{V_L[0]}, 0", f"v_mov_b32 v{V_L[1]}, 0", f"s_mov_b32 s{S_TRIP}, 0"]
    def pfix(u):
        return [f"s_cmp_lg_u32 s{S_TLO}, 0", f"s_cbranch_scc1 L_pf{u}"] + fixcall(0, u) + [f"L_pf{u}:"]
    c += pfix(0)
    c += ["s_waitcnt lgkmcnt(0)", "s_barrier"]
    g, g2 = stage_dma()
    dm = [g[0], Ins("s_nop 0")] + g[1:] + g2 + [g[0], Ins("s_nop 0")] + g[1:]
    zero = [f"v_accvgpr_write_b32 a{128+j}, 0" for j in range(128)]
    pin = {2*f + 1: [f"ds_read_b128 {a_(A_KF + 4*f, 4)}, v{t+2} offset:{8192 + f*1024}"] for f in range(8)}
    fill, _ = place(16, pin, merge_streams([dm, zero[:56]]), 15)
    c += interleave(qk_mfma([0, 1], 0), fill)
    c += [rdv(f, 0) for f in range(6)] + zero[56:64]
    c += merge_streams([rowmax(VS(g, 0), t + 4 + 2*g) for g in range(2)])
    for g in range(2):
        c += [f"v_sub_f32 v{VN(g)+j}, v{VN(g)+j}, v{t + 4 + 2*g}" for j in range(16)]
    c += ["s_waitcnt lgkmcnt(0)"] + [rdv(f, 0) for f in range(6, 8)]
    c += pfix(1)
    pin = {2*f + 1: [rdk(f, 0)] for f in range(8)}
    def sm0(g):
        out = []; sub = [f"v_sub_f32 v{VS(g,0)+j}, v{VS(g,0)+j}, v{t + 4 + 2*g}" for j in range(16)]
        k = 0
        for x in sm_stream(g, 0):
            if x.startswith("v_exp"): out.append(sub[k]); k += 1
            out.append(x)
        return out
    fill, _ = place(16, pin, merge_streams([sm0(0), sm0(1)]), 15)
    c += ["s_nop 1"] + interleave(qk_mfma([0, 1], 1), fill)
    c += zero[64:]
    c += ["s_waitcnt vmcnt(12) lgkmcnt(0)", "s_barrier"]
    c += signal([f"s_lshl_b32 s{S_T0}, s{S_P}, 2", f"s_add_u32 s{S_T0}, s{S_T0}, 128"], "L_sig_h", t)
    c = flat(c)
    D, so = auto_wait_loop(body("D"), [[]])
    Dp, so1 = auto_wait(body("Dp"), [[]] + so)
    T, so2 = auto_wait(body("T"), [[]] + so1)
    Sb, so3 = auto_wait_loop(body("S"), so2)
    Sp, so4 = auto_wait(body("Sp"), so2 + so3)
    E, _ = auto_wait(body("E"), so2 + so4)
    c += stamp()
    c += flat([f"s_cmp_eq_u32 s{S_TLO}, 0", "s_cbranch_scc1 L_T", f"s_sub_u32 s{S_LAST}, s{S_TLO}, 1", f"s_cmp_eq_u32 s{S_LAST}, 0", "s_cbranch_scc1 L_Dp"])
    c += align() + flat(["L_D:"]) + D
    c += flat(["L_Dp:", f"s_cmp_lg_u32 s{S_RH}, 0", "s_cbranch_scc1 L_Dp1"] + fixcall(0, 0) + ["L_Dp1:"]) + Dp
    c += flat(["L_T:"]) + stamp() + T + stamp()
    c += flat([f"s_cmp_lg_u32 s{S_CH}, 0", "s_cbranch_scc1 L_noepi", f"s_call_b64 s[{S_RET}:{S_RET+1}], L_epi0", "L_noepi:"])
    c += stamp()
    c += flat([f"s_cmp_eq_u32 s{S_TLO}, 15", "s_cbranch_scc1 L_E", f"s_add_u32 s{S_TRIP}, s{S_TLO}, 1", f"s_sub_u32 s{S_LAST}, s{S_THI}, 1"])
    c += align() + flat(["L_S:"]) + Sb
    c += flat([f"s_cmp_eq_u32 s{S_RH}, 0", "s_cbranch_scc1 L_Sp1"] + fixcall(1, 0) + ["L_Sp1:"]) + Sp
    c += flat(["L_E:"]) + stamp() + pre_e + E + stamp()
    c += flat([f"s_cmp_eq_u32 s{S_CH}, 0", "s_cbranch_scc1 L_epi_hi", f"s_call_b64 s[{S_RET}:{S_RET+1}], L_epi0", "s_barrier", "L_epi_hi:"])
    outofline.extend(flat(["L_epi0:", "s_nop 7"]) + o_epilogue(0) + flat([f"s_setpc_b64 s[{S_RET}:{S_RET+1}]"]))
    for g in range(2):
        outofline.extend(fix(g))
        for b in range(2): outofline.extend(rare(g, b))
    return c
```

```python
from g3 import *

S4_AH, S4_AC, S4_WH, S4_WC, S4_HA, S4_HW, S4_KS, S4_MT = S_ACTA, S_ACTB, S_W0, S_W1, S_TRIP, S_TLO, S_THI, S_RING
S4_AB, S4_WB = S_KOFF, S_LAST
V4_DW = 2
V4_A = 6
V4_G = 8
V4_T = 12
V4_RB = 32
V4_ACC = (64, 128)
V4_WF = 192
A4_X = 0
NP = 23

def ld_w(n):
    c = [f"s_add_u32 m0, s{S_WL}, {(n % 8)*16384}"]
    if n < 7:
        c += [f"buffer_load_dwordx4 v{V4_DW+d}, {s(SRD_W0,4)}, s{S4_WH} offen offset:{d*1024} lds" for d in range(4)]
        c += [f"s_add_u32 s{S4_WH}, s{S4_WH}, 65536"]
    else:
        c = [f"s_add_u32 s{S4_WC}, s{S4_WB}, s{S4_HW}"] + c
        c += [f"buffer_load_dwordx4 v{V4_DW+d}, {s(SRD_W1,4)}, s{S4_WC} offen offset:{d*1024} lds" for d in range(4)]
        c += [f"s_add_u32 s{S4_HW}, s{S4_HW}, 65536", f"s_and_b32 s{S4_HW}, s{S4_HW}, {16*65536 - 1}"]
    return tag(c, ("w", n))
def ld_a(n):
    so = S4_AH if n < 7 else S4_AC
    c = [] if n < 7 else [f"s_add_u32 s{S4_AC}, s{S4_AB}, s{S4_HA}"]
    for sl in range(2):
        for j in range(2):
            c += [f"buffer_load_dwordx4 {a_(A4_X + (n % 6)*16 + (j*2+sl)*4, 4)}, v{V4_A+j}, {s(SRD_WS,4)}, s{so} offen offset:{sl*2048} sc1"]
    if n < 7: c += [f"s_add_u32 s{S4_AH}, s{S4_AH}, 4096"]
    else: c += [f"s_add_u32 s{S4_HA}, s{S4_HA}, 4096", f"s_and_b32 s{S4_HA}, s{S4_HA}, {16*4096 - 1}"]
    return tag(c, ("a", n))
def rd_wf(n, i):
    part = int(n >= 7); slot = n % 8
    base = V4_RB + part*16 + (slot >> 2)*8 + i
    ro = 2048 if part else 4096
    return [f"ds_read_b64_tr_b16 {v(V4_WF + (i*2+sl)*4 + 2*r, 2)}, v{base} offset:{(slot & 3)*16384 + sl*8192 + r*ro}" for sl in range(2) for r in range(2)]

def with_nop(g):
    out = []
    for x in g:
        out.append(x)
        if ("s", "m0") in x.defs: out.append(Ins("s_nop 0"))
    return out

def pre_e():
    L = V_LANE
    c = [f"s_lshl_b32 s{S_T0}, s{S_P}, 2", f"s_add_u32 s{S_T0}, s{S_T0}, 128", f"v_mov_b32 v{V_PE}, 32", f"v_mov_b32 v{V_PA}, s{S_T0}",
         f"buffer_load_dword v{V_PV}, v{V_PA}, {s(SRD_DBG,4)}, 0 offen sc1"]
    return flat(c)

def p4_setup():
    L, T = V_LANE, V4_T
    G, L16 = T + 10, T + 11
    c = [f"v_cmp_lt_u32 vcc, v{V_PV}, v{V_PE}", "s_cbranch_vccnz L_spin_h", "L_spin_h_r:"]
    spin("L_spin_h", V_PA, SRD_DBG, "0", V_PE, V_PV, "L_spin_h_r")
    c += srd(SRD_W0, P_WD, 1792*1024) + srd(SRD_W1, P_WO, 4096*1024) + srd(SRD_V, P_OUT, 2048*1024)
    c += [f"s_lshr_b32 s{S4_KS}, s{S_H}, 3", f"s_sub_u32 s{S4_MT}, 15, s{S_P}", f"s_bitcmp0_b32 s{S_H}, 2", f"s_cselect_b32 s{S4_MT}, s{S_P}, s{S4_MT}"]
    c += [f"s_and_b32 s{S_T0}, s{S_H}, 3", f"s_lshl_b32 s{S_T0}, s{S_T0}, 8", f"s_lshl_b32 s{S_T1}, s{S_W}, 14", f"s_add_u32 s{S_T0}, s{S_T0}, s{S_T1}",
          f"s_mul_i32 s{S4_WH}, s{S4_KS}, {448*1024}", f"s_add_u32 s{S4_WH}, s{S4_WH}, s{S_T0}",
          f"s_lshl_b32 s{S4_WB}, s{S4_KS}, 20", f"s_add_u32 s{S4_WB}, s{S4_WB}, s{S_T0}",
          f"s_and_b32 s{S_T0}, s{S_H}, 7", f"s_lshl_b32 s{S4_HW}, s{S_T0}, 17", f"s_lshl_b32 s{S4_HA}, s{S_T0}, 13"]
    c += [f"s_lshl_b32 s{S_T0}, s{S4_MT}, 2", f"s_add_u32 s{S_T0}, s{S_T0}, s{S_W}", f"s_mul_i32 s{S_T1}, s{S_T0}, {NSL*2048}", f"s_add_u32 s{S_T1}, s{S_T1}, {WS_A}",
          f"s_mul_i32 s{S4_AH}, s{S4_KS}, {14*2048}", f"s_add_u32 s{S4_AH}, s{S4_AH}, s{S_T1}",
          f"s_lshl_b32 s{S4_AB}, s{S4_KS}, 16", f"s_add_u32 s{S4_AB}, s{S4_AB}, s{S_T1}", f"s_add_u32 s{S4_AB}, s{S4_AB}, {56*2048}",
          f"s_lshl_b32 s{S_T3}, s{S_T0}, 7", f"s_add_u32 s{S_T3}, s{S_T3}, {WS_G}"]
    c += [f"v_lshrrev_b32 v{G}, 4, v{L}", f"v_and_b32 v{L16}, 15, v{L}"]
    c += [f"v_lshlrev_b32 v{T}, 10, v{G}", f"v_lshlrev_b32 v{T+1}, 1, v{G}", f"v_xor_b32 v{T+1}, v{T+1}, v{L16}", f"v_xor_b32 v{T+2}, 8, v{T+1}",
          f"v_lshl_add_u32 v{V4_DW}, v{T+1}, 4, v{T}", f"v_lshl_add_u32 v{T+2}, v{T+2}, 4, v{T}", f"v_add_u32 v{V4_DW+1}, {4096 - 1024}, v{T+2}",
          f"v_add_u32 v{V4_DW+2}, {2*(4096 - 1024)}, v{V4_DW}", f"v_add_u32 v{V4_DW+3}, {3*(4096 - 1024)}, v{T+2}"]
    c += [f"s_and_b32 s{S_T0}, s{S4_KS}, 1", f"s_lshl_b32 s{S_T1}, s{S_T0}, 10", f"v_lshl_add_u32 v{V4_A}, v{L}, 4, s{S_T1}", f"v_xor_b32 v{V4_A+1}, 0x400, v{V4_A}",
          f"s_lshl_b32 s{S_T1}, s{S_T0}, 6", f"v_lshl_add_u32 v{T}, v{L16}, 2, s{S_T1}", f"v_xor_b32 v{T+1}, 64, v{T}"]
    c = flat(c)
    c += with_nop(ld_w(0)) + ld_a(0) + with_nop(ld_w(1))
    c += tag([f"buffer_load_dword v{V4_G+j}, v{T+j}, {s(SRD_WS,4)}, s{S_T3} offen sc1" for j in range(2)], "g")
    c += ld_a(1)
    d = [f"v_lshrrev_b32 v{T+2}, 2, v{L16}", f"v_and_b32 v{T+3}, 3, v{L16}", f"v_and_b32 v{T+4}, 1, v{G}", f"v_lshl_add_u32 v{T+5}, v{T+4}, 2, v{T+2}",
         f"v_lshl_add_u32 v{T+6}, v{G}, 2, v{T+2}", f"v_lshrrev_b32 v{T+7}, 1, v{G}", f"v_lshl_add_u32 v{T+7}, v{T+7}, 4, v{T+5}",
         f"v_lshlrev_b32 v{T+3}, 3, v{T+3}", f"v_lshl_add_u32 v{T+6}, v{T+6}, 8, v{T+3}", f"v_lshl_add_u32 v{T+7}, v{T+7}, 8, v{T+3}",
         f"s_lshr_b32 s{S_T0}, s{S4_KS}, 1", f"s_lshl_b32 s{S_T0}, s{S_T0}, 2", f"v_xor_b32 v{T+5}, s{S_T0}, v{T+5}"]
    for i in range(8):
        d += [f"v_xor_b32 v{T+8}, {i}, v{T+5}", f"v_lshl_add_u32 v{V4_RB+i}, v{T+8}, 5, v{T+6}", f"v_lshl_add_u32 v{V4_RB+16+i}, v{T+8}, 5, v{T+7}",
              f"v_add_u32 v{V4_RB+8+i}, 0x10000, v{V4_RB+i}", f"v_add_u32 v{V4_RB+24+i}, 0x10000, v{V4_RB+16+i}"]
    d += [f"v_mov_b32 v{T+12}, v{L}", f"v_and_b32 v{T+13}, 7, v{L}", f"v_lshlrev_b32 v{T+13}, 2, v{T+13}", f"v_mov_b32 v{T+14}, 1"]
    return c + flat(d)

def p4():
    T = V4_T
    G, L16, L, PA, PE, PV = T + 10, T + 11, T + 12, T + 13, T + 14, T + 15
    c = p4_setup()
    c += o_epilogue(1)
    c += stamp()
    c += with_nop(ld_w(2)) + ld_a(2) + with_nop(ld_w(3))
    c += [VmWait([("w", 0)]), Ins("s_barrier")]
    for i in range(8): c += flat(rd_wf(0, i))
    sched = {n: [ld_w(n + 4) if n + 4 < NP else [], ld_a(n + 3) if n + 3 < NP else []] for n in range(NP)}
    sched[6] = [ld_w(10), ld_w(11)]; sched[7] = [ld_a(9), ld_a(10)]
    sig = flat([f"s_cmp_lg_u32 s{S_W}, 0", "s_cbranch_scc1 L_sig_c",
          f"s_lshl_b32 s{S_T2}, s{S_P}, 5", f"s_add_u32 s{S_T2}, s{S_T2}, s{S_H}", f"s_lshl_b32 s{S_T2}, s{S_T2}, 2", f"s_add_u32 s{S_T2}, s{S_T2}, {WS_F}",
          "s_mov_b64 exec, 1"]) + tag([f"buffer_store_dword v{PE}, off, {s(SRD_WS,4)}, s{S_T2} sc1"], "uncounted") + flat(["s_mov_b64 exec, -1", "L_sig_c:"])
    for n in range(NP):
        part = int(n >= 7)
        need = [("a", n)] + ([("w", n + 1)] if n + 1 < NP else [])
        if n == opt.sig_it: need += ["ctx"]
        if n == 7: need += ["F"]
        it = [VmWait(need, lg0=False)]
        if n + 1 < NP: it += [Ins("s_barrier")]
        if n == opt.sig_it: it += sig
        if n == 7:
            it += stamp()
            it += flat([f"v_cmp_lt_u32 vcc, v{PV}, v{PE}", "s_cbranch_vccnz L_spin_c", "L_spin_c_r:"])
            spin("L_spin_c", PA, SRD_WS, f"s{S_T3}", PE, PV, "L_spin_c_r")
            it += stamp()
        mf = []
        for i in range(8):
            for j in range(2):
                for sl in range(2):
                    d = v(V4_ACC[part] + (i*2+j)*4, 4)
                    mf.append(f"{MF16} {d}, {v(V4_WF + (i*2+sl)*4, 4)}, {a_(A4_X + (n % 6)*16 + (j*2+sl)*4, 4)}, {'0' if n in (0, 7) and sl == 0 else d}")
        pin = {}
        if n + 1 < NP:
            for i in range(8):
                r = rd_wf(n + 1, i)
                for k in range(4): pin.setdefault(min(4*i + 3 + k, 31), []).append(r[k])
        for p_ in (2, 10, 18): pin.setdefault(p_, []).insert(0, Ins(f"s_waitcnt lgkmcnt({4 if p_ == 2 else 8})"))
        st = []
        if n == 5:
            st += flat([f"s_lshl_b32 s{S_T3}, s{S_P}, 2", f"s_add_u32 s{S_T3}, s{S_T3}, s{S4_KS}", f"s_lshl_b32 s{S_T3}, s{S_T3}, 5", f"s_add_u32 s{S_T3}, s{S_T3}, {WS_F}"])
            st += tag([f"buffer_load_dword v{PV}, v{PA}, {s(SRD_WS,4)}, s{S_T3} offen sc1"], "F")
        st += with_nop(sched[n][0]) + with_nop(sched[n][1])
        if n == 8: st += flat([f"v_sub_f32 v{V4_G+2+j}, 1.0, v{V4_G+j}" for j in range(2)])
        if 9 <= n < 17:
            i = n - 9
            st = merge_streams([st, flat([f"v_mul_f32 v{V4_ACC[0] + (i*2+j)*4 + b}, v{V4_ACC[0] + (i*2+j)*4 + b}, v{V4_G+2+j}" for j in range(2) for b in range(4)])])
        fill, _ = place(32, pin, st, 30)
        c += it + interleave(mf, fill)
    c, _ = auto_wait([x for x in c], [[]]) if not opt.stamps else auto_wait_seg(c)
    c, vm = vm_pass(c, [])
    c += stamp()
    B, A = V4_ACC
    e = [f"v_lshlrev_b32 v{T}, 4, v{L}"]
    e += [f"s_lshl_b32 s{S_T1}, s{S4_KS}, 15", f"s_add_u32 s{S_T1}, s{S_T1}, s{S_XO}", "s_nop 2"]
    def comb(q):
        j, hf = q & 1, q >> 1
        return [f"v_fmac_f32 v{B + ((4*hf+i)*2+j)*4 + b}, v{A + ((4*hf+i)*2+j)*4 + b}, v{V4_G+j}" for i in range(4) for b in range(4)]
    for q in range(1, 4):
        j, hf = q & 1, q >> 1
        P = 192 + 8*q
        e += comb(q)
        e += [f"s_xor_b32 s{S_T0}, s{S4_KS}, {q}", f"s_lshl_b32 s{S_T0}, s{S_T0}, 15", f"s_add_u32 s{S_T0}, s{S_T0}, s{S_XO}", f"s_add_u32 s{S_T0}, s{S_T0}, {q*8192}"]
        for i in range(4):
            r = B + ((4*hf+i)*2+j)*4
            e += [f"v_cvt_pk_bf16_f32 v{P+2*i}, v{r}, v{r+1}", f"v_cvt_pk_bf16_f32 v{P+2*i+1}, v{r+2}, v{r+3}"]
            if i & 1: e += [f"buffer_store_dwordx4 {v(P + 4*(i >> 1), 4)}, v{T}, {s(SRD_WS,4)}, s{S_T0} offen offset:{(i >> 1)*1024} sc1"]
    e += comb(0)
    e += [f"s_lshl_b32 s{S_T0}, s{S4_MT}, 2", f"s_add_u32 s{S_T0}, s{S_T0}, s{S_W}", f"s_lshl_b32 s{S_T0}, s{S_T0}, 1", f"s_and_b32 s{S_T2}, s{S4_KS}, 1", f"s_add_u32 s{S_T0}, s{S_T0}, s{S_T2}",
          f"s_lshl_b32 s{S_T0}, s{S_T0}, 14", f"s_and_b32 s{S_T2}, s{S_H}, 3", f"s_lshl_b32 s{S_T2}, s{S_T2}, 8", f"s_add_u32 s{S_T0}, s{S_T0}, s{S_T2}",
          f"s_lshr_b32 s{S_T2}, s{S4_KS}, 1", f"s_lshl_b32 s{S_T2}, s{S_T2}, 7", f"s_add_u32 s{S_T0}, s{S_T0}, s{S_T2}",
          f"v_lshlrev_b32 v{T+1}, 10, v{L16}", f"v_lshl_add_u32 v{T+1}, v{G}, 3, v{T+1}",
          f"v_add_u32 v{T+2}, 8192, v{T}", f"v_add_u32 v{T+3}, 16384, v{T}", f"v_add_u32 v{T+4}, 24576, v{T}", f"s_mov_b32 s{S_T4}, 0"]
    e += stamp()
    R = 128
    e += ["L_x:"]
    for q in range(1, 4):
        e += [f"buffer_load_dwordx4 {v(R + 8*q + 4*k, 4)}, v{T+1+q}, {s(SRD_WS,4)}, s{S_T1} offen offset:{k*1024} sc1" for k in range(2)]
    e += ["s_waitcnt vmcnt(0)"]
    e += [f"v_max3_u32 v{T+5}, v{R+8}, v{R+9}, v{R+10}"]
    for k in range(11, 31, 2): e += [f"v_max3_u32 v{T+5}, v{T+5}, v{R+k}, v{R+k+1}"]
    e += [f"v_max_u32 v{T+5}, v{T+5}, v{R+31}", f"v_cmp_eq_u32 vcc, -1, v{T+5}", f"s_add_u32 s{S_T4}, s{S_T4}, 1", "s_cbranch_vccz L_x_ok",
          f"s_cmp_lt_u32 s{S_T4}, 100000", "s_cbranch_scc1 L_x", "L_x_ok:"]
    e += stamp()
    for i in range(4):
        r = B + i*8
        for q in range(1, 4):
            x = R + 8*q + 2*i
            e += [f"v_lshlrev_b32 v{T+5}, 16, v{x}", f"v_and_b32 v{T+6}, 0xffff0000, v{x}", f"v_lshlrev_b32 v{T+7}, 16, v{x+1}", f"v_and_b32 v{T+8}, 0xffff0000, v{x+1}"]
            e += [f"v_add_f32 v{r+b}, v{r+b}, v{T+5+b}" for b in range(4)]
        e += [f"v_cvt_pk_bf16_f32 v{r}, v{r}, v{r+1}", f"v_cvt_pk_bf16_f32 v{r+1}, v{r+2}, v{r+3}",
              f"buffer_store_dwordx2 {v(r,2)}, v{T+1}, {s(SRD_V,4)}, s{S_T0} offen offset:{32*i}"]
    return c + flat(e)

def auto_wait_seg(code):
    out = []; seg = []
    for x in code:
        if x.kind == "smem":
            if seg: out += auto_wait(seg, [[]])[0]; seg = []
            out.append(x)
        else: seg.append(x)
    out += auto_wait(seg, [[]])[0]
    return out, None

def build():
    nstamp[0] = 0
    del outofline[:]
    c = setup()
    c, vm = vm_pass(c, [])
    c += stamp()
    x, vm, lg = p1(vm)
    c += x
    if opt.stamps: c += stamp()
    c += flat([f"s_cmp_eq_u32 s{S_GLU}, 0", "s_cbranch_scc1 L_p2n"])
    n0 = nstamp[0]
    c += p2(True, vm, lg)
    nstamp[0] = n0
    p2n = p2(False, vm, lg)
    c += flat(["L_p2_done:"])
    c += stamp()
    c += p3(pre_e())
    c += stamp()
    c += p4()
    if opt.stamps: c += flat(["s_waitcnt vmcnt(0)"]) + stamp()
    c += flat(["L_end:", "s_endpgm"])
    c += flat(["L_p2n:"]) + p2n + flat(["s_branch L_p2_done"])
    c += outofline
    c += flat(["s_endpgm", ".fill 1024, 4, 0xbf800000"])
    errs = check_hazards(c)
    for e in errs[:40]: print("HAZARD", e, file=sys.stderr)
    assert not errs
    hdr = open("cdna_kernels/" + NAME + ".s.ref").read().split("; Override launch")[0]
    out = hdr + f"""; Written with my own generator script: one fused persistent kernel, 256 workgroups, one per CU.
; @launch grid=(256,1,1) block=(256,1,1) lds=163840
.amdgcn_target "amdgcn-amd-amdhsa--gfx950"
.text
.globl {NAME}_kernel
.p2align 8
.type {NAME}_kernel,@function
{NAME}_kernel:
""" + text(c) + f""".section .rodata,"a"
.p2align 6
.amdhsa_kernel {NAME}_kernel
  .amdhsa_next_free_vgpr 512
  .amdhsa_next_free_sgpr 102
  .amdhsa_accum_offset 256
  .amdhsa_group_segment_fixed_size 0
  .amdhsa_kernarg_size 112
  .amdhsa_user_sgpr_count 2
  .amdhsa_user_sgpr_kernarg_segment_ptr 1
  .amdhsa_system_sgpr_workgroup_id_x 1
.end_amdhsa_kernel
"""
    return out

if __name__ == "__main__":
    opt.stamps = "--stamps" in sys.argv
    opt.sig_it = 1
    opt.pfcode = 21
    for a in sys.argv[2:]:
        if "=" in a:
            k, x = a.split("="); setattr(opt, k, int(x))
    o = build()
    open(sys.argv[1], "w").write(o)
    print("nstamps", nstamp[0], "bytes", len(o), file=sys.stderr)
```

```python
import sys, struct, math
from asmlib import *

NAME = "gated_mix__compressed_kv_cla__glu_gated_glu__prompt"
def f2u(x): return struct.unpack("<I", struct.pack("<f", x))[0]
QSCALE = math.log2(math.e) / math.sqrt(128.0)
LOG2E = math.log2(math.e)

WS_K = 0
WS_V = 16 << 20
WS_A = 32 << 20
WS_X = 56 << 20
WS_F = 64 << 20
WS_FH = WS_F + 4096
WS_FK = WS_F + 8192
WS_G = WS_F + 65536
WS_T = 65 << 20
WS_BYTES = 72 << 20
NSL = 184

P_X, P_C, P_WQ, P_WUK, P_WUV, P_WO, P_BX, P_WG, P_WU, P_WD, P_GW, P_OUT, P_DBG, P_WS = range(4, 32, 2)
S_H, S_P, S_W, S_T0 = 32, 33, 34, 35
SRD_A, SRD_W0, SRD_W1, SRD_WS, SRD_DBG, SRD_K, SRD_V = 36, 40, 44, 48, 52, 56, 60
S_ACTA, S_ACTB, S_W0, S_W1, S_WL, S_CNT, S_SL = 64, 65, 66, 67, 69, 70, 71
S_STK = 68
S_T1, S_T2, S_T3, S_T4 = 72, 73, 74, 75
S_RH, S_CH = 76, 77
S_TRIP, S_TLO, S_THI, S_RING, S_KOFF, S_DLO, S_DHI, S_THR = 78, 79, 80, 81, 82, 83, 84, 85
S_RET = 86
S_LAST, S_THRB = 88, 89
S_M0, S_M1 = 90, 92
S_STAMP = 94
S_GLU, S_STV = 98, 99
S_XO = 3
S_TAG = 101
S_M2 = 16

MF16 = "v_mfma_f32_16x16x32_bf16"
MF32 = "v_mfma_f32_32x32x16_bf16"

class Opt:
    fine = 0
    stamps = False
    pfcode = 1
    pf4 = 1
    nt1 = 1
    nt2 = 0
    ntt = 0
    pf2 = 4
    st0 = 0
    st1 = 22
    align = 0
opt = Opt()
outofline = []

def srd(d, ptr, nbytes):
    return [f"s_mov_b32 s{d}, s{ptr}", f"s_mov_b32 s{d+1}, s{ptr+1}", f"s_mov_b32 s{d+2}, {nbytes}", f"s_mov_b32 s{d+3}, 0x20000"]

nstamp = [0]
def stamp(vt=0):
    if not opt.stamps: return []
    n = nstamp[0]; nstamp[0] += 1
    head = [f"s_memtime s[{S_STAMP}:{S_STAMP+1}]", "s_memrealtime vcc", "s_waitcnt lgkmcnt(0)",
            f"v_mov_b32 v{vt}, s{S_STAMP}", f"v_mov_b32 v{vt+1}, vcc_lo"]
    if n == 0: head = [f"v_mov_b32 v{vt}, s100", f"v_mov_b32 v{vt+1}, s100"]
    c = head + [f"s_lshl_b32 s{S_STAMP}, s2, 2", f"s_add_u32 s{S_STAMP}, s{S_STAMP}, s{S_W}", f"s_lshl_b32 s{S_STAMP}, s{S_STAMP}, 9",
            f"s_add_u32 s{S_STAMP}, s{S_STAMP}, {WS_T + 8*n}",
            f"buffer_store_dwordx2 v[{vt}:{vt+1}], off, s[{SRD_WS}:{SRD_WS+3}], s{S_STAMP}", "s_nop 0"]
    c = tag(c, "uncounted")
    return c + (stamp(vt) if n == 0 else [])

def lane_to(r):
    return [f"v_mbcnt_lo_u32_b32 v{r}, -1, 0", f"v_mbcnt_hi_u32_b32 v{r}, -1, v{r}"]

def spin(label, vaddr, srd_, soff, expect, vt, ret, cmp='ne'):
    outofline.extend(flat([f"{label}:", f"s_mov_b32 s{S_T4}, 0", f"{label}_l:",
                 f"buffer_load_dword v{vt}, v{vaddr}, {s(srd_,4)}, {soff} offen sc1", "s_waitcnt vmcnt(0)",
                 f"v_cmp_{cmp}_u32 vcc, {expect}, v{vt}", f"s_add_u32 s{S_T4}, s{S_T4}, 1", f"s_cbranch_vccz {ret}",
                 "s_sleep 2", f"s_cmp_lt_u32 s{S_T4}, 100000", f"s_cbranch_scc1 {label}_l", f"s_branch {ret}"]))

def flag_off(kind, dst):
    if kind == "k": return [f"s_lshl_b32 s{dst}, s{S_H}, 5", f"s_add_u32 s{dst}, s{dst}, s{S_P}", f"s_lshl_b32 s{dst}, s{dst}, 2", f"s_add_u32 s{dst}, s{dst}, {WS_FK}"]
    return [f"s_lshl_b32 s{dst}, s{S_P}, 5", f"s_add_u32 s{dst}, s{dst}, s{S_H}", f"s_lshl_b32 s{dst}, s{dst}, 2", f"s_add_u32 s{dst}, s{dst}, {WS_FH if kind == 'h' else WS_F}"]
def wave0(label, body):
    return tag([f"s_cmp_lg_u32 s{S_W}, 0", f"s_cbranch_scc1 {label}", "s_mov_b64 exec, 1"] + body + ["s_mov_b64 exec, -1", f"{label}:"], "uncounted")
def signal(kind, label, vt):
    return wave0(label, flag_off(kind, S_T0) + [f"v_mov_b32 v{vt}, s{S_TAG}", f"buffer_store_dword v{vt}, off, {s(SRD_WS,4)}, s{S_T0} sc1"])
TAGGER = 152
def tagger_test(label): return [f"s_lshl_b32 s{S_T0}, s2, 2", f"s_add_u32 s{S_T0}, s{S_T0}, s{S_W}", f"s_cmp_eq_u32 s{S_T0}, {TAGGER*4}", f"s_cbranch_scc1 {label}", f"{label}_r:"]
def tag_load():
    outofline.extend(flat(["L_tagl:"] + lane_to(172) + ["v_lshlrev_b32 v173, 4, v172", "v_lshrrev_b32 v174, 1, v172", "v_lshlrev_b32 v174, 7, v174", "v_and_b32 v172, 1, v172",
        "v_lshl_add_u32 v174, v172, 4, v174", f"s_mov_b32 s{S_T0}, {WS_F}", f"s_mov_b32 s{S_T1}, {WS_FH}", f"s_mov_b32 s{S_T2}, {WS_FK}",
        f"buffer_load_dwordx4 v[160:163], v173, {s(SRD_WS,4)}, s{S_T0} offen sc1", f"buffer_load_dwordx4 v[164:167], v173, {s(SRD_WS,4)}, s{S_T1} offen sc1",
        f"buffer_load_dwordx4 v[168:171], v174, {s(SRD_WS,4)}, s{S_T2} offen sc1", "s_branch L_tagl_r"]))
    return tagger_test("L_tagl")
def tag_pick():
    c = ["L_tagp:", f"s_mov_b32 s{S_T1}, 0", "L_tagp_l:", f"s_add_u32 s{S_T1}, s{S_T1}, 1", f"s_mov_b64 s[{S_M1}:{S_M1+1}], 0"]
    for k in range(12): c += [f"v_cmp_eq_u32 vcc, s{S_T1}, v{160+k}", f"s_or_b64 s[{S_M1}:{S_M1+1}], s[{S_M1}:{S_M1+1}], vcc"]
    c += ["s_cbranch_scc1 L_tagp_l", f"v_mov_b32 v172, s{S_T1}", "s_mov_b64 exec, 1", f"buffer_store_dword v172, off, {s(SRD_DBG,4)}, 0 sc1", "s_mov_b64 exec, -1", "s_branch L_tagp_r"]
    outofline.extend(flat(c))
    return tagger_test("L_tagp")

V_RA = 2
V_RW = 6
V_RG = 14
V_DA = 18
V_DW = 22
V_DG = 26
V_STK, V_STV = 30, 31
F_I = 32
F_J = 64
V_PK = 128

def acc(i, j): return (i*8 + j)*4
def fi(ip, ii, kh): return F_I + (ip & 1)*16 + (ii*2 + kh)*4
def fj(j, kh): return F_J + (j*2 + kh)*4

def rd_j(j, par):
    return [f"ds_read_b128 {v(fj(j, kh), 4)}, {v(V_RA + par*2 + kh)} offset:{(1 + (j >> 2))*16384 + (j & 3)*2048}" for kh in range(2)]
def rd_i(ip, par, gu):
    c = []
    for ii in range(2):
        for kh in range(2):
            for r in range(2):
                d = fi(ip, ii, kh) + 2*r
                if gu and ip >= 2:
                    c.append(f"ds_read_b64_tr_b16 {v(d, 2)}, {v(V_RG + par*2 + (ip & 1))} offset:{3*16384 + ii*8192 + kh*4096 + r*512}")
                else:
                    c.append(f"ds_read_b64_tr_b16 {v(d, 2)}, {v(V_RW + par*4 + (ip & 1)*2 + ii)} offset:{3*(ip >> 1)*16384 + kh*8192 + r*1024}")
    return c
def dma_piece(which, st, gu=False):
    par = st & 1
    vo, sr, so = {0: (V_DW, SRD_W0, S_W0), 1: (V_DA, SRD_A, S_ACTA), 2: (V_DA, SRD_A, S_ACTB), 3: (V_DG if gu else V_DW, SRD_W1, S_W1)}[which]
    g = [f"s_add_u32 m0, s{S_WL}, {par*65536 + which*16384}"]
    nt = "nt " if (which in (0, 3) and (opt.nt1 if st < 8 else opt.nt2)) else ""
    g += [f"buffer_load_dwordx4 {v(vo+d)}, {s(sr,4)}, s{so} offen offset:{d*1024} {nt}lds" for d in range(4)]
    inc = {0: 64*8192, 1: 128, 2: 128, 3: 64*3584 if gu else 64*8192}[which]
    g += [f"s_add_u32 s{so}, s{so}, {inc}"]
    return tag(g, (which, st))

def quad_mfma(ip, swap, zero):
    m = []
    for j in range(8):
        for ii in range(2):
            for kh in range(2):
                d = a_(acc(2*ip + ii, j), 4)
                w = v(fi(ip, ii, kh), 4); x = v(fj(j, kh), 4)
                A, B = (x, w) if swap else (w, x)
                m.append(f"{MF16} {d}, {A}, {B}, {'0' if (zero and kh == 0) else d}")
    return m

def gemm_step(st, glu=True, streams=None, pre=None, vm_need=None, post=None, altmf=None):
    par = st & 1
    p2 = st >= 8
    streams = streams or {}; pre = pre or {}; vm_need = vm_need or {}; post = post or {}; altmf = altmf or {}
    c = []
    for q in range(4):
        pin = {}
        add = lambda p, x: pin.setdefault(p, []).append(x)
        mf = quad_mfma(q, (not p2) and q >= 2, st in (0, 8))
        skip = (not glu) and p2 and q >= 2
        if q < 3:
            rds = rd_i(q + 1, par, p2) if (glu or not p2 or q == 0) else []
            for k, x in enumerate(rds): add(2*k, x)
            if q == 0: add(15, "s_waitcnt lgkmcnt(8)")
            if q == 1: add(29, "s_waitcnt lgkmcnt(0)")
        elif st < 15:
            for k, x in enumerate(rd_i(0, 1 - par, False)): add([0, 1, 2, 5, 6, 9, 10, 13][k], x)
            for j in range(8):
                a, b = rd_j(j, 1 - par)
                add(4*j + 3, a); add(min(4*j + 4, 31), b)
            add(31, "s_waitcnt lgkmcnt(8)")
        w, ds_ = [(3, st + 1), (1, st + 2), (2, st + 2), (0, st + 2)][q]
        if ds_ <= 15:
            g = dma_piece(w, ds_, gu=(ds_ >= 8))
            pos = [1, 5, 9, 13, 17, 19] if q < 3 else [14, 17, 21, 25, 29, 30]
            for x, p in zip(g, pos): add(p, x)
        fill, cap = place(32, pin, streams.get(q, []), 31)
        c += flat(pre.get(q, []))
        if skip:
            c += flat(altmf.get(q, []))
            for p in sorted(fill):
                for x in fill[p]:
                    c.append(x)
                    if x.op.startswith("s_add_u32") and ("s", "m0") in x.defs: c.append(Ins("s_nop 0"))
        else:
            c += interleave(mf, fill)
        if q == 0: c += [VmWait([(3, st)] + vm_need.get(q, [])), Ins("s_barrier")]
        if q == 2 and st == 15: c += [Ins("s_waitcnt lgkmcnt(0)")]
        elif q == 2: c += [VmWait([(0, st + 1), (1, st + 1), (2, st + 1)] + vm_need.get(q, [])), Ins("s_barrier")]
        c += flat(post.get(q, []))
    return c

def setup():
    c = []
    c += ["s_cmp_ge_u32 s2, 256", "s_cbranch_scc1 L_end"]
    if opt.stamps: c += ["s_memrealtime s[100:101]"]
    c += ["s_load_dwordx16 s[4:19], s[0:1], 0", "s_load_dwordx8 s[20:27], s[0:1], 64", "s_load_dwordx4 s[28:31], s[0:1], 96"]
    L, G, L16, T = 128, 129, 130, 132
    c += [f"v_lshrrev_b32 v{T}, 6, v0", f"v_and_b32 v{L}, 63, v0", f"v_readfirstlane_b32 s{S_W}, v{T}"]
    c += [f"s_and_b32 s{S_T0}, s2, 7", f"s_lshl_b32 s{S_T0}, s{S_T0}, 2", f"s_lshr_b32 s{S_H}, s2, 3", f"s_and_b32 s{S_H}, s{S_H}, 3",
          f"s_add_u32 s{S_H}, s{S_H}, s{S_T0}", f"s_lshr_b32 s{S_P}, s2, 5"]
    c += [f"s_and_b32 s{S_W}, s{S_W}, 3", f"s_and_b32 s{S_RH}, s{S_W}, 1", f"s_lshr_b32 s{S_CH}, s{S_W}, 1", f"s_lshl_b32 s{S_WL}, s{S_W}, 12"]
    c += [f"v_lshrrev_b32 v{G}, 4, v{L}", f"v_and_b32 v{L16}, 15, v{L}"]
    c += [f"v_lshlrev_b32 v{T}, 13, v{G}", f"v_lshlrev_b32 v{T+1}, 1, v{G}", f"v_xor_b32 v{T+1}, v{T+1}, v{L16}", f"v_xor_b32 v{T+2}, 8, v{T+1}",
          f"v_lshl_add_u32 v{V_DW}, v{T+1}, 4, v{T}", f"v_lshl_add_u32 v{T+2}, v{T+2}, 4, v{T}", f"v_add_u32 v{V_DW+1}, {4*8192 - 1024}, v{V_DW}",
          f"v_add_u32 v{V_DW+2}, {8*8192 - 2048}, v{T+2}", f"v_add_u32 v{V_DW+3}, {12*8192 - 3072}, v{T+2}"]
    c += [f"v_lshrrev_b32 v{T}, 3, v{L}", f"v_lshlrev_b32 v{T}, 10, v{T}", f"v_and_b32 v{T+1}, 7, v{L}", f"v_xor_b32 v{T+1}, v{T+1}, v{G}", f"v_xor_b32 v{T+2}, 4, v{T+1}",
          f"v_lshl_add_u32 v{V_DA}, v{T+1}, 4, v{T}", f"v_lshl_add_u32 v{T+2}, v{T+2}, 4, v{T}", f"v_add_u32 v{V_DA+1}, {8192 - 1024}, v{T+2}",
          f"v_add_u32 v{V_DA+2}, {2*(8192 - 1024)}, v{V_DA}", f"v_add_u32 v{V_DA+3}, {3*(8192 - 1024)}, v{T+2}"]
    c += [f"s_lshl_b32 s{S_ACTA}, s{S_P}, 18", f"s_lshl_b32 s{S_T0}, s{S_CH}, 17", f"s_add_u32 s{S_ACTA}, s{S_ACTA}, s{S_T0}",
          f"s_lshl_b32 s{S_T0}, s{S_RH}, 15", f"s_add_u32 s{S_ACTA}, s{S_ACTA}, s{S_T0}", f"s_add_u32 s{S_ACTB}, s{S_ACTA}, {64*1024}"]
    c += [f"s_lshl_b32 s{S_W0}, s{S_W}, 17", f"s_lshl_b32 s{S_T0}, s{S_H}, 8", f"s_add_u32 s{S_W0}, s{S_W0}, s{S_T0}", f"s_mov_b32 s{S_W1}, s{S_W0}"]
    c += ["s_waitcnt lgkmcnt(0)"]
    c += srd(SRD_W0, P_WUK, 512*8192) + srd(SRD_A, P_C, 2048*1024) + srd(SRD_W1, P_WUV, 512*8192)
    def piece(w, st):
        g = dma_piece(w, st); return [g[0], "s_nop 0"] + g[1:]
    for which in range(4): c += piece(which, 0)
    c += srd(SRD_WS, P_WS, WS_BYTES) + srd(SRD_DBG, P_DBG, 256)
    c += [f"v_lshrrev_b32 v{T}, 1, v{L16}", f"v_xor_b32 v{T}, v{T}, v{G}", f"v_lshlrev_b32 v{T}, 4, v{T}", f"v_lshl_add_u32 v{T}, v{L16}, 7, v{T}",
          f"s_lshl_b32 s{S_T0}, s{S_RH}, 13", f"v_add_u32 v{V_RA}, s{S_T0}, v{T}", f"v_xor_b32 v{V_RA+1}, 64, v{V_RA}",
          f"v_add_u32 v{V_RA+2}, 0x10000, v{V_RA}", f"v_add_u32 v{V_RA+3}, 0x10000, v{V_RA+1}"]
    c += [f"v_lshrrev_b32 v{T}, 2, v{L16}", f"v_and_b32 v{T+1}, 3, v{L16}", f"v_lshl_add_u32 v{T+2}, v{G}, 3, v{T}",
          f"v_and_b32 v{T+3}, 1, v{G}", f"v_lshl_add_u32 v{T+4}, v{T+3}, 2, v{T}",
          f"v_lshlrev_b32 v{T+5}, 8, v{T+2}", f"v_lshl_add_u32 v{T+5}, v{T+1}, 3, v{T+5}",
          f"s_lshl_b32 s{S_T0}, s{S_CH}, 2", f"v_xor_b32 v{T+4}, s{S_T0}, v{T+4}"]
    for i in range(4):
        c += [f"v_xor_b32 v{T+6}, {i}, v{T+4}", f"v_lshl_add_u32 v{V_RW+i}, v{T+6}, 5, v{T+5}", f"v_add_u32 v{V_RW+4+i}, 0x10000, v{V_RW+i}"]
    c += [f"v_lshrrev_b32 v{T+4}, 1, v{T}", f"v_lshl_add_u32 v{T+4}, v{T+3}, 1, v{T+4}",
          f"v_lshlrev_b32 v{T+5}, 7, v{T+2}", f"v_lshl_add_u32 v{T+5}, v{T+1}, 3, v{T+5}",
          f"s_lshl_b32 s{S_T0}, s{S_CH}, 1", f"v_xor_b32 v{T+4}, s{S_T0}, v{T+4}"]
    for fb in range(2):
        c += [f"v_xor_b32 v{T+6}, {fb}, v{T+4}", f"v_lshl_add_u32 v{V_RG+fb}, v{T+6}, 5, v{T+5}", f"v_add_u32 v{V_RG+2+fb}, 0x10000, v{V_RG+fb}"]
    c += [f"v_lshrrev_b32 v{T}, 3, v{L}", f"v_mul_u32_u24 v{T}, 3584, v{T}", f"v_and_b32 v{T+1}, 7, v{L}", f"v_lshlrev_b32 v{T+2}, 1, v{T+3}",
          f"v_xor_b32 v{T+1}, v{T+1}, v{T+2}"]
    for d in range(4):
        c += [f"v_xor_b32 v{T+2}, {4*(d & 1)}, v{T+1}", f"v_lshl_add_u32 v{V_DG+d}, v{T+2}, 4, v{T}"]
        if d: c += [f"v_add_u32 v{V_DG+d}, {d*8*3584 - d*1024}, v{V_DG+d}"]
    c += [f"v_lshrrev_b32 v{T}, 1, v{G}", f"v_lshlrev_b32 v{T+1}, 10, v{T+3}", f"v_lshl_add_u32 v{T+1}, v{T}, 9, v{T+1}",
          f"v_lshrrev_b32 v{T+2}, 3, v{L16}", f"v_lshl_add_u32 v{T+1}, v{T+2}, 8, v{T+1}", f"v_and_b32 v{T+2}, 7, v{L}", f"v_lshl_add_u32 v{V_STK}, v{T+2}, 4, v{T+1}"]
    c += [f"v_lshlrev_b32 v{T+1}, 10, v{T}", f"v_lshl_add_u32 v{T+1}, v{T+3}, 9, v{T+1}", f"v_lshl_add_u32 v{V_STV}, v{L16}, 4, v{T+1}"]
    c += [f"s_lshl_b32 s{S_T0}, s{S_H}, 19", f"s_lshl_b32 s{S_T1}, s{S_P}, 16", f"s_add_u32 s{S_T0}, s{S_T0}, s{S_T1}", f"s_lshl_b32 s{S_T1}, s{S_RH}, 15",
          f"s_add_u32 s{S_T0}, s{S_T0}, s{S_T1}", f"s_lshl_b32 s{S_T1}, s{S_CH}, 12", f"s_add_u32 s{S_STK}, s{S_T0}, s{S_T1}", f"s_add_u32 s{S_STV}, s{S_STK}, {WS_V}"]
    c += [f"s_lshr_b32 s{S_T0}, s{S_H}, 3", f"s_mul_i32 s{S_SL}, s{S_T0}, 7", f"s_lshr_b32 s{S_T0}, s{S_H}, 2", f"s_and_b32 s{S_T0}, s{S_T0}, 1",
          f"s_and_b32 s{S_T1}, s{S_H}, 3", f"s_lshl_b32 s{S_T2}, s{S_T0}, 2", f"s_add_u32 s{S_T2}, s{S_T2}, s{S_T1}",
          f"s_lshr_b32 s{S_T3}, s{S_P}, 2", f"s_cmp_eq_u32 s{S_T3}, s{S_T0}", f"s_cselect_b32 s{S_GLU}, 1, 0",
          f"s_cmp_eq_u32 s{S_T1}, 3", f"s_cselect_b32 s{S_T2}, 3, s{S_T2}", f"s_cselect_b32 s{S_GLU}, s{S_GLU}, 1", f"s_add_u32 s{S_SL}, s{S_SL}, s{S_T2}"]
    c += [f"s_and_b32 s{S_T0}, s{S_H}, 7", f"s_lshl_b32 s{S_T1}, s{S_P}, 3", f"s_add_u32 s{S_T0}, s{S_T0}, s{S_T1}", f"s_lshl_b32 s{S_T0}, s{S_T0}, 17",
          f"s_lshl_b32 s{S_T1}, s{S_W}, 11", f"s_add_u32 s{S_T0}, s{S_T0}, s{S_T1}", f"s_add_u32 s{S_XO}, s{S_T0}, {WS_X}"]
    c += tag_load()
    c += piece(1, 1) + piece(2, 1)
    if opt.pfcode:
        c += tag(["s_getpc_b64 s[88:89]", f"s_lshr_b32 s{S_T0}, s2, 3", f"s_mul_i32 s{S_T0}, s{S_T0}, {opt.pfcode*128}", f"v_min_u32 v{T+10}, {opt.pfcode - 1}, v{L}",
                  f"v_lshl_add_u32 v{T+10}, v{T+10}, 7, s{S_T0}", f"global_load_dword v{T+11}, v{T+10}, s[88:89]"], "pf")
    return flat(c)

def sw_act_w0():
    c = srd(SRD_A, P_X, 2048*1024) + srd(SRD_W0, P_WQ, 512*8192)
    c += [f"s_sub_u32 s{S_T0}, 15, s{S_P}", f"s_cmp_eq_u32 s{S_CH}, 0", f"s_cselect_b32 s{S_T0}, s{S_P}, s{S_T0}", f"s_lshl_b32 s{S_ACTA}, s{S_T0}, 17",
          f"s_lshl_b32 s{S_T0}, s{S_RH}, 15", f"s_add_u32 s{S_ACTA}, s{S_ACTA}, s{S_T0}", f"s_add_u32 s{S_ACTB}, s{S_ACTA}, {64*1024}"]
    c += [f"s_lshl_b32 s{S_W0}, s{S_W}, 17", f"s_lshl_b32 s{S_T0}, s{S_H}, 8", f"s_add_u32 s{S_W0}, s{S_W0}, s{S_T0}"]
    return c
def sw_w1():
    c = [f"s_cmp_eq_u32 s{S_CH}, 0", f"s_cselect_b32 s{SRD_W1}, s{P_WG}, s{P_WU}", f"s_cselect_b32 s{SRD_W1+1}, s{P_WG+1}, s{P_WU+1}",
         f"s_mul_i32 s{SRD_W1+2}, s{S_GLU}, {512*3584}"]
    c += [f"s_mul_i32 s{S_W1}, s{S_RH}, {32*3584}", f"s_lshl_b32 s{S_T0}, s{S_SL}, 7", f"s_add_u32 s{S_W1}, s{S_W1}, s{S_T0}"]
    return c

def kv_chunks():
    out = {0: [], 1: [], 2: [], 3: []}
    n = 0
    for e in range(2):
        for j in range(8):
            srcs = [acc(2*e, j) + b for b in range(4)] + [acc(2*e+1, j) + b for b in range(4)]
            out[e].append((n, srcs, ("K", j >> 1, (j & 1)*128 + e*2048))); n += 1
    for ib in range(4):
        for uu in range(4):
            srcs = [acc(4+ib, 2*uu) + b for b in range(4)] + [acc(4+ib, 2*uu+1) + b for b in range(4)]
            out[2 + (ib >> 1)].append((n, srcs, ("V", uu, (ib & 1)*256 + (ib >> 1)*2048))); n += 1
    for ip in (2, 3): out[ip].sort(key=lambda x: x[2][1])
    return out
def conv_stream(ip):
    c = []
    for n, srcs, _ in kv_chunks()[ip]:
        for k in range(0, 4, 2):
            P = V_PK + 4*n + k
            c += [f"v_accvgpr_read_b32 v{P}, a{srcs[2*k]}", f"v_accvgpr_read_b32 v0, a{srcs[2*k+1]}",
                  f"v_accvgpr_read_b32 v{P+1}, a{srcs[2*k+2]}", f"v_accvgpr_read_b32 v1, a{srcs[2*k+3]}",
                  f"v_cvt_pk_bf16_f32 v{P}, v{P}, v0", f"v_cvt_pk_bf16_f32 v{P+1}, v{P+1}, v1"]
    return c
def kv_stores():
    ch = kv_chunks()
    out = []
    for kind, ips, vo, so in (("K", (0, 1), V_STK, S_STK), ("V", (2, 3), V_STV, S_STV)):
        for uu in range(4):
            grp = [x for ip in ips for x in ch[ip] if x[2][1] == uu]
            for k, (n, _, (_k, _u, off)) in enumerate(grp):
                g = [f"buffer_store_dwordx4 {v(V_PK + 4*n, 4)}, v{vo}, {s(SRD_WS,4)}, s{so} offen offset:{off} sc1"]
                if k == 3 and uu < 3: g += [f"s_add_u32 s{so}, s{so}, 8192"]
                out.append(tag(g, "kv"))
    return out
def init_stores():
    c = lane_to(132) + ["v_lshlrev_b32 v132, 4, v132"] + [f"v_mov_b32 v{128+k}, -1" for k in range(4)]
    c += [f"s_lshr_b32 s{S_T1}, s{S_H}, 3"]
    for q in range(1, 4):
        c += [f"s_xor_b32 s{S_T0}, s{S_T1}, {q}", f"s_lshl_b32 s{S_T0}, s{S_T0}, 15", f"s_add_u32 s{S_T0}, s{S_T0}, s{S_XO}", f"s_add_u32 s{S_T0}, s{S_T0}, {q*8192}"]
        c += [f"buffer_store_dwordx4 v[128:131], v132, {s(SRD_WS,4)}, s{S_T0} offen offset:{k*1024} sc1" for k in range(2)]
    return tag(c, "init")

def touch(k, ntt):
    nt = "nt" if ntt else ""
    T = 128
    st = lane_to(T)
    if k == 0:
        pre = srd(SRD_K, P_X, 2048*1024); n = 16; nt = ""
        st += [f"v_lshlrev_b32 v{T+1}, 7, v{T}", f"s_lshl_b32 s{S_T0}, s2, 2", f"s_add_u32 s{S_T0}, s{S_T0}, s{S_W}", f"s_lshl_b32 s{S_T0}, s{S_T0}, 11"]
    elif k == 1:
        pre = srd(SRD_K, P_WQ, 512*8192); n = 32
        st += [f"v_lshrrev_b32 v{T+1}, 1, v{T}", f"v_lshlrev_b32 v{T+1}, 13, v{T+1}", f"v_and_b32 v{T+2}, 1, v{T}", f"v_lshl_add_u32 v{T+1}, v{T+2}, 7, v{T+1}",
               f"s_lshl_b32 s{S_T0}, s{S_P}, 2", f"s_add_u32 s{S_T0}, s{S_T0}, s{S_W}", f"s_lshl_b32 s{S_T0}, s{S_T0}, 17", f"s_lshl_b32 s{S_T1}, s{S_H}, 8", f"s_add_u32 s{S_T0}, s{S_T0}, s{S_T1}"]
    else:
        pre = [f"s_cmp_eq_u32 s{S_CH}, 0", f"s_cselect_b32 s{SRD_K}, s{P_WG}, s{P_WU}", f"s_cselect_b32 s{SRD_K+1}, s{P_WG+1}, s{P_WU+1}", f"s_mov_b32 s{SRD_K+2}, {512*3584}"]; n = 32
        st += [f"v_mul_u32_u24 v{T+1}, 3584, v{T}", f"s_lshl_b32 s{S_T0}, s{S_P}, 1", f"s_add_u32 s{S_T0}, s{S_T0}, s{S_RH}", f"s_mul_i32 s{S_T0}, s{S_T0}, {32*3584}",
               f"s_lshl_b32 s{S_T1}, s{S_SL}, 7", f"s_add_u32 s{S_T0}, s{S_T0}, s{S_T1}"]
    sh = {16: 4, 32: 5}[n]
    st += [f"v_lshrrev_b32 v{T+2}, {sh}, v{T}", f"v_lshl_add_u32 v{T+1}, v{T+2}, 28, v{T+1}"]
    st = flat(st) + tag([f"buffer_load_dword v{T+3}, v{T+1}, {s(SRD_K,4)}, s{S_T0} offen {nt}"], "pf")
    return pre, st

def p1(vm):
    c = [VmWait([(0, 0), (1, 0), (2, 0)]), Ins("s_barrier")]
    g = dma_piece(0, 1)
    rds = rd_i(0, 0, False)
    for j in range(8): rds += rd_j(j, 0)
    c += flat(rds[:12] + [g[0]] + rds[12:14] + g[1:] + rds[14:] + ["s_waitcnt lgkmcnt(8)"])
    for st in range(6):
        pre = {}; streams = {}
        post = {}
        plan = {0: {}, 1: {(1, 1): (0, 0), (2, 1): (1, 0), (3, 1): (2, 0)},
                2: {(1, 1): (0, 0), (2, 1): (1, 1), (3, 1): (1, 0), (4, 1): (2, 1), (5, 1): (2, 0)},
                3: {(1, 1): (0, 0), (2, 0): (1, 1), (2, 2): (1, 0), (4, 0): (2, 1), (4, 2): (2, 0)},
                4: {(1, 1): (0, 0), (3, 1): (1, 0), (5, 1): (2, 0)}}[opt.pf2]
        for q in range(4):
            if (st, q) in plan:
                a, b = touch(*plan[(st, q)]); pre[q] = a; streams[q] = b
        if st == 1: post[0] = tag_pick()
        c += gemm_step(st, pre=pre, streams=streams, post=post)
        if opt.fine: c += stamp()
    cv = conv_stream(0) + conv_stream(1)
    spin("L_spin_tag", 140, SRD_DBG, "0", "0", 141, "L_spin_tag_r", cmp="eq")
    c += gemm_step(6, pre={1: sw_act_w0()}, streams={0: flat(["v_mov_b32 v140, 0"]) + tag([f"buffer_load_dword v141, v140, {s(SRD_DBG,4)}, 0 offen sc1"], "tag")})
    if opt.fine: c += stamp()
    c += gemm_step(7, pre={0: sw_w1()}, streams={1: cv[:66], 2: cv[66:138], 3: cv[138:192]}, vm_need={0: ["tag"]},
                   post={0: ["v_cmp_eq_u32 vcc, 0, v141", "s_cbranch_vccnz L_spin_tag", "L_spin_tag_r:", f"v_readfirstlane_b32 s{S_TAG}, v141"]})
    c, lgo = auto_wait(c, [[]])
    c, vm = vm_pass(c, vm)
    return c, vm, lgo
```

```python
from g1 import *

A_Q = (0, 32); A_KF = 64; A_VF = 96; A_O = (128, 192)
def VS(g, b): return 64 + g*32 + b*16
def VN(g): return 128 + g*16
def VP(g, b): return 160 + g*16 + b*8
V_X = 192
V_L = (208, 209); V_SUM = (210, 211); V_CK = 212
V3_RD, V3_DM, V3_THR, V3_NINF, V3_ST, V_QW, V_QW2, V_LANE = 18, 19, 20, 21, 22, 23, 24, 25
V3_T = 220
V_PA, V_PE, V_PV = 26, 27, 28
S_QS = 96
S_FLO, S_FHI = S_STK, S_STV

def dma4(srd_, so, t):
    return tag([f"buffer_load_dwordx4 v{V3_DM}, {s(srd_,4)}, s{so} offen offset:{d*1024} sc1 lds" for d in range(4)], t)
def stage_dma(t=None):
    g = flat([f"s_add_u32 m0, s{S_RING}, 16384"]) + dma4(SRD_V, S_KOFF, t)
    g2 = flat([f"s_add_u32 s{S_KOFF}, s{S_KOFF}, 16384", f"s_mov_b32 m0, s{S_RING}", f"s_add_u32 s{S_RING}, s{S_RING}, 32768"]) + dma4(SRD_K, S_KOFF, t) + flat([f"s_and_b32 s{S_RING}, s{S_RING}, 0x1ffff"])
    return g, g2

def p3_setup():
    L = V_LANE; t = V3_T
    pre = [f"s_lshl_b32 s{S_T0}, s{S_H}, 19", f"s_add_u32 s{SRD_K}, s{P_WS}, s{S_T0}", f"s_addc_u32 s{SRD_K+1}, s{P_WS+1}, 0",
           f"s_add_u32 s{SRD_V}, s{SRD_K}, {WS_V}", f"s_addc_u32 s{SRD_V+1}, s{SRD_K+1}, 0"]
    c = [f"s_sub_u32 s{S_T0}, 16, s{S_P}", f"s_lshl_b32 s{SRD_K+2}, s{S_T0}, 15", f"s_mov_b32 s{SRD_V+2}, s{SRD_K+2}",
         f"s_mov_b32 s{SRD_K+3}, 0x20000", f"s_mov_b32 s{SRD_V+3}, 0x20000"]
    c += lane_to(L)
    c += [f"v_and_b32 v{V_PA}, 7, v{L}", f"v_lshlrev_b32 v{V_PA}, 2, v{V_PA}", f"s_lshl_b32 s{S_T3}, s{S_H}, 7", f"s_add_u32 s{S_T3}, s{S_T3}, {WS_FK}"]
    c += tag([f"buffer_load_dword v{V_PV}, v{V_PA}, {s(SRD_WS,4)}, s{S_T3} offen sc1"], "poll")
    c += [f"v_lshl_add_u32 v{V3_DM}, v{L}, 4, s{S_WL}", f"s_mov_b32 s{S_KOFF}, 0", f"s_mov_b32 s{S_RING}, s{S_WL}"]
    c += [f"s_lshl_b32 s{S_T0}, s{S_P}, 1", f"s_add_u32 s{S_TLO}, s{S_T0}, s{S_CH}", f"s_sub_u32 s{S_THI}, 31, s{S_TLO}",
          f"s_lshl_b32 s{S_T0}, s{S_P}, 2", f"s_add_u32 s{S_DLO}, s{S_T0}, s{S_W}", f"s_sub_u32 s{S_DHI}, 63, s{S_DLO}", f"s_mov_b32 s{S_THR}, {f2u(2.0**30):#x}",
          f"s_mul_i32 s{S_FLO}, s{S_RH}, -32", f"s_sub_u32 s{S_FHI}, -32, s{S_FLO}"]
    c += [f"v_lshlrev_b32 v{V3_RD}, 4, v{L}", f"v_and_b32 v{t}, 31, v{L}", f"v_lshrrev_b32 v{t+1}, 5, v{L}", f"v_lshlrev_b32 v{t+2}, 2, v{t+1}", f"v_sub_u32 v{V3_THR}, v{t}, v{t+2}",
          f"v_mov_b32 v{V3_NINF}, 0xff800000", f"v_and_b32 v{t+3}, 15, v{L}",
          f"v_lshrrev_b32 v{t}, 4, v{t}", f"v_lshlrev_b32 v{t}, 10, v{t}", f"v_lshl_add_u32 v{t+2}, v{t+1}, 8, v{t}", f"v_lshl_add_u32 v{V3_ST}, v{t+3}, 4, v{t+2}"]
    c += [f"v_lshl_add_u32 v{t}, v{t+1}, 9, v{t}", f"v_lshl_add_u32 v{t}, v{t+3}, 4, v{t}",
          f"s_lshl_b32 s{S_T0}, s{S_RH}, 15", f"s_lshl_b32 s{S_T1}, s{S_CH}, 12", f"s_add_u32 s{S_T0}, s{S_T0}, s{S_T1}", f"s_add_u32 s{S_T0}, s{S_T0}, 0x10000",
          f"v_add_u32 v{V_QW}, s{S_T0}, v{t}", f"s_lshl_b32 s{S_T0}, s{S_RH}, 15", f"v_add_u32 v{V_QW2}, s{S_T0}, v{V_QW}"]
    return pre, c

def nopm0(g): return [g[0], Ins("s_nop 0")] + g[1:]
def first_dmas():
    c = flat([f"s_add_u32 m0, s{S_WL}, 0x20000", "s_nop 0"]) + dma4(SRD_K, S_KOFF, "k0")
    g, g2 = stage_dma("st0")
    return c + nopm0(g) + g2

def q_reads(e):
    c = []
    for j in range(8):
        srcs = [acc(2*e, j) + b for b in range(4)] + [acc(2*e+1, j) + b for b in range(4)]
        c += [f"v_accvgpr_read_b32 v{128 + (e*8+j)*8 + k}, a{r}" for k, r in enumerate(srcs)]
    return c
def q_finish():
    c = [f"s_mov_b32 s{S_QS}, {f2u(QSCALE):#x}", f"s_mov_b32 s{S_QS+1}, {f2u(QSCALE):#x}"]
    for e in range(2):
        for j in range(8):
            t = 128 + (e*8+j)*8
            c += [f"v_pk_mul_f32 {v(t+2*k,2)}, {v(t+2*k,2)}, s[{S_QS}:{S_QS+1}]" for k in range(4)]
            c += [f"v_cvt_pk_bf16_f32 v{t+k}, v{t+2*k}, v{t+2*k+1}" for k in range(4)]
            c += [f"ds_write_b128 v{V_QW if j < 4 else V_QW2}, {v(t,4)} offset:{(j >> 1)*8192 + e*2048 + (j & 1)*256}"]
    return c

def blk_to(dst):
    return [f"s_sub_u32 s{dst}, 15, s{S_P}", f"s_cmp_eq_u32 s{S_RH}, 0", f"s_cselect_b32 s{dst}, s{S_P}, s{dst}"]

S_HO = P_C
def h_head():
    return blk_to(S_T0) + [f"s_mul_i32 s{S_T0}, s{S_T0}, {4*NSL}", f"s_lshl_b32 s{S_T1}, s{S_SL}, 1", f"s_add_u32 s{S_T0}, s{S_T0}, s{S_T1}", f"s_add_u32 s{S_T0}, s{S_T0}, s{S_CH}",
         f"s_lshl_b32 s{S_T0}, s{S_T0}, 11", f"s_add_u32 s{S_HO}, s{S_T0}, {WS_A}", f"s_mov_b32 s{S_QS}, {f2u(-LOG2E):#x}", f"s_mov_b32 s{S_QS+1}, {f2u(-LOG2E):#x}"]
def h_chunk(j, pk):
    t = 32 + 16*(j & 1)
    gs = [acc(4, j) + b for b in range(4)] + [acc(6, j) + b for b in range(4)]
    us = [acc(5, j) + b for b in range(4)] + [acc(7, j) + b for b in range(4)]
    c = [f"v_accvgpr_read_b32 v{t+k}, a{r}" for k, r in enumerate(gs)]
    if pk: c += [f"v_pk_mul_f32 {v(t+2*k,2)}, {v(t+2*k,2)}, s[{S_QS}:{S_QS+1}]" for k in range(4)]
    else: c += [f"v_mul_f32 v{t+k}, s{S_QS}, v{t+k}" for k in range(8)]
    for k in range(8): c += [f"v_exp_f32 v{t+k}, v{t+k}", f"v_accvgpr_read_b32 v{t+8+k}, a{us[k]}"]
    if pk: c += [f"v_pk_add_f32 {v(t+2*k,2)}, {v(t+2*k,2)}, 1.0 op_sel_hi:[1,0]" for k in range(4)]
    else: c += [f"v_add_f32 v{t+k}, 1.0, v{t+k}" for k in range(8)]
    c += [f"v_rcp_f32 v{t+k}, v{t+k}" for k in range(8)]
    if pk: c += [f"v_pk_mul_f32 {v(t+2*k,2)}, {v(t+2*k,2)}, {v(t+8+2*k,2)}" for k in range(4)]
    else: c += [f"v_mul_f32 v{t+k}, v{t+k}, v{t+8+k}" for k in range(8)]
    c += [f"v_cvt_pk_bf16_f32 v{t+8+k}, v{t+2*k}, v{t+2*k+1}" for k in range(4)]
    c += [f"buffer_store_dwordx4 {v(t+8,4)}, v{V3_RD}, {s(SRD_WS,4)}, s{S_HO} offen offset:{(j & 1)*1024} sc1"]
    if j & 1: c += [f"s_add_u32 s{S_HO}, s{S_HO}, {NSL*2048}"]
    return tag(c, "h")

A_GF = 160
def g_epilogue():
    c = blk_to(S_T0) + [f"s_lshl_b32 s{S_T0}, s{S_T0}, 9", f"s_add_u32 s{S_T0}, s{S_T0}, {WS_G}", f"s_mov_b32 s{S_T1}, {f2u(-LOG2E):#x}",
         f"v_and_b32 v2, 15, v{V_LANE}", "v_lshlrev_b32 v2, 2, v2"]
    c += [f"v_accvgpr_read_b32 v{4+j}, a{128+4*j}" for j in range(8)]
    c += [f"v_mul_f32 v{4+j}, s{S_T1}, v{4+j}" for j in range(8)]
    c += [f"v_exp_f32 v{4+j}, v{4+j}" for j in range(8)]
    c += [f"v_add_f32 v{4+j}, 1.0, v{4+j}" for j in range(8)]
    c += [f"v_rcp_f32 v{4+j}, v{4+j}" for j in range(8)]
    c += [f"buffer_store_dword v{4+j}, v2, {s(SRD_WS,4)}, s{S_T0} offen offset:{64*j} sc1" for j in range(8)]
    return tag(c, "h")

def p2(glu, vm, lg, s15):
    sfx = "g" if glu else "n"
    c = []
    sts = kv_stores()
    cv = conv_stream(2) + conv_stream(3)
    pre3, set3 = p3_setup()
    fd = first_dmas()
    if not glu:
        c += flat(["s_nop 7"] + cv + lane_to(0) + ["v_lshrrev_b32 v0, 4, v0", "v_lshlrev_b32 v0, 4, v0"] + srd(SRD_K, P_GW, 1024))
        c += tag([f"buffer_load_dwordx4 {a_(A_GF + 4*k, 4)}, v0, {s(SRD_K,4)}, 0 offen offset:{64*k}" for k in range(16)], "gate")
    k = 0
    sig_done = False
    for st in range(8, 16):
        streams = {q: [] for q in range(4)}; pre = {}; need = {}; post = {}; alt = {}
        if st == 8 and glu:
            streams = {0: cv[:66], 1: cv[66:132], 2: cv[132:], 3: []}
        for q in range(4):
            qi = (st - 8)*4 + q
            k1 = 0 if qi < opt.st0 else min(len(sts), ((qi + 1 - opt.st0)*len(sts) + (opt.st1 - opt.st0) - 1)//(opt.st1 - opt.st0))
            if q == 2 and k >= len(sts) and not sig_done:
                need[2] = ["kv"]; post[2] = signal("k", f"L_sig_kv_{sfx}", 0); sig_done = True
            streams[q] = merge_streams([flat(streams[q]), flat(sts[k:k1])]); k = k1
        if st == 14:
            ini = init_stores()
            streams[0] = ini[:13]; streams[1] = ini[13:19]; streams[2] = ini[19:]
        if not glu:
            if st == 8: need[0] = ["gate"]
            alt[2] = [f"{MF16} {a_(128+4*j,4)}, {a_(A_GF + 4*((st-8)*2+kh), 4)}, {v(fj(j,kh),4)}, {'0' if st == 8 and kh == 0 else a_(128+4*j,4)}" for j in range(8) for kh in range(2)]
        if st == 14:
            assert sig_done or not glu
            pre[3] = pre3; streams[3] = list(streams[3]) + set3
        if st == 15:
            need[0] = ["poll"]
            post[0] = [f"v_cmp_ne_u32 vcc, s{S_TAG}, v{V_PV}", f"s_cbranch_vccnz L_spin_kv{sfx}", f"L_spin_kv{sfx}_r:"]
            spin(f"L_spin_kv{sfx}", V_PA, SRD_WS, f"s{S_T3}", f"s{S_TAG}", V_PV, f"L_spin_kv{sfx}_r")
            streams[0] = s15
            qr = q_reads(0) + q_reads(1)
            streams[1] = merge_streams([fd[:11], flat(qr[:32])])
            streams[2] = flat(["s_nop 7"] if not glu else []) + merge_streams([fd[11:], flat(qr[32:66])]); streams[3] = qr[66:]
            post[3] = q_finish()
        code = gemm_step(st, glu, streams, pre, need, post, alt)
        if opt.fine and st < 15: code += stamp()
        code, lg = auto_wait(code, lg)
        c += code
    assert sig_done
    c += stamp()
    c += p3_prologue(glu)
    c, vm = vm_pass(c, vm)
    assert vm[-12:] == ["st2"]*8 + ["st3"]*4
    return c

def sm_stream(g, b):
    S = VS(g, b); X = V_X + 8*g; P = VP(g, b); sm = V_SUM[g]
    e = lambda j: f"v_exp_f32 v{X + j % 8}, v{S + j}"
    c = [e(0), e(1), e(2)]
    for j in range(1, 16):
        c.append(f"v_add_f32 v{sm}, v{X}, v{X+1}" if j == 1 else f"v_add_f32 v{sm}, v{sm}, v{X + j % 8}")
        if j & 1: c.append(f"v_cvt_pk_bf16_f32 v{P + j//2}, v{X + (j-1) % 8}, v{X + j % 8}")
        if j + 2 < 16: c.append(e(j + 2))
    return c
def merge_streams(ss):
    ss = [x for x in ss if x]
    if not ss: return []
    out = []; n = max(len(x) for x in ss); pos = [0]*len(ss)
    for k in range(1, n + 1):
        for i, x in enumerate(ss):
            while pos[i] < len(x)*k//n: out.append(x[pos[i]]); pos[i] += 1
    return out

def qk_mfma(groups, b):
    m = []
    for f in range(8):
        for g in groups:
            d = v(VS(g, b), 16)
            m.append(f"{MF32} {d}, {a_(A_KF + 4*f, 4)}, {a_(A_Q[g] + 4*f, 4)}, {v(VN(g), 16) if f == 0 else d}")
    return m
def pv_mfma(groups, b):
    m = []
    for f in range(8):
        db, mm = f >> 1, f & 1
        for g in groups:
            d = a_(A_O[g] + 16*db, 16)
            m.append(f"{MF32} {d}, {a_(A_VF + 4*f, 4)}, {v(VP(g, b) + 4*mm, 4)}, {d}")
    return m
def rdk(f, uu): return f"ds_read_b128 {a_(A_KF + 4*f, 4)}, v{V3_RD} offset:{uu*8192 + f*1024}"
def rdv(f, uu): return f"ds_read_b128 {a_(A_VF + 4*f, 4)}, v{V3_RD} offset:{16384 + uu*8192 + f*1024}"

def fix_stream(g, thr):
    def kc(j):
        ap, b = j >> 2, j & 3
        return 16*(ap & 1) + 8*(ap >> 1) + b
    ms = [f"s[{S_M0}:{S_M0+1}]", f"s[{S_M1}:{S_M1+1}]", f"s[{S_M2}:{S_M2+1}]"]
    cmp_ = lambda j: f"v_cmp_gt_i32 {ms[j % 3]}, {kc(j)}, v{thr}"
    c = [cmp_(0), cmp_(1)]
    for j in range(16):
        c += [cmp_(j + 2) if j + 2 < 16 else "s_nop 0"]
        c += [f"v_cndmask_b32 v{VN(g)+j}, v{VN(g)+j}, v{V3_NINF}, {ms[j % 3]}"]
    return c
def fixcall(g, it):
    F = S_FLO if g == 0 else S_FHI
    return [f"s_add_u32 s{S_T0}, s{F}, {32*it}", f"s_call_b64 s[{S_RET}:{S_RET+1}], L_fix{g}"]

def iteration(name, it, qk, sm, pv, pend, dma=True, rd_k=True, rd_v=True, vmn=16, loop=None, inl_fix=None, extra=()):
    c = []
    mq = qk_mfma(qk, it); mp = pv_mfma(pv, it)
    mf = mq + mp
    nq, n = len(mq), len(mf)
    pin = {}
    add = lambda p, x: pin.setdefault(p, []).append(x)
    uu = 1 - it
    kstep = max(len(qk), 1); vstep = len(pv)
    if it == 1:
        barpos = 2 if nq else -1
        if rd_k or rd_v: add(0, [f"v_add_u32 v{V3_RD}, 0x8000, v{V3_RD}"]); add(1, [f"v_and_b32 v{V3_RD}, 0x1ffff, v{V3_RD}"])
        add(barpos, [f"s_waitcnt vmcnt({vmn}) lgkmcnt(0)", "s_barrier", ".pad16"])
    if rd_k:
        for f in range(8):
            p = f*kstep + kstep - 1
            if it == 1: p = max(p, 3 + (f*(nq - 3))//8)
            if f == 6 and it == 0: add(p, "s_waitcnt lgkmcnt(6)")
            add(p, rdk(f, uu))
    if rd_v:
        for f in range(8):
            if f == 6 and rd_k: add(nq + f*vstep + vstep - 1, "s_waitcnt lgkmcnt(6)")
            add(nq + f*vstep + vstep - 1, rdv(f, uu))
    if dma:
        g, g2 = stage_dma()
        if it == 0:
            for k, x in enumerate(g2): add((k*(n - 2))//len(g2), x)
        else:
            for k, x in enumerate(g): add(nq + (k*(n - 2 - nq))//len(g), x)
    thr = S_THR
    if loop and it == 1:
        thr = S_THRB
        add(0, [f"s_add_u32 s{S_TRIP}, s{S_TRIP}, 1"]); add(1, [f"s_cmp_eq_u32 s{S_TRIP}, s{S_LAST}", f"s_cselect_b32 s{S_THRB}, -1.0, s{S_THR}"])
    st = [f"v_add_f32 v{V_L[g]}, v{V_L[g]}, v{V_SUM[g]}" for g in pend]
    body = merge_streams([sm_stream(g, 1 - it) for g in sm])
    if inl_fix is not None:
        F = S_FLO if inl_fix == 0 else S_FHI
        fx = [f"v_subrev_u32 v{V3_T}, s{F}, v{V3_THR}", f"v_subrev_u32 v{V3_T}, 32, v{V3_T}"] + fix_stream(inl_fix, V3_T)
        body = body[:10] + merge_streams([body[10:], fx])
    st += merge_streams([flat(body), flat(extra)])
    post = []
    if sm:
        ck = V_SUM[sm[0]]
        if len(sm) == 2:
            st += [f"v_add_f32 v{V_CK}, v{V_SUM[0]}, v{V_SUM[1]}"]; ck = V_CK
        st += [f"v_cmp_nge_f32 vcc, s{thr}, v{ck}"]
        calls = [f"s_call_b64 s[{S_RET}:{S_RET+1}], L_rare{g}{1-it}" for g in sm]
        if loop and it == 1:
            post = [f"s_cbranch_vccz {loop}", f"v_cmp_nge_f32 vcc, s{S_THR}, v{ck}", f"s_cbranch_vccnz {name}_rare", f"{name}_rarer:"]
            outofline.extend(flat([f"{name}_rare:"] + calls + [f"s_cmp_lg_u32 s{S_TRIP}, s{S_LAST}", f"s_cbranch_scc1 {loop}", f"s_branch {name}_rarer"]))
        else:
            post = [f"s_cbranch_vccnz {name}_rare", f"{name}_rarer:"]
            outofline.extend(flat([f"{name}_rare:"] + calls + [f"s_branch {name}_rarer"]))
    add(n - 1, post)
    pre = pin.pop(-1, [])
    for p in pin:
        pin[p] = [Ins("s_nop 0 ; PAD") if x.text == ".pad16" else x for x in flat(pin[p])]
        if any(x.text.endswith("PAD") for x in pin[p]): pin[p] += [Ins("s_nop 0 ; PAD")]*3
    fill, cap = place(n, pin, st, n - 2)
    for p in fill: fill[p] = [x for x in fill[p] if not x.text.endswith("PAD")]
    fill[-1] = [x for x in flat(pre) if x.text != ".pad16"]
    c += interleave(mf, fill)
    return flat(c), cap

def body(kind, extra=()):
    B2, H = [0, 1], [1]
    if kind == "D":
        A, c1 = iteration("L_DA", 0, B2, B2, B2, B2)
        B, c2 = iteration("L_DB", 1, B2, B2, B2, B2, loop="L_D")
    elif kind == "Dp":
        A, c1 = iteration("L_DpA", 0, B2, B2, B2, B2, inl_fix=0)
        B, c2 = iteration("L_DpB", 1, B2, B2, B2, B2)
    elif kind == "T":
        A, c1 = iteration("L_TA", 0, H, B2, B2, B2)
        B, c2 = iteration("L_TB", 1, H, H, B2, B2, extra=extra)
        def cond(it):
            outofline.extend(flat([f"L_Tfix{it}:"] + fixcall(1, it) + [f"s_branch L_Tfix{it}_r"]))
            return flat([f"s_cmp_eq_u32 s{S_TLO}, 15", f"s_cbranch_scc1 L_Tfix{it}", f"L_Tfix{it}_r:"])
        pf = []
        if opt.pf4:
            pf = flat([f"s_cmp_eq_u32 s{S_CH}, 0", f"s_cselect_b32 s{SRD_A}, s{P_WO}, s{P_WD}", f"s_cselect_b32 s{SRD_A+1}, s{P_WO+1}, s{P_WD+1}",
              f"s_cselect_b32 s{S_T0}, 64, 28", f"s_lshl_b32 s{SRD_A+2}, s{S_T0}, 16",
              f"s_lshl_b32 s{S_T0}, s{S_RH}, 8", f"s_add_u32 s{S_T0}, s{S_T0}, s2", f"s_lshl_b32 s{S_T0}, s{S_T0}, 13",
              f"v_lshlrev_b32 v{V_PA}, 7, v{V_LANE}", f"buffer_load_dword v253, v{V_PA}, {s(SRD_A,4)}, s{S_T0} offen"])
        A = pf + cond(0) + A; B = cond(1) + B
    elif kind == "S":
        A, c1 = iteration("L_SA", 0, H, H, H, H)
        B, c2 = iteration("L_SB", 1, H, H, H, H, loop="L_S")
    elif kind == "Sp":
        A, c1 = iteration("L_SpA", 0, H, H, H, H, inl_fix=1)
        B, c2 = iteration("L_SpB", 1, H, H, H, H)
    else:
        A, c1 = iteration("L_EA", 0, [], H, H, H, dma=False, rd_k=False, extra=extra)
        B, c2 = iteration("L_EB", 1, [], [], H, H, dma=False, rd_k=False, rd_v=False, vmn=opt.e_vm)
    print("body", kind, "caps", c1, c2, file=sys.stderr)
    return A + B

def rowmax(S, t):
    c = [f"v_max3_f32 v{t}, v{S}, v{S+1}, v{S+2}"]
    for j in range(3, 15, 2): c += [f"v_max3_f32 v{t}, v{t}, v{S+j}, v{S+j+1}"]
    c += [f"v_max_f32 v{t}, v{t}, v{S+15}", f"v_mov_b32 v{t+1}, v{t}", "s_nop 1", f"v_permlane32_swap_b32 v{t}, v{t+1}", f"v_max_f32 v{t}, v{t}, v{t+1}"]
    return c

def rare(g, b):
    t = V3_T
    c = [f"L_rare{g}{b}:", "s_nop 15"]
    c += rowmax(VS(g, b), t)
    c += [f"v_max_f32 v{t}, 0, v{t}", f"v_exp_f32 v{t+1}, -v{t}"]
    for j in range(16):
        c += [f"v_sub_f32 v{r+j}, v{r+j}, v{t}" for r in (VN(g), VS(g, 0), VS(g, 1))]
    c += [f"v_mul_f32 v{V_L[g]}, v{V_L[g]}, v{t+1}"]
    for j in range(0, 64, 4):
        c += [f"v_accvgpr_read_b32 v{t+2+k}, a{A_O[g]+j+k}" for k in range(4)]
        c += [f"v_mul_f32 v{t+2+k}, v{t+2+k}, v{t+1}" for k in range(4)]
        c += [f"v_accvgpr_write_b32 a{A_O[g]+j+k}, v{t+2+k}" for k in range(4)]
    c += sm_stream(g, b)
    c += ["s_nop 1", f"s_setpc_b64 s[{S_RET}:{S_RET+1}]"]
    return flat(c)

def fix(g):
    c = [f"L_fix{g}:", f"v_subrev_u32 v{V3_T}, s{S_T0}, v{V3_THR}"] + fix_stream(g, V3_T) + ["s_nop 1", f"s_setpc_b64 s[{S_RET}:{S_RET+1}]"]
    return flat(c)

def o_epilogue(g):
    t = V3_T
    Dg = S_DLO if g == 0 else S_DHI
    c = [f"s_mul_i32 s{S_T0}, s{Dg}, {NSL}", f"s_lshl_b32 s{S_T1}, s{S_H}, 2", f"s_add_u32 s{S_T0}, s{S_T0}, s{S_T1}",
         f"s_lshl_b32 s{S_T0}, s{S_T0}, 11", f"s_add_u32 s{S_T0}, s{S_T0}, {WS_A + 56*2048}"]
    c += [f"v_mov_b32 v{t}, v{V_L[g]}", f"v_mov_b32 v{t+1}, v{V_L[g]}", "s_nop 1", f"v_permlane32_swap_b32 v{t}, v{t+1}", f"v_add_f32 v{t}, v{t}, v{t+1}", f"v_rcp_f32 v{t}, v{t}", "s_nop 0", f"v_mov_b32 v{t+1}, v{t}"]
    for db in range(4):
        for m in range(2):
            q = t + 4 + 12*m
            c += [f"v_accvgpr_read_b32 v{q+4+k}, a{A_O[g] + 16*db + 8*m + k}" for k in range(8)]
            c += [f"v_pk_mul_f32 {v(q+4+2*k,2)}, {v(q+4+2*k,2)}, {v(t,2)}" for k in range(4)]
            c += [f"v_cvt_pk_bf16_f32 v{q+k}, v{q+4+2*k}, v{q+5+2*k}" for k in range(4)]
            c += [f"buffer_store_dwordx4 {v(q,4)}, v{V3_ST}, {s(SRD_WS,4)}, s{S_T0} offen offset:{m*512 + (db & 1)*2048} sc1"]
        if db == 1: c += [f"s_add_u32 s{S_T0}, s{S_T0}, 4096"]
    return tag(c, "ctx")

def align(): return flat([f".p2align {opt.align}"]) if opt.align else []

def p3_prologue(glu):
    sfx = "g" if glu else "n"
    t = V3_T
    H = (lambda j, pk: h_chunk(j, pk)) if glu else (lambda j, pk: [])
    c = []
    c += [f"s_lshl_b32 s{S_T0}, s{S_W}, 13", f"s_add_u32 s{S_T1}, s{S_T0}, 0x10000", f"s_sub_u32 s{S_T2}, {0x18000 + 7*8192}, s{S_T0}", f"s_lshl_b32 s{S_T0}, s{S_CH}, 15",
          f"s_sub_u32 s{S_T2}, s{S_T2}, s{S_T0}",
          f"v_add_u32 v{t+4}, s{S_T1}, v{V3_RD}", f"v_add_u32 v{t+5}, s{S_T2}, v{V3_RD}", f"v_add_u32 v{t+2}, 0x20000, v{V3_RD}"]
    if glu: c += h_head()
    c += [VmWait(["k0", "st0"]), "s_barrier"]
    rd = []
    for f in range(8):
        rd += [f"ds_read_b128 {a_(A_KF + 4*f, 4)}, v{t+2} offset:{f*1024}"]
        rd += [f"ds_read_b128 {a_(A_Q[g] + 4*f, 4)}, v{t+4+g} offset:{f*1024}" for g in range(2)]
    ini = [f"v_mov_b64 {v(VN(0)+2*j, 2)}, 0" for j in range(8)] + [f"v_mov_b64 {v(V_L[0], 2)}, 0", f"s_mov_b32 s{S_TRIP}, 0"]
    h0 = H(0, True) if glu else g_epilogue()
    c += rd[:12] + ini + merge_streams([flat(rd[12:]), h0[:24]]) + h0[24:]
    def pfix(u):
        return [f"s_cmp_lg_u32 s{S_TLO}, 0", f"s_cbranch_scc1 L_pf{u}{sfx}"] + fixcall(0, u) + [f"L_pf{u}{sfx}:"]
    c += pfix(0)
    c += ["s_waitcnt lgkmcnt(0)"]
    g, g2 = stage_dma("st1")
    pin = {2*f + 1: [f"ds_read_b128 {a_(A_KF + 4*f, 4)}, v{t+2} offset:{8192 + f*1024}"] for f in range(8)}
    h1 = H(1, False)
    fill, _ = place(16, pin, merge_streams([nopm0(g) + g2, h1[:45]]), 15)
    mq = qk_mfma([0, 1], 0)
    mq[1] = mq[1].rsplit(",", 1)[0] + ", 0"
    c += interleave(mq, fill)
    c += [rdv(f, 0) for f in range(6)] + (h1[45:] if glu else ["s_nop 5"])
    c += merge_streams([rowmax(VS(g, 0), t + 4 + 2*g) for g in range(2)])
    c += [f"v_mov_b32 v{t+5}, v{t+4}", f"v_sub_f32 v{t+8}, 0, v{t+6}", f"v_sub_f32 v{t+9}, 0, v{t+6}", f"v_mov_b32 v{t+7}, v{t+6}"]
    c += [f"v_pk_add_f32 {v(VN(0)+2*j,2)}, {v(VN(0)+2*j,2)}, {v(t+4,2)} neg_lo:[0,1] neg_hi:[0,1]" for j in range(8)]
    c += [f"v_mov_b64 {v(VN(1)+2*j, 2)}, {v(t+8,2)}" for j in range(8)]
    for g in range(2):
        c += [f"v_pk_add_f32 {v(VS(g,0)+2*j,2)}, {v(VS(g,0)+2*j,2)}, {v(t+4+2*g,2)} neg_lo:[0,1] neg_hi:[0,1]" for j in range(8)]
    c += ["s_waitcnt lgkmcnt(0)", "s_barrier"] + [rdv(f, 0) for f in range(6, 8)]
    c += pfix(1)
    pin = {2*f + 1: [rdk(f, 0)] for f in range(8)}
    fill, _ = place(16, pin, merge_streams([sm_stream(0, 0), sm_stream(1, 0)]), 15)
    c += ["s_nop 1"] + interleave(qk_mfma([0, 1], 1), fill)
    for j in range(2, 8): c += H(j, True)
    c += [f"v_mov_b64 {v(t, 2)}, 0", f"v_mov_b64 {v(t+2, 2)}, 0"]
    g, g2 = stage_dma("st2"); g3, _ = stage_dma("st3")
    fill, _ = place(8, {}, nopm0(g)[2:] + g2 + nopm0(g3), 7)
    c += nopm0(g)[:2] + interleave([f"{MF32} {a_(128 + 16*k, 16)}, {v(t,4)}, {v(t,4)}, 0" for k in range(8)], fill)
    c += ["s_waitcnt lgkmcnt(0)"]
    return flat(c)

def p3(pre_e, t_extra, pollh, e_extra):
    c = []
    D, so = auto_wait_loop(body("D"), [[]])
    Dp, so1 = auto_wait(body("Dp"), [[]] + so)
    T, so2 = auto_wait(body("T", t_extra), [[]] + so1)
    Sb, so3 = auto_wait_loop(body("S"), so2)
    Sp, so4 = auto_wait(body("Sp"), so2 + so3)
    E, _ = auto_wait(body("E", e_extra), so2 + so4)
    c += stamp()
    c += flat([f"s_cmp_eq_u32 s{S_TLO}, 0", "s_cbranch_scc1 L_T", f"s_sub_u32 s{S_LAST}, s{S_TLO}, 1", f"s_cmp_eq_u32 s{S_LAST}, 0", "s_cbranch_scc1 L_Dp",
               f"s_cmp_eq_u32 s{S_W}, 0", f"s_cselect_b32 s{S_LAST}, 1, s{S_LAST}"])
    c += align() + flat(["L_D:"]) + D
    c += flat([f"s_cmp_eq_u32 s{S_TRIP}, 1", "s_cbranch_scc1 L_sigD"])
    outofline.extend(flat(["L_sigD:"]) + signal("h", "L_sig_h1", V3_T) + flat([f"s_sub_u32 s{S_LAST}, s{S_TLO}, 1", f"s_cmp_lg_u32 s{S_LAST}, 1", "s_cbranch_scc1 L_D", "s_branch L_Dp"]))
    c += flat(["L_Dp:", f"s_cmp_lg_u32 s{S_RH}, 0", "s_cbranch_scc1 L_Dp1"] + fixcall(0, 0) + ["L_Dp1:"]) + Dp
    c += flat(["L_T:"]) + stamp() + T + stamp()
    c += flat([f"s_cmp_lg_u32 s{S_CH}, 0", "s_cbranch_scc1 L_noepi", f"s_cmp_lg_u32 s{S_P}, 0", "s_cbranch_scc1 L_sig_h0"]) + signal("h", "L_sig_h0", V3_T)
    c += flat([f"s_call_b64 s[{S_RET}:{S_RET+1}], L_epi0", "L_noepi:"])
    c += stamp()
    c += flat([f"s_cmp_eq_u32 s{S_TLO}, 15", "s_cbranch_scc1 L_spin_h", f"s_add_u32 s{S_TRIP}, s{S_TLO}, 1", f"s_sub_u32 s{S_LAST}, s{S_THI}, 1"])
    c += align() + flat(["L_S:"]) + Sb
    c += flat([f"s_cmp_eq_u32 s{S_RH}, 0", "s_cbranch_scc1 L_Sp1"] + fixcall(1, 0) + ["L_Sp1:"]) + pollh + Sp
    c += flat(["L_E:"]) + stamp() + pre_e + E + stamp()
    c += flat([f"s_cmp_eq_u32 s{S_CH}, 0", "s_cbranch_scc1 L_epi_hi", f"s_call_b64 s[{S_RET}:{S_RET+1}], L_epi0", "s_barrier", "L_epi_hi:"])
    outofline.extend(flat(["L_epi0:", "s_nop 7"]) + o_epilogue(0) + flat([f"s_setpc_b64 s[{S_RET}:{S_RET+1}]"]))
    for g in range(2):
        outofline.extend(fix(g))
        for b in range(2): outofline.extend(rare(g, b))
    return c
```

```python
from g3 import *

S4_AH, S4_AC, S4_WH, S4_WC, S4_HA, S4_HW, S4_KS, S4_MT = S_ACTA, S_ACTB, S_W0, S_W1, S_CNT, 8, 9, 0
S4_AB, S4_WB, S4_GO = 1, 10, 11
V4_DW = 2
V4_A = 6
V4_G = 8
V4_GA = 12
V4_DL = 14
V4_FA = 15
V4_OA = 16
V4_RB = 32
V4_T = 48
V4_ACC = (64, 128)
V4_WF = 192
A4_X = 0
NP = 23
def slot(n): return (n + 6) % 8

def ld_w(n):
    c = [f"s_add_u32 m0, s{S_WL}, {32768 + slot(n)*16384}"]
    if n < 7:
        c += [f"buffer_load_dwordx4 v{V4_DW+d}, {s(SRD_W0,4)}, s{S4_WH} offen offset:{d*1024} lds" for d in range(4)]
        c += [f"s_add_u32 s{S4_WH}, s{S4_WH}, 65536"]
    else:
        c = [f"s_add_u32 s{S4_WC}, s{S4_WB}, s{S4_HW}"] + c
        c += [f"buffer_load_dwordx4 v{V4_DW+d}, {s(SRD_W1,4)}, s{S4_WC} offen offset:{d*1024} lds" for d in range(4)]
        c += [f"s_add_u32 s{S4_HW}, s{S4_HW}, 65536", f"s_and_b32 s{S4_HW}, s{S4_HW}, {16*65536 - 1}"]
    return tag(c, ("w", n))
def ld_a(n):
    so = S4_AH if n < 7 else S4_AC
    c = [] if n < 7 else [f"s_add_u32 s{S4_AC}, s{S4_AB}, s{S4_HA}"]
    for sl in range(2):
        for j in range(2):
            c += [f"buffer_load_dwordx4 {a_(A4_X + (n % 6)*16 + (j*2+sl)*4, 4)}, v{V4_A+j}, {s(SRD_WS,4)}, s{so} offen offset:{sl*2048} sc1"]
    if n < 7: c += [f"s_add_u32 s{S4_AH}, s{S4_AH}, 4096"]
    else: c += [f"s_add_u32 s{S4_HA}, s{S4_HA}, 4096", f"s_and_b32 s{S4_HA}, s{S4_HA}, {16*4096 - 1}"]
    return tag(c, ("a", n))
def rd_wf(n, i):
    part = int(n >= 7); sl_ = slot(n)
    base = V4_RB + (sl_ >> 2)*8 + i
    ro = 2048 if part else 4096
    return [f"ds_read_b64_tr_b16 {v(V4_WF + (i*2+sl)*4 + 2*r, 2)}, v{base} offset:{(sl_ & 3)*16384 + sl*8192 + r*ro}" for sl in range(2) for r in range(2)]

def with_nop(g):
    out = []
    for x in g:
        out.append(x)
        if ("s", "m0") in x.defs: out.append(Ins("s_nop 0"))
    return out

def p4_setup():
    L, T = V_LANE, V4_T
    G, L16 = T + 10, T + 11
    c = srd(SRD_W0, P_WD, 1792*1024) + srd(SRD_W1, P_WO, 4096*1024)
    c += [f"s_lshr_b32 s{S4_KS}, s{S_H}, 3", f"s_bfe_u32 s{S_T1}, s{S_H}, 0x10002", f"s_mul_i32 s{S_T1}, s{S_T1}, 15", f"s_xor_b32 s{S4_MT}, s{S_P}, s{S_T1}"]
    c += [f"s_and_b32 s{S_T2}, s{S_H}, 3", f"s_lshl_b32 s{S_T2}, s{S_T2}, 8", f"s_lshl_b32 s{S_T1}, s{S_W}, 14", f"s_add_u32 s{S_T2}, s{S_T2}, s{S_T1}",
          f"s_mul_i32 s{S4_WH}, s{S4_KS}, {448*1024}", f"s_add_u32 s{S4_WH}, s{S4_WH}, s{S_T2}",
          f"s_lshl_b32 s{S4_WB}, s{S4_KS}, 20", f"s_add_u32 s{S4_WB}, s{S4_WB}, s{S_T2}",
          f"s_and_b32 s{S_T2}, s{S_H}, 7", f"s_lshl_b32 s{S4_HW}, s{S_T2}, 17", f"s_lshl_b32 s{S4_HA}, s{S_T2}, 13"]
    c += [f"s_lshl_b32 s{S_T2}, s{S4_MT}, 2", f"s_add_u32 s{S_T2}, s{S_T2}, s{S_W}", f"s_mul_i32 s{S_T1}, s{S_T2}, {NSL*2048}", f"s_add_u32 s{S_T1}, s{S_T1}, {WS_A}",
          f"s_mul_i32 s{S4_AH}, s{S4_KS}, {14*2048}", f"s_add_u32 s{S4_AH}, s{S4_AH}, s{S_T1}",
          f"s_lshl_b32 s{S4_AB}, s{S4_KS}, 16", f"s_add_u32 s{S4_AB}, s{S4_AB}, s{S_T1}", f"s_add_u32 s{S4_AB}, s{S4_AB}, {56*2048}",
          f"s_lshl_b32 s{S4_GO}, s{S_T2}, 7", f"s_add_u32 s{S4_GO}, s{S4_GO}, {WS_G}"]
    sc = c
    c = [f"v_lshrrev_b32 v{G}, 4, v{L}", f"v_and_b32 v{L16}, 15, v{L}"]
    c += [f"v_lshlrev_b32 v{T}, 10, v{G}", f"v_lshlrev_b32 v{T+1}, 1, v{G}", f"v_xor_b32 v{T+1}, v{T+1}, v{L16}", f"v_xor_b32 v{T+2}, 8, v{T+1}",
          f"v_lshl_add_u32 v{V4_DW}, v{T+1}, 4, v{T}", f"v_lshl_add_u32 v{T+2}, v{T+2}, 4, v{T}", f"v_add_u32 v{V4_DW+1}, {4096 - 1024}, v{T+2}",
          f"v_add_u32 v{V4_DW+2}, {2*(4096 - 1024)}, v{V4_DW}", f"v_add_u32 v{V4_DW+3}, {3*(4096 - 1024)}, v{T+2}"]
    c += [f"s_and_b32 s{S_T2}, s{S4_KS}, 1", f"s_lshl_b32 s{S_T1}, s{S_T2}, 10", f"v_lshl_add_u32 v{V4_A}, v{L}, 4, s{S_T1}", f"v_xor_b32 v{V4_A+1}, 0x400, v{V4_A}",
          f"s_lshl_b32 s{S_T1}, s{S_T2}, 6", f"v_lshl_add_u32 v{V4_GA}, v{L16}, 2, s{S_T1}", f"v_xor_b32 v{V4_GA+1}, 64, v{V4_GA}"]
    c += [f"v_lshrrev_b32 v{T+2}, 2, v{L16}", f"v_and_b32 v{T+3}, 3, v{L16}", f"v_and_b32 v{T+4}, 1, v{G}", f"v_lshl_add_u32 v{T+5}, v{T+4}, 2, v{T+2}",
          f"v_lshl_add_u32 v{T+6}, v{G}, 2, v{T+2}", f"v_lshrrev_b32 v{T+7}, 1, v{G}", f"v_lshlrev_b32 v{V4_DL}, 11, v{T+7}",
          f"v_lshlrev_b32 v{T+3}, 3, v{T+3}", f"v_lshl_add_u32 v{T+6}, v{T+6}, 8, v{T+3}", f"v_add_u32 v{T+6}, 0x8000, v{T+6}",
          f"s_lshr_b32 s{S_T2}, s{S4_KS}, 1", f"s_lshl_b32 s{S_T2}, s{S_T2}, 2", f"v_xor_b32 v{T+5}, s{S_T2}, v{T+5}"]
    for i in range(8):
        c += [f"v_xor_b32 v{T+8}, {i}, v{T+5}", f"v_lshl_add_u32 v{V4_RB+i}, v{T+8}, 5, v{T+6}", f"v_add_u32 v{V4_RB+8+i}, 0x10000, v{V4_RB+i}"]
    c += [f"v_and_b32 v{V4_FA}, 7, v{L}", f"v_lshlrev_b32 v{V4_FA}, 2, v{V4_FA}", f"v_lshlrev_b32 v{V4_OA}, 10, v{L16}", f"v_lshl_add_u32 v{V4_OA}, v{G}, 3, v{V4_OA}"]
    c += [f"s_lshl_b32 s{S_T1}, s{S_P}, 7", f"s_add_u32 s{S_T1}, s{S_T1}, {WS_FH}", f"v_and_b32 v{V_PA}, 31, v{L}", f"v_lshl_add_u32 v{V_PA}, v{V_PA}, 2, s{S_T1}"]
    return flat(sc), flat(c)

def poll_h(): return flat([f"buffer_load_dword v{V_PV}, v{V_PA}, {s(SRD_WS,4)}, 0 offen sc1"])
def pre_e():
    c = flat(["s_waitcnt vmcnt(8)", f"v_cmp_ne_u32 vcc, s{S_TAG}, v{V_PV}", "s_cbranch_vccnz L_spin_h", "L_spin_h_r:"])
    spin("L_spin_h", V_PA, SRD_WS, "0", f"s{S_TAG}", V_PV, "L_spin_h_r")
    return c
def early_loads():
    c = with_nop(ld_w(0)) + ld_a(0) + with_nop(ld_w(1))
    c += tag([f"buffer_load_dword v{V4_G+j}, v{V4_GA+j}, {s(SRD_WS,4)}, s{S4_GO} offen sc1" for j in range(2)], "g")
    c += ld_a(1)
    return c

def p4():
    T = V4_T
    L, PA, PE, PV = V_LANE, V4_FA, V_PE, V_PV
    _, vm0 = vm_pass(early_loads(), [])
    c = with_nop(ld_w(2)) + ld_a(2) + with_nop(ld_w(3)) + flat(srd(SRD_V, P_OUT, 2048*1024))
    c += o_epilogue(1)
    c += stamp()
    c += [VmWait([("w", 0)]), Ins("s_barrier")]
    for i in range(8): c += flat(rd_wf(0, i))
    sched = {n: [ld_w(n + 4) if n + 4 < NP else [], ld_a(n + 3) if n + 3 < NP else []] for n in range(NP)}
    sched[6] = [ld_w(10), ld_w(11)]; sched[7] = [ld_a(9), ld_a(10)]
    sig = signal("c", "L_sig_c", 0)
    for n in range(NP):
        part = int(n >= 7)
        need = [("a", n)] + ([("w", n + 1)] if n + 1 < NP else [])
        if n == opt.sig_it: need += ["ctx"]
        if n == 7: need += ["F"]
        it = [VmWait(need, lg0=False)]
        if n + 1 < NP: it += [Ins("s_barrier")]
        if opt.fine == 2 and n < 12 and n != 7: it += stamp()
        if n == opt.sig_it: it += sig
        if n == 7:
            it += stamp()
            it += flat([f"v_cmp_ne_u32 vcc, s{S_TAG}, v{PV}", "s_cbranch_vccnz L_spin_c", "L_spin_c_r:"])
            spin("L_spin_c", PA, SRD_WS, f"s{S_T3}", f"s{S_TAG}", PV, "L_spin_c_r")
            it += stamp()
        mf = []
        for i in range(8):
            for j in range(2):
                for sl in range(2):
                    d = v(V4_ACC[part] + (i*2+j)*4, 4)
                    mf.append(f"{MF16} {d}, {v(V4_WF + (i*2+sl)*4, 4)}, {a_(A4_X + (n % 6)*16 + (j*2+sl)*4, 4)}, {'0' if n in (0, 7) and sl == 0 else d}")
        pin = {}
        if n + 1 < NP:
            for i in range(8):
                r = rd_wf(n + 1, i)
                for k in range(4): pin.setdefault(min(4*i + 3 + k, 31), []).append(r[k])
        for p_ in (2, 10, 18): pin.setdefault(p_, []).insert(0, Ins(f"s_waitcnt lgkmcnt({4 if p_ == 2 else 8})"))
        st = []
        if n == 5:
            st += flat([f"s_lshl_b32 s{S_T3}, s{S_P}, 2", f"s_add_u32 s{S_T3}, s{S_T3}, s{S4_KS}", f"s_lshl_b32 s{S_T3}, s{S_T3}, 5", f"s_add_u32 s{S_T3}, s{S_T3}, {WS_F}"])
            st += tag([f"buffer_load_dword v{PV}, v{PA}, {s(SRD_WS,4)}, s{S_T3} offen sc1"], "F")
        st += with_nop(sched[n][0]) + with_nop(sched[n][1])
        if n == 5: st += flat([f"v_add_u32 v{V4_RB+i}, v{V4_RB+i}, v{V4_DL}" for i in range(8)])
        if n == 6: it += flat([f"v_add_u32 v{V4_RB+8+i}, v{V4_RB+8+i}, v{V4_DL}" for i in range(8)])
        if n == 8: st += flat([f"v_sub_f32 v{V4_G+2+j}, 1.0, v{V4_G+j}" for j in range(2)])
        if 9 <= n < 17:
            i = n - 9
            st = merge_streams([st, flat([f"v_mul_f32 v{V4_ACC[0] + (i*2+j)*4 + b}, v{V4_ACC[0] + (i*2+j)*4 + b}, v{V4_G+2+j}" for j in range(2) for b in range(4)])])
        fill, _ = place(32, pin, st, 30)
        c += it + interleave(mf, fill)
    c, _ = auto_wait([x for x in c], [[]])
    c, vm = vm_pass(c, vm0)
    c += stamp()
    B, A = V4_ACC
    e = [f"v_lshlrev_b32 v{T}, 4, v{L}"]
    e += [f"s_lshl_b32 s{S_T1}, s{S4_KS}, 15", f"s_add_u32 s{S_T1}, s{S_T1}, s{S_XO}", "s_nop 2"]
    def comb(q):
        j, hf = q & 1, q >> 1
        return [f"v_fmac_f32 v{B + ((4*hf+i)*2+j)*4 + b}, v{A + ((4*hf+i)*2+j)*4 + b}, v{V4_G+j}" for i in range(4) for b in range(4)]
    for q in range(1, 4):
        j, hf = q & 1, q >> 1
        P = 192 + 8*q
        e += comb(q)
        e += [f"s_xor_b32 s{S_T0}, s{S4_KS}, {q}", f"s_lshl_b32 s{S_T0}, s{S_T0}, 15", f"s_add_u32 s{S_T0}, s{S_T0}, s{S_XO}", f"s_add_u32 s{S_T0}, s{S_T0}, {q*8192}"]
        for i in range(4):
            r = B + ((4*hf+i)*2+j)*4
            e += [f"v_cvt_pk_bf16_f32 v{P+2*i}, v{r}, v{r+1}", f"v_cvt_pk_bf16_f32 v{P+2*i+1}, v{r+2}, v{r+3}"]
            if i & 1: e += [f"buffer_store_dwordx4 {v(P + 4*(i >> 1), 4)}, v{T}, {s(SRD_WS,4)}, s{S_T0} offen offset:{(i >> 1)*1024} sc1"]
    e += comb(0)
    e += [f"s_lshl_b32 s{S_T0}, s{S4_MT}, 2", f"s_add_u32 s{S_T0}, s{S_T0}, s{S_W}", f"s_lshl_b32 s{S_T0}, s{S_T0}, 1", f"s_and_b32 s{S_T2}, s{S4_KS}, 1", f"s_add_u32 s{S_T0}, s{S_T0}, s{S_T2}",
          f"s_lshl_b32 s{S_T0}, s{S_T0}, 14", f"s_and_b32 s{S_T2}, s{S_H}, 3", f"s_lshl_b32 s{S_T2}, s{S_T2}, 8", f"s_add_u32 s{S_T0}, s{S_T0}, s{S_T2}",
          f"s_lshr_b32 s{S_T2}, s{S4_KS}, 1", f"s_lshl_b32 s{S_T2}, s{S_T2}, 7", f"s_add_u32 s{S_T0}, s{S_T0}, s{S_T2}",
          f"v_add_u32 v{T+2}, 8192, v{T}", f"v_add_u32 v{T+3}, 16384, v{T}", f"v_add_u32 v{T+4}, 24576, v{T}", f"s_mov_b32 s{S_T4}, 0"]
    e += stamp()
    R = 128
    e += ["L_x:"]
    for q in range(1, 4):
        e += [f"buffer_load_dwordx4 {v(R + 8*q + 4*k, 4)}, v{T+1+q}, {s(SRD_WS,4)}, s{S_T1} offen offset:{k*1024} sc1" for k in range(2)]
    e += ["s_waitcnt vmcnt(0)"]
    e += [f"v_max3_u32 v{T+5}, v{R+8}, v{R+9}, v{R+10}"]
    for k in range(11, 31, 2): e += [f"v_max3_u32 v{T+5}, v{T+5}, v{R+k}, v{R+k+1}"]
    e += [f"v_max_u32 v{T+5}, v{T+5}, v{R+31}", f"v_cmp_eq_u32 vcc, -1, v{T+5}", f"s_add_u32 s{S_T4}, s{S_T4}, 1", "s_cbranch_vccz L_x_ok",
          "s_sleep 1", f"s_cmp_lt_u32 s{S_T4}, 100000", "s_cbranch_scc1 L_x", "L_x_ok:"]
    e += stamp()
    for i in range(4):
        r = B + i*8
        for q in range(1, 4):
            x = R + 8*q + 2*i
            e += [f"v_lshlrev_b32 v{T+5}, 16, v{x}", f"v_and_b32 v{T+6}, 0xffff0000, v{x}", f"v_lshlrev_b32 v{T+7}, 16, v{x+1}", f"v_and_b32 v{T+8}, 0xffff0000, v{x+1}"]
            e += [f"v_add_f32 v{r+b}, v{r+b}, v{T+5+b}" for b in range(4)]
        e += [f"v_cvt_pk_bf16_f32 v{r}, v{r}, v{r+1}", f"v_cvt_pk_bf16_f32 v{r+1}, v{r+2}, v{r+3}",
              f"buffer_store_dwordx2 {v(r,2)}, v{V4_OA}, {s(SRD_V,4)}, s{S_T0} offen offset:{32*i}"]
    return c + flat(e)

def auto_wait_seg(code):
    out = []; seg = []
    for x in code:
        if x.kind == "smem":
            if seg: out += auto_wait(seg, [[]])[0]; seg = []
            out.append(x)
        else: seg.append(x)
    out += auto_wait(seg, [[]])[0]
    return out, None

def build():
    nstamp[0] = 0
    del outofline[:]
    c = setup()
    c, vm = vm_pass(c, [])
    c += stamp()
    x, vm, lg = p1(vm)
    c += x
    if opt.stamps: c += stamp()
    c += flat([f"s_cmp_eq_u32 s{S_GLU}, 0", "s_cbranch_scc1 L_p2n"])
    n0 = nstamp[0]
    c += p2(True, vm, lg, p4_setup()[0])
    nstamp[0] = n0
    p2n = p2(False, vm, lg, p4_setup()[0])
    c += flat(["L_p2_done:"])
    c += p3(pre_e(), p4_setup()[1], poll_h(), early_loads())
    c += stamp()
    c += p4()
    if opt.stamps: c += flat(["s_waitcnt vmcnt(0)"]) + stamp()
    c += flat(["L_end:", "s_endpgm"])
    c += flat(["L_p2n:"]) + p2n + flat(["s_branch L_p2_done"])
    c += outofline
    c += flat(["s_endpgm", ".fill 1024, 4, 0xbf800000"])
    errs = check_hazards(c)
    for e in errs[:40]: print("HAZARD", e, file=sys.stderr)
    assert not errs
    hdr = open("cdna_kernels/" + NAME + ".s.ref").read().split("; Override launch")[0]
    out = hdr + f"""; Written with my own generator script: one fused persistent kernel, 256 workgroups, one per CU.
; @launch grid=(256,1,1) block=(256,1,1) lds=163840
.amdgcn_target "amdgcn-amd-amdhsa--gfx950"
.text
.globl {NAME}_kernel
.p2align 8
.type {NAME}_kernel,@function
{NAME}_kernel:
""" + text(c) + f""".section .rodata,"a"
.p2align 6
.amdhsa_kernel {NAME}_kernel
  .amdhsa_next_free_vgpr 512
  .amdhsa_next_free_sgpr 102
  .amdhsa_accum_offset 256
  .amdhsa_group_segment_fixed_size 0
  .amdhsa_kernarg_size 112
  .amdhsa_user_sgpr_count 2
  .amdhsa_user_sgpr_kernarg_segment_ptr 1
  .amdhsa_system_sgpr_workgroup_id_x 1
.end_amdhsa_kernel
"""
    return out

if __name__ == "__main__":
    opt.stamps = "--stamps" in sys.argv
    opt.sig_it = 3
    opt.e_vm = 18
    opt.pfcode = 21
    for a in sys.argv[2:]:
        if "=" in a:
            k, x = a.split("="); setattr(opt, k, int(x))
    o = build()
    open(sys.argv[1], "w").write(o)
    print("nstamps", nstamp[0], "bytes", len(o), file=sys.stderr)
```

```python
import sys, struct, math
from asmlib import *

NAME = "gated_mix__compressed_kv_cla__glu_gated_glu__prompt"
def f2u(x): return struct.unpack("<I", struct.pack("<f", x))[0]
QSCALE = math.log2(math.e) / math.sqrt(128.0)
LOG2E = math.log2(math.e)

WS_K = 0
WS_V = 16 << 20
WS_A = 32 << 20
WS_X = 56 << 20
WS_F = 64 << 20
WS_FH = WS_F + 4096
WS_FK = WS_F + 8192
WS_G = WS_F + 65536
WS_T = 65 << 20
WS_BYTES = 72 << 20
NSL = 184

P_X, P_C, P_WQ, P_WUK, P_WUV, P_WO, P_BX, P_WG, P_WU, P_WD, P_GW, P_OUT, P_DBG, P_WS = range(4, 32, 2)
S_H, S_P, S_W, S_T0 = 32, 33, 34, 35
SRD_A, SRD_W0, SRD_W1, SRD_WS, SRD_DBG, SRD_K, SRD_V = 36, 40, 44, 48, 52, 56, 60
S_ACTA, S_ACTB, S_W0, S_W1, S_WL, S_CNT, S_SL = 64, 65, 66, 67, 69, 70, 71
S_STK = 68
S_T1, S_T2, S_T3, S_T4 = 72, 73, 74, 75
S_RH, S_CH = 76, 77
S_TRIP, S_TLO, S_THI, S_RING, S_KOFF, S_DLO, S_DHI, S_THR = 78, 79, 80, 81, 82, 83, 84, 85
S_RET = 86
S_LAST, S_THRB = 88, 89
S_M0, S_M1 = 90, 92
S_STAMP = 94
S_GLU, S_STV = 98, 99
S_XO = 3
S_TAG = 101
S_M2 = 16

MF16 = "v_mfma_f32_16x16x32_bf16"
MF32 = "v_mfma_f32_32x32x16_bf16"

class Opt:
    wsoff = 0
    fine = 0
    stamps = False
    pfcode = 1
    pf4 = 1
    nt1 = 1
    nt2 = 0
    ntt = 0
    pf2 = 4
    st0 = 0
    st1 = 22
    align = 0
opt = Opt()
outofline = []

def srd(d, ptr, nbytes):
    return [f"s_mov_b32 s{d}, s{ptr}", f"s_mov_b32 s{d+1}, s{ptr+1}", f"s_mov_b32 s{d+2}, {nbytes}", f"s_mov_b32 s{d+3}, 0x20000"]

nstamp = [0]
def stamp(vt=0):
    if not opt.stamps: return []
    n = nstamp[0]; nstamp[0] += 1
    head = [f"s_memtime s[{S_STAMP}:{S_STAMP+1}]", "s_memrealtime vcc", "s_waitcnt lgkmcnt(0)",
            f"v_mov_b32 v{vt}, s{S_STAMP}", f"v_mov_b32 v{vt+1}, vcc_lo"]
    if n == 0: head = [f"v_mov_b32 v{vt}, s100", f"v_mov_b32 v{vt+1}, s100"]
    c = head + [f"s_lshl_b32 s{S_STAMP}, s2, 2", f"s_add_u32 s{S_STAMP}, s{S_STAMP}, s{S_W}", f"s_lshl_b32 s{S_STAMP}, s{S_STAMP}, 9",
            f"s_add_u32 s{S_STAMP}, s{S_STAMP}, {WS_T + 8*n}",
            f"buffer_store_dwordx2 v[{vt}:{vt+1}], off, s[{SRD_WS}:{SRD_WS+3}], s{S_STAMP}", "s_nop 0"]
    c = tag(c, "uncounted")
    return c + (stamp(vt) if n == 0 else [])

def lane_to(r):
    return [f"v_mbcnt_lo_u32_b32 v{r}, -1, 0", f"v_mbcnt_hi_u32_b32 v{r}, -1, v{r}"]

def spin(label, vaddr, srd_, soff, expect, vt, ret, cmp='ne'):
    outofline.extend(flat([f"{label}:", f"s_mov_b32 s{S_T4}, 0", f"{label}_l:",
                 f"buffer_load_dword v{vt}, v{vaddr}, {s(srd_,4)}, {soff} offen sc1", "s_waitcnt vmcnt(0)",
                 f"v_cmp_{cmp}_u32 vcc, {expect}, v{vt}", f"s_add_u32 s{S_T4}, s{S_T4}, 1", f"s_cbranch_vccz {ret}",
                 "s_sleep 2", f"s_cmp_lt_u32 s{S_T4}, 100000", f"s_cbranch_scc1 {label}_l", f"s_branch {ret}"]))

def flag_off(kind, dst):
    if kind == "k": return [f"s_lshl_b32 s{dst}, s{S_H}, 5", f"s_add_u32 s{dst}, s{dst}, s{S_P}", f"s_lshl_b32 s{dst}, s{dst}, 2", f"s_add_u32 s{dst}, s{dst}, {WS_FK}"]
    return [f"s_lshl_b32 s{dst}, s{S_P}, 5", f"s_add_u32 s{dst}, s{dst}, s{S_H}", f"s_lshl_b32 s{dst}, s{dst}, 2", f"s_add_u32 s{dst}, s{dst}, {WS_FH if kind == 'h' else WS_F}"]
def wave0(label, body):
    return tag([f"s_cmp_lg_u32 s{S_W}, 0", f"s_cbranch_scc1 {label}", "s_mov_b64 exec, 1"] + body + ["s_mov_b64 exec, -1", f"{label}:"], "uncounted")
def signal(kind, label, vt):
    return wave0(label, flag_off(kind, S_T0) + [f"v_mov_b32 v{vt}, s{S_TAG}", f"buffer_store_dword v{vt}, off, {s(SRD_WS,4)}, s{S_T0} sc1"])
TAGGER = 152
def tagger_test(label): return [f"s_lshl_b32 s{S_T0}, s2, 2", f"s_add_u32 s{S_T0}, s{S_T0}, s{S_W}", f"s_cmp_eq_u32 s{S_T0}, {TAGGER*4}", f"s_cbranch_scc1 {label}", f"{label}_r:"]
def tag_load():
    outofline.extend(flat(["L_tagl:"] + lane_to(172) + ["v_lshlrev_b32 v173, 4, v172", "v_lshrrev_b32 v174, 1, v172", "v_lshlrev_b32 v174, 7, v174", "v_and_b32 v172, 1, v172",
        "v_lshl_add_u32 v174, v172, 4, v174", f"s_mov_b32 s{S_T0}, {WS_F}", f"s_mov_b32 s{S_T1}, {WS_FH}", f"s_mov_b32 s{S_T2}, {WS_FK}",
        f"buffer_load_dwordx4 v[160:163], v173, {s(SRD_WS,4)}, s{S_T0} offen sc1", f"buffer_load_dwordx4 v[164:167], v173, {s(SRD_WS,4)}, s{S_T1} offen sc1",
        f"buffer_load_dwordx4 v[168:171], v174, {s(SRD_WS,4)}, s{S_T2} offen sc1", "s_branch L_tagl_r"]))
    return tagger_test("L_tagl")
def tag_pick():
    c = ["L_tagp:", f"s_mov_b32 s{S_T1}, 0", "L_tagp_l:", f"s_add_u32 s{S_T1}, s{S_T1}, 1", f"s_mov_b64 s[{S_M1}:{S_M1+1}], 0"]
    for k in range(12): c += [f"v_cmp_eq_u32 vcc, s{S_T1}, v{160+k}", f"s_or_b64 s[{S_M1}:{S_M1+1}], s[{S_M1}:{S_M1+1}], vcc"]
    c += ["s_cbranch_scc1 L_tagp_l", f"v_mov_b32 v172, s{S_T1}", "s_mov_b64 exec, 1", f"buffer_store_dword v172, off, {s(SRD_DBG,4)}, 0 sc1", "s_mov_b64 exec, -1", "s_branch L_tagp_r"]
    outofline.extend(flat(c))
    return tagger_test("L_tagp")

V_RA = 2
V_RW = 6
V_RG = 14
V_DA = 18
V_DW = 22
V_DG = 26
V_STK, V_STV = 30, 31
F_I = 32
F_J = 64
V_PK = 128

def acc(i, j): return (i*8 + j)*4
def fi(ip, ii, kh): return F_I + (ip & 1)*16 + (ii*2 + kh)*4
def fj(j, kh): return F_J + (j*2 + kh)*4

def rd_j(j, par):
    return [f"ds_read_b128 {v(fj(j, kh), 4)}, {v(V_RA + par*2 + kh)} offset:{(1 + (j >> 2))*16384 + (j & 3)*2048}" for kh in range(2)]
def rd_i(ip, par, gu):
    c = []
    for ii in range(2):
        for kh in range(2):
            for r in range(2):
                d = fi(ip, ii, kh) + 2*r
                if gu and ip >= 2:
                    c.append(f"ds_read_b64_tr_b16 {v(d, 2)}, {v(V_RG + par*2 + (ip & 1))} offset:{3*16384 + ii*8192 + kh*4096 + r*512}")
                else:
                    c.append(f"ds_read_b64_tr_b16 {v(d, 2)}, {v(V_RW + par*4 + (ip & 1)*2 + ii)} offset:{3*(ip >> 1)*16384 + kh*8192 + r*1024}")
    return c
def dma_piece(which, st, gu=False):
    par = st & 1
    vo, sr, so = {0: (V_DW, SRD_W0, S_W0), 1: (V_DA, SRD_A, S_ACTA), 2: (V_DA, SRD_A, S_ACTB), 3: (V_DG if gu else V_DW, SRD_W1, S_W1)}[which]
    g = [f"s_add_u32 m0, s{S_WL}, {par*65536 + which*16384}"]
    nt = "nt " if (which in (0, 3) and (opt.nt1 if st < 8 else opt.nt2)) else ""
    g += [f"buffer_load_dwordx4 {v(vo+d)}, {s(sr,4)}, s{so} offen offset:{d*1024} {nt}lds" for d in range(4)]
    inc = {0: 64*8192, 1: 128, 2: 128, 3: 64*3584 if gu else 64*8192}[which]
    g += [f"s_add_u32 s{so}, s{so}, {inc}"]
    return tag(g, (which, st))

def quad_mfma(ip, swap, zero):
    m = []
    for j in range(8):
        for ii in range(2):
            for kh in range(2):
                d = a_(acc(2*ip + ii, j), 4)
                w = v(fi(ip, ii, kh), 4); x = v(fj(j, kh), 4)
                A, B = (x, w) if swap else (w, x)
                m.append(f"{MF16} {d}, {A}, {B}, {'0' if (zero and kh == 0) else d}")
    return m

def gemm_step(st, glu=True, streams=None, pre=None, vm_need=None, post=None, altmf=None):
    par = st & 1
    p2 = st >= 8
    streams = streams or {}; pre = pre or {}; vm_need = vm_need or {}; post = post or {}; altmf = altmf or {}
    c = []
    for q in range(4):
        pin = {}
        add = lambda p, x: pin.setdefault(p, []).append(x)
        mf = quad_mfma(q, (not p2) and q >= 2, st in (0, 8))
        skip = (not glu) and p2 and q >= 2
        if q < 3:
            rds = rd_i(q + 1, par, p2) if (glu or not p2 or q == 0) else []
            for k, x in enumerate(rds): add(2*k, x)
            if q == 0: add(15, "s_waitcnt lgkmcnt(8)")
            if q == 1: add(29, "s_waitcnt lgkmcnt(0)")
        elif st < 15:
            for k, x in enumerate(rd_i(0, 1 - par, False)): add([0, 1, 2, 5, 6, 9, 10, 13][k], x)
            for j in range(8):
                a, b = rd_j(j, 1 - par)
                add(4*j + 3, a); add(min(4*j + 4, 31), b)
            add(31, "s_waitcnt lgkmcnt(8)")
        w, ds_ = [(3, st + 1), (1, st + 2), (2, st + 2), (0, st + 2)][q]
        if ds_ <= 15:
            g = dma_piece(w, ds_, gu=(ds_ >= 8))
            pos = [1, 5, 9, 13, 17, 19] if q < 3 else [14, 17, 21, 25, 29, 30]
            for x, p in zip(g, pos): add(p, x)
        fill, cap = place(32, pin, streams.get(q, []), 31)
        c += flat(pre.get(q, []))
        if skip:
            c += flat(altmf.get(q, []))
            for p in sorted(fill):
                for x in fill[p]:
                    c.append(x)
                    if x.op.startswith("s_add_u32") and ("s", "m0") in x.defs: c.append(Ins("s_nop 0"))
        else:
            c += interleave(mf, fill)
        if q == 0: c += [VmWait([(3, st)] + vm_need.get(q, [])), Ins("s_barrier")]
        if q == 2 and st == 15: c += [Ins("s_waitcnt lgkmcnt(0)")]
        elif q == 2: c += [VmWait([(0, st + 1), (1, st + 1), (2, st + 1)] + vm_need.get(q, [])), Ins("s_barrier")]
        c += flat(post.get(q, []))
    return c

def setup():
    c = []
    c += ["s_cmp_ge_u32 s2, 256", "s_cbranch_scc1 L_end"]
    if opt.stamps: c += ["s_memrealtime s[100:101]"]
    c += ["s_load_dwordx16 s[4:19], s[0:1], 0", "s_load_dwordx8 s[20:27], s[0:1], 64", "s_load_dwordx4 s[28:31], s[0:1], 96"]
    L, G, L16, T = 128, 129, 130, 132
    c += [f"v_lshrrev_b32 v{T}, 6, v0", f"v_and_b32 v{L}, 63, v0", f"v_readfirstlane_b32 s{S_W}, v{T}"]
    c += [f"s_and_b32 s{S_T0}, s2, 7", f"s_lshl_b32 s{S_T0}, s{S_T0}, 2", f"s_lshr_b32 s{S_H}, s2, 3", f"s_and_b32 s{S_H}, s{S_H}, 3",
          f"s_add_u32 s{S_H}, s{S_H}, s{S_T0}", f"s_lshr_b32 s{S_P}, s2, 5"]
    c += [f"s_and_b32 s{S_W}, s{S_W}, 3", f"s_and_b32 s{S_RH}, s{S_W}, 1", f"s_lshr_b32 s{S_CH}, s{S_W}, 1", f"s_lshl_b32 s{S_WL}, s{S_W}, 12"]
    c += [f"v_lshrrev_b32 v{G}, 4, v{L}", f"v_and_b32 v{L16}, 15, v{L}"]
    c += [f"v_lshlrev_b32 v{T}, 13, v{G}", f"v_lshlrev_b32 v{T+1}, 1, v{G}", f"v_xor_b32 v{T+1}, v{T+1}, v{L16}", f"v_xor_b32 v{T+2}, 8, v{T+1}",
          f"v_lshl_add_u32 v{V_DW}, v{T+1}, 4, v{T}", f"v_lshl_add_u32 v{T+2}, v{T+2}, 4, v{T}", f"v_add_u32 v{V_DW+1}, {4*8192 - 1024}, v{V_DW}",
          f"v_add_u32 v{V_DW+2}, {8*8192 - 2048}, v{T+2}", f"v_add_u32 v{V_DW+3}, {12*8192 - 3072}, v{T+2}"]
    c += [f"v_lshrrev_b32 v{T}, 3, v{L}", f"v_lshlrev_b32 v{T}, 10, v{T}", f"v_and_b32 v{T+1}, 7, v{L}", f"v_xor_b32 v{T+1}, v{T+1}, v{G}", f"v_xor_b32 v{T+2}, 4, v{T+1}",
          f"v_lshl_add_u32 v{V_DA}, v{T+1}, 4, v{T}", f"v_lshl_add_u32 v{T+2}, v{T+2}, 4, v{T}", f"v_add_u32 v{V_DA+1}, {8192 - 1024}, v{T+2}",
          f"v_add_u32 v{V_DA+2}, {2*(8192 - 1024)}, v{V_DA}", f"v_add_u32 v{V_DA+3}, {3*(8192 - 1024)}, v{T+2}"]
    c += [f"s_lshl_b32 s{S_ACTA}, s{S_P}, 18", f"s_lshl_b32 s{S_T0}, s{S_CH}, 17", f"s_add_u32 s{S_ACTA}, s{S_ACTA}, s{S_T0}",
          f"s_lshl_b32 s{S_T0}, s{S_RH}, 15", f"s_add_u32 s{S_ACTA}, s{S_ACTA}, s{S_T0}", f"s_add_u32 s{S_ACTB}, s{S_ACTA}, {64*1024}"]
    c += [f"s_lshl_b32 s{S_W0}, s{S_W}, 17", f"s_lshl_b32 s{S_T0}, s{S_H}, 8", f"s_add_u32 s{S_W0}, s{S_W0}, s{S_T0}", f"s_mov_b32 s{S_W1}, s{S_W0}"]
    c += ["s_waitcnt lgkmcnt(0)"]
    if opt.wsoff: c += [f"s_add_u32 s{P_WS}, s{P_WS}, {opt.wsoff << 20}", f"s_addc_u32 s{P_WS+1}, s{P_WS+1}, 0"]
    c += srd(SRD_W0, P_WUK, 512*8192) + srd(SRD_A, P_C, 2048*1024) + srd(SRD_W1, P_WUV, 512*8192)
    def piece(w, st):
        g = dma_piece(w, st); return [g[0], "s_nop 0"] + g[1:]
    for which in range(4): c += piece(which, 0)
    c += srd(SRD_WS, P_WS, WS_BYTES) + srd(SRD_DBG, P_DBG, 256)
    c += [f"v_lshrrev_b32 v{T}, 1, v{L16}", f"v_xor_b32 v{T}, v{T}, v{G}", f"v_lshlrev_b32 v{T}, 4, v{T}", f"v_lshl_add_u32 v{T}, v{L16}, 7, v{T}",
          f"s_lshl_b32 s{S_T0}, s{S_RH}, 13", f"v_add_u32 v{V_RA}, s{S_T0}, v{T}", f"v_xor_b32 v{V_RA+1}, 64, v{V_RA}",
          f"v_add_u32 v{V_RA+2}, 0x10000, v{V_RA}", f"v_add_u32 v{V_RA+3}, 0x10000, v{V_RA+1}"]
    c += [f"v_lshrrev_b32 v{T}, 2, v{L16}", f"v_and_b32 v{T+1}, 3, v{L16}", f"v_lshl_add_u32 v{T+2}, v{G}, 3, v{T}",
          f"v_and_b32 v{T+3}, 1, v{G}", f"v_lshl_add_u32 v{T+4}, v{T+3}, 2, v{T}",
          f"v_lshlrev_b32 v{T+5}, 8, v{T+2}", f"v_lshl_add_u32 v{T+5}, v{T+1}, 3, v{T+5}",
          f"s_lshl_b32 s{S_T0}, s{S_CH}, 2", f"v_xor_b32 v{T+4}, s{S_T0}, v{T+4}"]
    for i in range(4):
        c += [f"v_xor_b32 v{T+6}, {i}, v{T+4}", f"v_lshl_add_u32 v{V_RW+i}, v{T+6}, 5, v{T+5}", f"v_add_u32 v{V_RW+4+i}, 0x10000, v{V_RW+i}"]
    c += [f"v_lshrrev_b32 v{T+4}, 1, v{T}", f"v_lshl_add_u32 v{T+4}, v{T+3}, 1, v{T+4}",
          f"v_lshlrev_b32 v{T+5}, 7, v{T+2}", f"v_lshl_add_u32 v{T+5}, v{T+1}, 3, v{T+5}",
          f"s_lshl_b32 s{S_T0}, s{S_CH}, 1", f"v_xor_b32 v{T+4}, s{S_T0}, v{T+4}"]
    for fb in range(2):
        c += [f"v_xor_b32 v{T+6}, {fb}, v{T+4}", f"v_lshl_add_u32 v{V_RG+fb}, v{T+6}, 5, v{T+5}", f"v_add_u32 v{V_RG+2+fb}, 0x10000, v{V_RG+fb}"]
    c += [f"v_lshrrev_b32 v{T}, 3, v{L}", f"v_mul_u32_u24 v{T}, 3584, v{T}", f"v_and_b32 v{T+1}, 7, v{L}", f"v_lshlrev_b32 v{T+2}, 1, v{T+3}",
          f"v_xor_b32 v{T+1}, v{T+1}, v{T+2}"]
    for d in range(4):
        c += [f"v_xor_b32 v{T+2}, {4*(d & 1)}, v{T+1}", f"v_lshl_add_u32 v{V_DG+d}, v{T+2}, 4, v{T}"]
        if d: c += [f"v_add_u32 v{V_DG+d}, {d*8*3584 - d*1024}, v{V_DG+d}"]
    c += [f"v_lshrrev_b32 v{T}, 1, v{G}", f"v_lshlrev_b32 v{T+1}, 10, v{T+3}", f"v_lshl_add_u32 v{T+1}, v{T}, 9, v{T+1}",
          f"v_lshrrev_b32 v{T+2}, 3, v{L16}", f"v_lshl_add_u32 v{T+1}, v{T+2}, 8, v{T+1}", f"v_and_b32 v{T+2}, 7, v{L}", f"v_lshl_add_u32 v{V_STK}, v{T+2}, 4, v{T+1}"]
    c += [f"v_lshlrev_b32 v{T+1}, 10, v{T}", f"v_lshl_add_u32 v{T+1}, v{T+3}, 9, v{T+1}", f"v_lshl_add_u32 v{V_STV}, v{L16}, 4, v{T+1}"]
    c += [f"s_lshl_b32 s{S_T0}, s{S_H}, 19", f"s_lshl_b32 s{S_T1}, s{S_P}, 16", f"s_add_u32 s{S_T0}, s{S_T0}, s{S_T1}", f"s_lshl_b32 s{S_T1}, s{S_RH}, 15",
          f"s_add_u32 s{S_T0}, s{S_T0}, s{S_T1}", f"s_lshl_b32 s{S_T1}, s{S_CH}, 12", f"s_add_u32 s{S_STK}, s{S_T0}, s{S_T1}", f"s_add_u32 s{S_STV}, s{S_STK}, {WS_V}"]
    c += [f"s_lshr_b32 s{S_T0}, s{S_H}, 3", f"s_mul_i32 s{S_SL}, s{S_T0}, 7", f"s_lshr_b32 s{S_T0}, s{S_H}, 2", f"s_and_b32 s{S_T0}, s{S_T0}, 1",
          f"s_and_b32 s{S_T1}, s{S_H}, 3", f"s_lshl_b32 s{S_T2}, s{S_T0}, 2", f"s_add_u32 s{S_T2}, s{S_T2}, s{S_T1}",
          f"s_lshr_b32 s{S_T3}, s{S_P}, 2", f"s_cmp_eq_u32 s{S_T3}, s{S_T0}", f"s_cselect_b32 s{S_GLU}, 1, 0",
          f"s_cmp_eq_u32 s{S_T1}, 3", f"s_cselect_b32 s{S_T2}, 3, s{S_T2}", f"s_cselect_b32 s{S_GLU}, s{S_GLU}, 1", f"s_add_u32 s{S_SL}, s{S_SL}, s{S_T2}"]
    c += [f"s_and_b32 s{S_T0}, s{S_H}, 7", f"s_lshl_b32 s{S_T1}, s{S_P}, 3", f"s_add_u32 s{S_T0}, s{S_T0}, s{S_T1}", f"s_lshl_b32 s{S_T0}, s{S_T0}, 17",
          f"s_lshl_b32 s{S_T1}, s{S_W}, 11", f"s_add_u32 s{S_T0}, s{S_T0}, s{S_T1}", f"s_add_u32 s{S_XO}, s{S_T0}, {WS_X}"]
    c += tag_load()
    c += piece(1, 1) + piece(2, 1)
    if opt.pfcode:
        c += tag(["s_getpc_b64 s[88:89]", f"s_lshr_b32 s{S_T0}, s2, 3", f"s_mul_i32 s{S_T0}, s{S_T0}, {opt.pfcode*128}", f"v_min_u32 v{T+10}, {opt.pfcode - 1}, v{L}",
                  f"v_lshl_add_u32 v{T+10}, v{T+10}, 7, s{S_T0}", f"global_load_dword v{T+11}, v{T+10}, s[88:89]"], "pf")
    return flat(c)

def sw_act_w0():
    c = srd(SRD_A, P_X, 2048*1024) + srd(SRD_W0, P_WQ, 512*8192)
    c += [f"s_sub_u32 s{S_T0}, 15, s{S_P}", f"s_cmp_eq_u32 s{S_CH}, 0", f"s_cselect_b32 s{S_T0}, s{S_P}, s{S_T0}", f"s_lshl_b32 s{S_ACTA}, s{S_T0}, 17",
          f"s_lshl_b32 s{S_T0}, s{S_RH}, 15", f"s_add_u32 s{S_ACTA}, s{S_ACTA}, s{S_T0}", f"s_add_u32 s{S_ACTB}, s{S_ACTA}, {64*1024}"]
    c += [f"s_lshl_b32 s{S_W0}, s{S_W}, 17", f"s_lshl_b32 s{S_T0}, s{S_H}, 8", f"s_add_u32 s{S_W0}, s{S_W0}, s{S_T0}"]
    return c
def sw_w1():
    c = [f"s_cmp_eq_u32 s{S_CH}, 0", f"s_cselect_b32 s{SRD_W1}, s{P_WG}, s{P_WU}", f"s_cselect_b32 s{SRD_W1+1}, s{P_WG+1}, s{P_WU+1}",
         f"s_mul_i32 s{SRD_W1+2}, s{S_GLU}, {512*3584}"]
    c += [f"s_mul_i32 s{S_W1}, s{S_RH}, {32*3584}", f"s_lshl_b32 s{S_T0}, s{S_SL}, 7", f"s_add_u32 s{S_W1}, s{S_W1}, s{S_T0}"]
    return c

def kv_chunks():
    out = {0: [], 1: [], 2: [], 3: []}
    n = 0
    for e in range(2):
        for j in range(8):
            srcs = [acc(2*e, j) + b for b in range(4)] + [acc(2*e+1, j) + b for b in range(4)]
            out[e].append((n, srcs, ("K", j >> 1, (j & 1)*128 + e*2048))); n += 1
    for ib in range(4):
        for uu in range(4):
            srcs = [acc(4+ib, 2*uu) + b for b in range(4)] + [acc(4+ib, 2*uu+1) + b for b in range(4)]
            out[2 + (ib >> 1)].append((n, srcs, ("V", uu, (ib & 1)*256 + (ib >> 1)*2048))); n += 1
    for ip in (2, 3): out[ip].sort(key=lambda x: x[2][1])
    return out
def conv_stream(ip):
    c = []
    for n, srcs, _ in kv_chunks()[ip]:
        for k in range(0, 4, 2):
            P = V_PK + 4*n + k
            c += [f"v_accvgpr_read_b32 v{P}, a{srcs[2*k]}", f"v_accvgpr_read_b32 v0, a{srcs[2*k+1]}",
                  f"v_accvgpr_read_b32 v{P+1}, a{srcs[2*k+2]}", f"v_accvgpr_read_b32 v1, a{srcs[2*k+3]}",
                  f"v_cvt_pk_bf16_f32 v{P}, v{P}, v0", f"v_cvt_pk_bf16_f32 v{P+1}, v{P+1}, v1"]
    return c
def kv_stores():
    ch = kv_chunks()
    out = []
    for kind, ips, vo, so in (("K", (0, 1), V_STK, S_STK), ("V", (2, 3), V_STV, S_STV)):
        for uu in range(4):
            grp = [x for ip in ips for x in ch[ip] if x[2][1] == uu]
            for k, (n, _, (_k, _u, off)) in enumerate(grp):
                g = [f"buffer_store_dwordx4 {v(V_PK + 4*n, 4)}, v{vo}, {s(SRD_WS,4)}, s{so} offen offset:{off} sc1"]
                if k == 3 and uu < 3: g += [f"s_add_u32 s{so}, s{so}, 8192"]
                out.append(tag(g, "kv"))
    return out
def init_stores():
    c = lane_to(132) + ["v_lshlrev_b32 v132, 4, v132"] + [f"v_mov_b32 v{128+k}, -1" for k in range(4)]
    c += [f"s_lshr_b32 s{S_T1}, s{S_H}, 3"]
    for q in range(1, 4):
        c += [f"s_xor_b32 s{S_T0}, s{S_T1}, {q}", f"s_lshl_b32 s{S_T0}, s{S_T0}, 15", f"s_add_u32 s{S_T0}, s{S_T0}, s{S_XO}", f"s_add_u32 s{S_T0}, s{S_T0}, {q*8192}"]
        c += [f"buffer_store_dwordx4 v[128:131], v132, {s(SRD_WS,4)}, s{S_T0} offen offset:{k*1024} sc1" for k in range(2)]
    return tag(c, "init")

def touch(k, ntt):
    nt = "nt" if ntt else ""
    T = 128
    st = lane_to(T)
    if k == 0:
        pre = srd(SRD_K, P_X, 2048*1024); n = 16; nt = ""
        st += [f"v_lshlrev_b32 v{T+1}, 7, v{T}", f"s_lshl_b32 s{S_T0}, s2, 2", f"s_add_u32 s{S_T0}, s{S_T0}, s{S_W}", f"s_lshl_b32 s{S_T0}, s{S_T0}, 11"]
    elif k == 1:
        pre = srd(SRD_K, P_WQ, 512*8192); n = 32
        st += [f"v_lshrrev_b32 v{T+1}, 1, v{T}", f"v_lshlrev_b32 v{T+1}, 13, v{T+1}", f"v_and_b32 v{T+2}, 1, v{T}", f"v_lshl_add_u32 v{T+1}, v{T+2}, 7, v{T+1}",
               f"s_lshl_b32 s{S_T0}, s{S_P}, 2", f"s_add_u32 s{S_T0}, s{S_T0}, s{S_W}", f"s_lshl_b32 s{S_T0}, s{S_T0}, 17", f"s_lshl_b32 s{S_T1}, s{S_H}, 8", f"s_add_u32 s{S_T0}, s{S_T0}, s{S_T1}"]
    else:
        pre = [f"s_cmp_eq_u32 s{S_CH}, 0", f"s_cselect_b32 s{SRD_K}, s{P_WG}, s{P_WU}", f"s_cselect_b32 s{SRD_K+1}, s{P_WG+1}, s{P_WU+1}", f"s_mov_b32 s{SRD_K+2}, {512*3584}"]; n = 32
        st += [f"v_mul_u32_u24 v{T+1}, 3584, v{T}", f"s_lshl_b32 s{S_T0}, s{S_P}, 1", f"s_add_u32 s{S_T0}, s{S_T0}, s{S_RH}", f"s_mul_i32 s{S_T0}, s{S_T0}, {32*3584}",
               f"s_lshl_b32 s{S_T1}, s{S_SL}, 7", f"s_add_u32 s{S_T0}, s{S_T0}, s{S_T1}"]
    sh = {16: 4, 32: 5}[n]
    st += [f"v_lshrrev_b32 v{T+2}, {sh}, v{T}", f"v_lshl_add_u32 v{T+1}, v{T+2}, 28, v{T+1}"]
    st = flat(st) + tag([f"buffer_load_dword v{T+3}, v{T+1}, {s(SRD_K,4)}, s{S_T0} offen {nt}"], "pf")
    return pre, st

def p1(vm):
    c = [VmWait([(0, 0), (1, 0), (2, 0)]), Ins("s_barrier")]
    g = dma_piece(0, 1)
    rds = rd_i(0, 0, False)
    for j in range(8): rds += rd_j(j, 0)
    c += flat(rds[:12] + [g[0]] + rds[12:14] + g[1:] + rds[14:] + ["s_waitcnt lgkmcnt(8)"])
    for st in range(6):
        pre = {}; streams = {}
        post = {}
        plan = {0: {}, 1: {(1, 1): (0, 0), (2, 1): (1, 0), (3, 1): (2, 0)},
                2: {(1, 1): (0, 0), (2, 1): (1, 1), (3, 1): (1, 0), (4, 1): (2, 1), (5, 1): (2, 0)},
                3: {(1, 1): (0, 0), (2, 0): (1, 1), (2, 2): (1, 0), (4, 0): (2, 1), (4, 2): (2, 0)},
                4: {(1, 1): (0, 0), (3, 1): (1, 0), (5, 1): (2, 0)}}[opt.pf2]
        for q in range(4):
            if (st, q) in plan:
                a, b = touch(*plan[(st, q)]); pre[q] = a; streams[q] = b
        if st == 1: post[0] = tag_pick()
        c += gemm_step(st, pre=pre, streams=streams, post=post)
        if opt.fine == 1: c += stamp()
    cv = conv_stream(0) + conv_stream(1)
    spin("L_spin_tag", 140, SRD_DBG, "0", "0", 141, "L_spin_tag_r", cmp="eq")
    c += gemm_step(6, pre={1: sw_act_w0()}, streams={0: flat(["v_mov_b32 v140, 0"]) + tag([f"buffer_load_dword v141, v140, {s(SRD_DBG,4)}, 0 offen sc1"], "tag")})
    if opt.fine == 1: c += stamp()
    c += gemm_step(7, pre={0: sw_w1()}, streams={1: cv[:66], 2: cv[66:138], 3: cv[138:192]}, vm_need={0: ["tag"]},
                   post={0: ["v_cmp_eq_u32 vcc, 0, v141", "s_cbranch_vccnz L_spin_tag", "L_spin_tag_r:", f"v_readfirstlane_b32 s{S_TAG}, v141"]})
    c, lgo = auto_wait(c, [[]])
    c, vm = vm_pass(c, vm)
    return c, vm, lgo
```

```python
from g1 import *

A_Q = (0, 32); A_KF = 64; A_VF = 96; A_O = (128, 192)
def VS(g, b): return 64 + g*32 + b*16
def VN(g): return 128 + g*16
def VP(g, b): return 160 + g*16 + b*8
V_X = 192
V_L = (208, 209); V_SUM = (210, 211); V_CK = 212
V3_RD, V3_DM, V3_THR, V3_NINF, V3_ST, V_QW, V_QW2, V_LANE = 18, 19, 20, 21, 22, 23, 24, 25
V3_T = 220
V_PA, V_PE, V_PV = 26, 27, 28
S_QS = 96
S_FLO, S_FHI = S_STK, S_STV

def dma4(srd_, so, t):
    return tag([f"buffer_load_dwordx4 v{V3_DM}, {s(srd_,4)}, s{so} offen offset:{d*1024} sc1 lds" for d in range(4)], t)
def stage_dma(t=None):
    g = flat([f"s_add_u32 m0, s{S_RING}, 16384"]) + dma4(SRD_V, S_KOFF, t)
    g2 = flat([f"s_add_u32 s{S_KOFF}, s{S_KOFF}, 16384", f"s_mov_b32 m0, s{S_RING}", f"s_add_u32 s{S_RING}, s{S_RING}, 32768"]) + dma4(SRD_K, S_KOFF, t) + flat([f"s_and_b32 s{S_RING}, s{S_RING}, 0x1ffff"])
    return g, g2

def p3_setup():
    L = V_LANE; t = V3_T
    pre = [f"s_lshl_b32 s{S_T0}, s{S_H}, 19", f"s_add_u32 s{SRD_K}, s{P_WS}, s{S_T0}", f"s_addc_u32 s{SRD_K+1}, s{P_WS+1}, 0",
           f"s_add_u32 s{SRD_V}, s{SRD_K}, {WS_V}", f"s_addc_u32 s{SRD_V+1}, s{SRD_K+1}, 0"]
    c = [f"s_sub_u32 s{S_T0}, 16, s{S_P}", f"s_lshl_b32 s{SRD_K+2}, s{S_T0}, 15", f"s_mov_b32 s{SRD_V+2}, s{SRD_K+2}",
         f"s_mov_b32 s{SRD_K+3}, 0x20000", f"s_mov_b32 s{SRD_V+3}, 0x20000"]
    c += lane_to(L)
    c += [f"v_and_b32 v{V_PA}, 7, v{L}", f"v_lshlrev_b32 v{V_PA}, 2, v{V_PA}", f"s_lshl_b32 s{S_T3}, s{S_H}, 7", f"s_add_u32 s{S_T3}, s{S_T3}, {WS_FK}"]
    c += tag([f"buffer_load_dword v{V_PV}, v{V_PA}, {s(SRD_WS,4)}, s{S_T3} offen sc1"], "poll")
    c += [f"v_lshl_add_u32 v{V3_DM}, v{L}, 4, s{S_WL}", f"s_mov_b32 s{S_KOFF}, 0", f"s_mov_b32 s{S_RING}, s{S_WL}"]
    c += [f"s_lshl_b32 s{S_T0}, s{S_P}, 1", f"s_add_u32 s{S_TLO}, s{S_T0}, s{S_CH}", f"s_sub_u32 s{S_THI}, 31, s{S_TLO}",
          f"s_lshl_b32 s{S_T0}, s{S_P}, 2", f"s_add_u32 s{S_DLO}, s{S_T0}, s{S_W}", f"s_sub_u32 s{S_DHI}, 63, s{S_DLO}", f"s_mov_b32 s{S_THR}, {f2u(2.0**30):#x}",
          f"s_mul_i32 s{S_FLO}, s{S_RH}, -32", f"s_sub_u32 s{S_FHI}, -32, s{S_FLO}"]
    c += [f"v_lshlrev_b32 v{V3_RD}, 4, v{L}", f"v_and_b32 v{t}, 31, v{L}", f"v_lshrrev_b32 v{t+1}, 5, v{L}", f"v_lshlrev_b32 v{t+2}, 2, v{t+1}", f"v_sub_u32 v{V3_THR}, v{t}, v{t+2}",
          f"v_mov_b32 v{V3_NINF}, 0xff800000", f"v_and_b32 v{t+3}, 15, v{L}",
          f"v_lshrrev_b32 v{t}, 4, v{t}", f"v_lshlrev_b32 v{t}, 10, v{t}", f"v_lshl_add_u32 v{t+2}, v{t+1}, 8, v{t}", f"v_lshl_add_u32 v{V3_ST}, v{t+3}, 4, v{t+2}"]
    c += [f"v_lshl_add_u32 v{t}, v{t+1}, 9, v{t}", f"v_lshl_add_u32 v{t}, v{t+3}, 4, v{t}",
          f"s_lshl_b32 s{S_T0}, s{S_RH}, 15", f"s_lshl_b32 s{S_T1}, s{S_CH}, 12", f"s_add_u32 s{S_T0}, s{S_T0}, s{S_T1}", f"s_add_u32 s{S_T0}, s{S_T0}, 0x10000",
          f"v_add_u32 v{V_QW}, s{S_T0}, v{t}", f"s_lshl_b32 s{S_T0}, s{S_RH}, 15", f"v_add_u32 v{V_QW2}, s{S_T0}, v{V_QW}"]
    return pre, c

def nopm0(g): return [g[0], Ins("s_nop 0")] + g[1:]
def first_dmas():
    c = flat([f"s_add_u32 m0, s{S_WL}, 0x20000", "s_nop 0"]) + dma4(SRD_K, S_KOFF, "k0")
    g, g2 = stage_dma("st0")
    return c + nopm0(g) + g2

def q_reads(e):
    c = []
    for j in range(8):
        srcs = [acc(2*e, j) + b for b in range(4)] + [acc(2*e+1, j) + b for b in range(4)]
        c += [f"v_accvgpr_read_b32 v{128 + (e*8+j)*8 + k}, a{r}" for k, r in enumerate(srcs)]
    return c
def q_finish():
    c = [f"s_mov_b32 s{S_QS}, {f2u(QSCALE):#x}", f"s_mov_b32 s{S_QS+1}, {f2u(QSCALE):#x}"]
    for e in range(2):
        for j in range(8):
            t = 128 + (e*8+j)*8
            c += [f"v_pk_mul_f32 {v(t+2*k,2)}, {v(t+2*k,2)}, s[{S_QS}:{S_QS+1}]" for k in range(4)]
            c += [f"v_cvt_pk_bf16_f32 v{t+k}, v{t+2*k}, v{t+2*k+1}" for k in range(4)]
            c += [f"ds_write_b128 v{V_QW if j < 4 else V_QW2}, {v(t,4)} offset:{(j >> 1)*8192 + e*2048 + (j & 1)*256}"]
    return c

def blk_to(dst):
    return [f"s_sub_u32 s{dst}, 15, s{S_P}", f"s_cmp_eq_u32 s{S_RH}, 0", f"s_cselect_b32 s{dst}, s{S_P}, s{dst}"]

S_HO = P_C
def h_head():
    return blk_to(S_T0) + [f"s_mul_i32 s{S_T0}, s{S_T0}, {4*NSL}", f"s_lshl_b32 s{S_T1}, s{S_SL}, 1", f"s_add_u32 s{S_T0}, s{S_T0}, s{S_T1}", f"s_add_u32 s{S_T0}, s{S_T0}, s{S_CH}",
         f"s_lshl_b32 s{S_T0}, s{S_T0}, 11", f"s_add_u32 s{S_HO}, s{S_T0}, {WS_A}", f"s_mov_b32 s{S_QS}, {f2u(-LOG2E):#x}", f"s_mov_b32 s{S_QS+1}, {f2u(-LOG2E):#x}"]
def h_chunk(j, pk):
    t = 32 + 16*(j & 1)
    gs = [acc(4, j) + b for b in range(4)] + [acc(6, j) + b for b in range(4)]
    us = [acc(5, j) + b for b in range(4)] + [acc(7, j) + b for b in range(4)]
    c = [f"v_accvgpr_read_b32 v{t+k}, a{r}" for k, r in enumerate(gs)]
    if pk: c += [f"v_pk_mul_f32 {v(t+2*k,2)}, {v(t+2*k,2)}, s[{S_QS}:{S_QS+1}]" for k in range(4)]
    else: c += [f"v_mul_f32 v{t+k}, s{S_QS}, v{t+k}" for k in range(8)]
    for k in range(8): c += [f"v_exp_f32 v{t+k}, v{t+k}", f"v_accvgpr_read_b32 v{t+8+k}, a{us[k]}"]
    if pk: c += [f"v_pk_add_f32 {v(t+2*k,2)}, {v(t+2*k,2)}, 1.0 op_sel_hi:[1,0]" for k in range(4)]
    else: c += [f"v_add_f32 v{t+k}, 1.0, v{t+k}" for k in range(8)]
    c += [f"v_rcp_f32 v{t+k}, v{t+k}" for k in range(8)]
    if pk: c += [f"v_pk_mul_f32 {v(t+2*k,2)}, {v(t+2*k,2)}, {v(t+8+2*k,2)}" for k in range(4)]
    else: c += [f"v_mul_f32 v{t+k}, v{t+k}, v{t+8+k}" for k in range(8)]
    c += [f"v_cvt_pk_bf16_f32 v{t+8+k}, v{t+2*k}, v{t+2*k+1}" for k in range(4)]
    c += [f"buffer_store_dwordx4 {v(t+8,4)}, v{V3_RD}, {s(SRD_WS,4)}, s{S_HO} offen offset:{(j & 1)*1024} sc1"]
    if j & 1: c += [f"s_add_u32 s{S_HO}, s{S_HO}, {NSL*2048}"]
    return tag(c, "h")

A_GF = 160
def g_epilogue():
    c = blk_to(S_T0) + [f"s_lshl_b32 s{S_T0}, s{S_T0}, 9", f"s_add_u32 s{S_T0}, s{S_T0}, {WS_G}", f"s_mov_b32 s{S_T1}, {f2u(-LOG2E):#x}",
         f"v_and_b32 v2, 15, v{V_LANE}", "v_lshlrev_b32 v2, 2, v2"]
    c += [f"v_accvgpr_read_b32 v{4+j}, a{128+4*j}" for j in range(8)]
    c += [f"v_mul_f32 v{4+j}, s{S_T1}, v{4+j}" for j in range(8)]
    c += [f"v_exp_f32 v{4+j}, v{4+j}" for j in range(8)]
    c += [f"v_add_f32 v{4+j}, 1.0, v{4+j}" for j in range(8)]
    c += [f"v_rcp_f32 v{4+j}, v{4+j}" for j in range(8)]
    c += [f"buffer_store_dword v{4+j}, v2, {s(SRD_WS,4)}, s{S_T0} offen offset:{64*j} sc1" for j in range(8)]
    return tag(c, "h")

def p2(glu, vm, lg, s15):
    sfx = "g" if glu else "n"
    c = []
    sts = kv_stores()
    cv = conv_stream(2) + conv_stream(3)
    pre3, set3 = p3_setup()
    fd = first_dmas()
    if not glu:
        c += flat(["s_nop 7"] + cv + lane_to(0) + ["v_lshrrev_b32 v0, 4, v0", "v_lshlrev_b32 v0, 4, v0"] + srd(SRD_K, P_GW, 1024))
        c += tag([f"buffer_load_dwordx4 {a_(A_GF + 4*k, 4)}, v0, {s(SRD_K,4)}, 0 offen offset:{64*k}" for k in range(16)], "gate")
    k = 0
    sig_done = False
    for st in range(8, 16):
        streams = {q: [] for q in range(4)}; pre = {}; need = {}; post = {}; alt = {}
        if st == 8 and glu:
            streams = {0: cv[:66], 1: cv[66:132], 2: cv[132:], 3: []}
        for q in range(4):
            qi = (st - 8)*4 + q
            k1 = 0 if qi < opt.st0 else min(len(sts), ((qi + 1 - opt.st0)*len(sts) + (opt.st1 - opt.st0) - 1)//(opt.st1 - opt.st0))
            if q == 2 and k >= len(sts) and not sig_done:
                need[2] = ["kv"]; post[2] = signal("k", f"L_sig_kv_{sfx}", 0); sig_done = True
            streams[q] = merge_streams([flat(streams[q]), flat(sts[k:k1])]); k = k1
        if st == 14:
            ini = init_stores()
            streams[0] = ini[:13]; streams[1] = ini[13:19]; streams[2] = ini[19:]
        if not glu:
            if st == 8: need[0] = ["gate"]
            alt[2] = [f"{MF16} {a_(128+4*j,4)}, {a_(A_GF + 4*((st-8)*2+kh), 4)}, {v(fj(j,kh),4)}, {'0' if st == 8 and kh == 0 else a_(128+4*j,4)}" for j in range(8) for kh in range(2)]
        if st == 14:
            assert sig_done or not glu
            pre[3] = pre3; streams[3] = list(streams[3]) + set3
        if st == 15:
            need[0] = ["poll"]
            post[0] = [f"v_cmp_ne_u32 vcc, s{S_TAG}, v{V_PV}", f"s_cbranch_vccnz L_spin_kv{sfx}", f"L_spin_kv{sfx}_r:"]
            spin(f"L_spin_kv{sfx}", V_PA, SRD_WS, f"s{S_T3}", f"s{S_TAG}", V_PV, f"L_spin_kv{sfx}_r")
            streams[0] = s15
            qr = q_reads(0) + q_reads(1)
            streams[1] = merge_streams([fd[:11], flat(qr[:32])])
            streams[2] = flat(["s_nop 7"] if not glu else []) + merge_streams([fd[11:], flat(qr[32:66])]); streams[3] = qr[66:]
            post[3] = q_finish()
        code = gemm_step(st, glu, streams, pre, need, post, alt)
        if opt.fine == 1 and st < 15: code += stamp()
        code, lg = auto_wait(code, lg)
        c += code
    assert sig_done
    c += stamp()
    c += p3_prologue(glu)
    c, vm = vm_pass(c, vm)
    assert vm[-12:] == ["st2"]*8 + ["st3"]*4
    return c

def sm_stream(g, b):
    S = VS(g, b); X = V_X + 8*g; P = VP(g, b); sm = V_SUM[g]
    e = lambda j: f"v_exp_f32 v{X + j % 8}, v{S + j}"
    c = [e(0), e(1), e(2)]
    for j in range(1, 16):
        c.append(f"v_add_f32 v{sm}, v{X}, v{X+1}" if j == 1 else f"v_add_f32 v{sm}, v{sm}, v{X + j % 8}")
        if j & 1: c.append(f"v_cvt_pk_bf16_f32 v{P + j//2}, v{X + (j-1) % 8}, v{X + j % 8}")
        if j + 2 < 16: c.append(e(j + 2))
    return c
def merge_streams(ss):
    ss = [x for x in ss if x]
    if not ss: return []
    out = []; n = max(len(x) for x in ss); pos = [0]*len(ss)
    for k in range(1, n + 1):
        for i, x in enumerate(ss):
            while pos[i] < len(x)*k//n: out.append(x[pos[i]]); pos[i] += 1
    return out

def qk_mfma(groups, b):
    m = []
    for f in range(8):
        for g in groups:
            d = v(VS(g, b), 16)
            m.append(f"{MF32} {d}, {a_(A_KF + 4*f, 4)}, {a_(A_Q[g] + 4*f, 4)}, {v(VN(g), 16) if f == 0 else d}")
    return m
def pv_mfma(groups, b):
    m = []
    for f in range(8):
        db, mm = f >> 1, f & 1
        for g in groups:
            d = a_(A_O[g] + 16*db, 16)
            m.append(f"{MF32} {d}, {a_(A_VF + 4*f, 4)}, {v(VP(g, b) + 4*mm, 4)}, {d}")
    return m
def rdk(f, uu): return f"ds_read_b128 {a_(A_KF + 4*f, 4)}, v{V3_RD} offset:{uu*8192 + f*1024}"
def rdv(f, uu): return f"ds_read_b128 {a_(A_VF + 4*f, 4)}, v{V3_RD} offset:{16384 + uu*8192 + f*1024}"

def fix_stream(g, thr):
    def kc(j):
        ap, b = j >> 2, j & 3
        return 16*(ap & 1) + 8*(ap >> 1) + b
    ms = [f"s[{S_M0}:{S_M0+1}]", f"s[{S_M1}:{S_M1+1}]", f"s[{S_M2}:{S_M2+1}]"]
    cmp_ = lambda j: f"v_cmp_gt_i32 {ms[j % 3]}, {kc(j)}, v{thr}"
    c = [cmp_(0), cmp_(1)]
    for j in range(16):
        c += [cmp_(j + 2) if j + 2 < 16 else "s_nop 0"]
        c += [f"v_cndmask_b32 v{VN(g)+j}, v{VN(g)+j}, v{V3_NINF}, {ms[j % 3]}"]
    return c
def fixcall(g, it):
    F = S_FLO if g == 0 else S_FHI
    return [f"s_add_u32 s{S_T0}, s{F}, {32*it}", f"s_call_b64 s[{S_RET}:{S_RET+1}], L_fix{g}"]

def iteration(name, it, qk, sm, pv, pend, dma=True, rd_k=True, rd_v=True, vmn=16, loop=None, inl_fix=None, extra=()):
    c = []
    mq = qk_mfma(qk, it); mp = pv_mfma(pv, it)
    mf = mq + mp
    nq, n = len(mq), len(mf)
    pin = {}
    add = lambda p, x: pin.setdefault(p, []).append(x)
    uu = 1 - it
    kstep = max(len(qk), 1); vstep = len(pv)
    if it == 1:
        barpos = 2 if nq else -1
        if rd_k or rd_v: add(0, [f"v_add_u32 v{V3_RD}, 0x8000, v{V3_RD}"]); add(1, [f"v_and_b32 v{V3_RD}, 0x1ffff, v{V3_RD}"])
        add(barpos, [f"s_waitcnt vmcnt({vmn}) lgkmcnt(0)", "s_barrier", ".pad16"])
    if rd_k:
        for f in range(8):
            p = f*kstep + kstep - 1
            if it == 1: p = max(p, 3 + (f*(nq - 3))//8)
            if f == 6 and it == 0: add(p, "s_waitcnt lgkmcnt(6)")
            add(p, rdk(f, uu))
    if rd_v:
        for f in range(8):
            if f == 6 and rd_k: add(nq + f*vstep + vstep - 1, "s_waitcnt lgkmcnt(6)")
            add(nq + f*vstep + vstep - 1, rdv(f, uu))
    if dma:
        g, g2 = stage_dma()
        if it == 0:
            for k, x in enumerate(g2): add((k*(n - 2))//len(g2), x)
        else:
            for k, x in enumerate(g): add(nq + (k*(n - 2 - nq))//len(g), x)
    thr = S_THR
    if loop and it == 1:
        thr = S_THRB
        add(0, [f"s_add_u32 s{S_TRIP}, s{S_TRIP}, 1"]); add(1, [f"s_cmp_eq_u32 s{S_TRIP}, s{S_LAST}", f"s_cselect_b32 s{S_THRB}, -1.0, s{S_THR}"])
    st = [f"v_add_f32 v{V_L[g]}, v{V_L[g]}, v{V_SUM[g]}" for g in pend]
    body = merge_streams([sm_stream(g, 1 - it) for g in sm])
    if inl_fix is not None:
        F = S_FLO if inl_fix == 0 else S_FHI
        fx = [f"v_subrev_u32 v{V3_T}, s{F}, v{V3_THR}", f"v_subrev_u32 v{V3_T}, 32, v{V3_T}"] + fix_stream(inl_fix, V3_T)
        body = body[:10] + merge_streams([body[10:], fx])
    st += merge_streams([flat(body), flat(extra)])
    post = []
    if sm:
        ck = V_SUM[sm[0]]
        if len(sm) == 2:
            st += [f"v_add_f32 v{V_CK}, v{V_SUM[0]}, v{V_SUM[1]}"]; ck = V_CK
        st += [f"v_cmp_nge_f32 vcc, s{thr}, v{ck}"]
        calls = [f"s_call_b64 s[{S_RET}:{S_RET+1}], L_rare{g}{1-it}" for g in sm]
        if loop and it == 1:
            post = [f"s_cbranch_vccz {loop}", f"v_cmp_nge_f32 vcc, s{S_THR}, v{ck}", f"s_cbranch_vccnz {name}_rare", f"{name}_rarer:"]
            outofline.extend(flat([f"{name}_rare:"] + calls + [f"s_cmp_lg_u32 s{S_TRIP}, s{S_LAST}", f"s_cbranch_scc1 {loop}", f"s_branch {name}_rarer"]))
        else:
            post = [f"s_cbranch_vccnz {name}_rare", f"{name}_rarer:"]
            outofline.extend(flat([f"{name}_rare:"] + calls + [f"s_branch {name}_rarer"]))
    add(n - 1, post)
    pre = pin.pop(-1, [])
    for p in pin:
        pin[p] = [Ins("s_nop 0 ; PAD") if x.text == ".pad16" else x for x in flat(pin[p])]
        if any(x.text.endswith("PAD") for x in pin[p]): pin[p] += [Ins("s_nop 0 ; PAD")]*3
    fill, cap = place(n, pin, st, n - 2)
    for p in fill: fill[p] = [x for x in fill[p] if not x.text.endswith("PAD")]
    fill[-1] = [x for x in flat(pre) if x.text != ".pad16"]
    c += interleave(mf, fill)
    return flat(c), cap

def body(kind, extra=()):
    B2, H = [0, 1], [1]
    if kind == "D":
        A, c1 = iteration("L_DA", 0, B2, B2, B2, B2)
        B, c2 = iteration("L_DB", 1, B2, B2, B2, B2, loop="L_D")
    elif kind == "Dp":
        A, c1 = iteration("L_DpA", 0, B2, B2, B2, B2, inl_fix=0)
        B, c2 = iteration("L_DpB", 1, B2, B2, B2, B2)
    elif kind == "T":
        A, c1 = iteration("L_TA", 0, H, B2, B2, B2)
        B, c2 = iteration("L_TB", 1, H, H, B2, B2, extra=extra)
        def cond(it):
            outofline.extend(flat([f"L_Tfix{it}:"] + fixcall(1, it) + [f"s_branch L_Tfix{it}_r"]))
            return flat([f"s_cmp_eq_u32 s{S_TLO}, 15", f"s_cbranch_scc1 L_Tfix{it}", f"L_Tfix{it}_r:"])
        pf = []
        if opt.pf4:
            pf = flat([f"s_cmp_eq_u32 s{S_CH}, 0", f"s_cselect_b32 s{SRD_A}, s{P_WO}, s{P_WD}", f"s_cselect_b32 s{SRD_A+1}, s{P_WO+1}, s{P_WD+1}",
              f"s_cselect_b32 s{S_T0}, 64, 28", f"s_lshl_b32 s{SRD_A+2}, s{S_T0}, 16",
              f"s_lshl_b32 s{S_T0}, s{S_RH}, 8", f"s_add_u32 s{S_T0}, s{S_T0}, s2", f"s_lshl_b32 s{S_T0}, s{S_T0}, 13",
              f"v_lshlrev_b32 v{V_PA}, 7, v{V_LANE}", f"buffer_load_dword v253, v{V_PA}, {s(SRD_A,4)}, s{S_T0} offen"])
        A = pf + cond(0) + A; B = cond(1) + B
    elif kind == "S":
        A, c1 = iteration("L_SA", 0, H, H, H, H)
        B, c2 = iteration("L_SB", 1, H, H, H, H, loop="L_S")
    elif kind == "Sp":
        A, c1 = iteration("L_SpA", 0, H, H, H, H, inl_fix=1)
        B, c2 = iteration("L_SpB", 1, H, H, H, H)
    else:
        A, c1 = iteration("L_EA", 0, [], H, H, H, dma=False, rd_k=False, extra=extra)
        B, c2 = iteration("L_EB", 1, [], [], H, H, dma=False, rd_k=False, rd_v=False, vmn=opt.e_vm)
    print("body", kind, "caps", c1, c2, file=sys.stderr)
    return A + B

def rowmax(S, t):
    c = [f"v_max3_f32 v{t}, v{S}, v{S+1}, v{S+2}"]
    for j in range(3, 15, 2): c += [f"v_max3_f32 v{t}, v{t}, v{S+j}, v{S+j+1}"]
    c += [f"v_max_f32 v{t}, v{t}, v{S+15}", f"v_mov_b32 v{t+1}, v{t}", "s_nop 1", f"v_permlane32_swap_b32 v{t}, v{t+1}", f"v_max_f32 v{t}, v{t}, v{t+1}"]
    return c

def rare(g, b):
    t = V3_T
    c = [f"L_rare{g}{b}:", "s_nop 15"]
    c += rowmax(VS(g, b), t)
    c += [f"v_max_f32 v{t}, 0, v{t}", f"v_exp_f32 v{t+1}, -v{t}"]
    for j in range(16):
        c += [f"v_sub_f32 v{r+j}, v{r+j}, v{t}" for r in (VN(g), VS(g, 0), VS(g, 1))]
    c += [f"v_mul_f32 v{V_L[g]}, v{V_L[g]}, v{t+1}"]
    for j in range(0, 64, 4):
        c += [f"v_accvgpr_read_b32 v{t+2+k}, a{A_O[g]+j+k}" for k in range(4)]
        c += [f"v_mul_f32 v{t+2+k}, v{t+2+k}, v{t+1}" for k in range(4)]
        c += [f"v_accvgpr_write_b32 a{A_O[g]+j+k}, v{t+2+k}" for k in range(4)]
    c += sm_stream(g, b)
    c += ["s_nop 1", f"s_setpc_b64 s[{S_RET}:{S_RET+1}]"]
    return flat(c)

def fix(g):
    c = [f"L_fix{g}:", f"v_subrev_u32 v{V3_T}, s{S_T0}, v{V3_THR}"] + fix_stream(g, V3_T) + ["s_nop 1", f"s_setpc_b64 s[{S_RET}:{S_RET+1}]"]
    return flat(c)

def o_epilogue(g):
    t = V3_T
    Dg = S_DLO if g == 0 else S_DHI
    c = [f"s_mul_i32 s{S_T0}, s{Dg}, {NSL}", f"s_lshl_b32 s{S_T1}, s{S_H}, 2", f"s_add_u32 s{S_T0}, s{S_T0}, s{S_T1}",
         f"s_lshl_b32 s{S_T0}, s{S_T0}, 11", f"s_add_u32 s{S_T0}, s{S_T0}, {WS_A + 56*2048}"]
    c += [f"v_mov_b32 v{t}, v{V_L[g]}", f"v_mov_b32 v{t+1}, v{V_L[g]}", "s_nop 1", f"v_permlane32_swap_b32 v{t}, v{t+1}", f"v_add_f32 v{t}, v{t}, v{t+1}", f"v_rcp_f32 v{t}, v{t}", "s_nop 0", f"v_mov_b32 v{t+1}, v{t}"]
    for db in range(4):
        for m in range(2):
            q = t + 4 + 12*m
            c += [f"v_accvgpr_read_b32 v{q+4+k}, a{A_O[g] + 16*db + 8*m + k}" for k in range(8)]
            c += [f"v_pk_mul_f32 {v(q+4+2*k,2)}, {v(q+4+2*k,2)}, {v(t,2)}" for k in range(4)]
            c += [f"v_cvt_pk_bf16_f32 v{q+k}, v{q+4+2*k}, v{q+5+2*k}" for k in range(4)]
            c += [f"buffer_store_dwordx4 {v(q,4)}, v{V3_ST}, {s(SRD_WS,4)}, s{S_T0} offen offset:{m*512 + (db & 1)*2048} sc1"]
        if db == 1: c += [f"s_add_u32 s{S_T0}, s{S_T0}, 4096"]
    return tag(c, "ctx")

def align(): return flat([f".p2align {opt.align}"]) if opt.align else []

def p3_prologue(glu):
    sfx = "g" if glu else "n"
    t = V3_T
    H = (lambda j, pk: h_chunk(j, pk)) if glu else (lambda j, pk: [])
    c = []
    c += [f"s_lshl_b32 s{S_T0}, s{S_W}, 13", f"s_add_u32 s{S_T1}, s{S_T0}, 0x10000", f"s_sub_u32 s{S_T2}, {0x18000 + 7*8192}, s{S_T0}", f"s_lshl_b32 s{S_T0}, s{S_CH}, 15",
          f"s_sub_u32 s{S_T2}, s{S_T2}, s{S_T0}",
          f"v_add_u32 v{t+4}, s{S_T1}, v{V3_RD}", f"v_add_u32 v{t+5}, s{S_T2}, v{V3_RD}", f"v_add_u32 v{t+2}, 0x20000, v{V3_RD}"]
    if glu: c += h_head()
    F = (lambda: stamp()) if opt.fine == 2 else (lambda: [])
    c += [VmWait(["k0", "st0"]), "s_barrier"]
    c += F()
    rd = []
    for f in range(8):
        rd += [f"ds_read_b128 {a_(A_KF + 4*f, 4)}, v{t+2} offset:{f*1024}"]
        rd += [f"ds_read_b128 {a_(A_Q[g] + 4*f, 4)}, v{t+4+g} offset:{f*1024}" for g in range(2)]
    ini = [f"v_mov_b64 {v(VN(0)+2*j, 2)}, 0" for j in range(8)] + [f"v_mov_b64 {v(V_L[0], 2)}, 0", f"s_mov_b32 s{S_TRIP}, 0"]
    h0 = H(0, True) if glu else g_epilogue()
    c += rd[:12] + ini + merge_streams([flat(rd[12:]), h0[:24]]) + h0[24:]
    def pfix(u):
        return [f"s_cmp_lg_u32 s{S_TLO}, 0", f"s_cbranch_scc1 L_pf{u}{sfx}"] + fixcall(0, u) + [f"L_pf{u}{sfx}:"]
    c += pfix(0)
    c += ["s_waitcnt lgkmcnt(0)"]
    c += F()
    g, g2 = stage_dma("st1")
    pin = {2*f + 1: [f"ds_read_b128 {a_(A_KF + 4*f, 4)}, v{t+2} offset:{8192 + f*1024}"] for f in range(8)}
    h1 = H(1, False)
    fill, _ = place(16, pin, merge_streams([nopm0(g) + g2, h1[:45]]), 15)
    mq = qk_mfma([0, 1], 0)
    mq[1] = mq[1].rsplit(",", 1)[0] + ", 0"
    c += interleave(mq, fill)
    c += F()
    c += [rdv(f, 0) for f in range(6)] + (h1[45:] if glu else ["s_nop 5"])
    c += merge_streams([rowmax(VS(g, 0), t + 4 + 2*g) for g in range(2)])
    c += [f"v_mov_b32 v{t+5}, v{t+4}", f"v_sub_f32 v{t+8}, 0, v{t+6}", f"v_sub_f32 v{t+9}, 0, v{t+6}", f"v_mov_b32 v{t+7}, v{t+6}"]
    c += [f"v_pk_add_f32 {v(VN(0)+2*j,2)}, {v(VN(0)+2*j,2)}, {v(t+4,2)} neg_lo:[0,1] neg_hi:[0,1]" for j in range(8)]
    c += [f"v_mov_b64 {v(VN(1)+2*j, 2)}, {v(t+8,2)}" for j in range(8)]
    for g in range(2):
        c += [f"v_pk_add_f32 {v(VS(g,0)+2*j,2)}, {v(VS(g,0)+2*j,2)}, {v(t+4+2*g,2)} neg_lo:[0,1] neg_hi:[0,1]" for j in range(8)]
    c += ["s_waitcnt lgkmcnt(0)", "s_barrier"] + [rdv(f, 0) for f in range(6, 8)]
    c += pfix(1)
    c += F()
    pin = {2*f + 1: [rdk(f, 0)] for f in range(8)}
    fill, _ = place(16, pin, merge_streams([sm_stream(0, 0), sm_stream(1, 0)]), 15)
    c += ["s_nop 1"] + interleave(qk_mfma([0, 1], 1), fill)
    c += F()
    for j in range(2, 8): c += H(j, True)
    c += F()
    c += [f"v_mov_b64 {v(t, 2)}, 0", f"v_mov_b64 {v(t+2, 2)}, 0"]
    g, g2 = stage_dma("st2"); g3, _ = stage_dma("st3")
    fill, _ = place(8, {}, nopm0(g)[2:] + g2 + nopm0(g3), 7)
    c += nopm0(g)[:2] + interleave([f"{MF32} {a_(128 + 16*k, 16)}, {v(t,4)}, {v(t,4)}, 0" for k in range(8)], fill)
    c += ["s_waitcnt lgkmcnt(0)"]
    return flat(c)

def p3(pre_e, t_extra, pollh, e_extra):
    c = []
    D, so = auto_wait_loop(body("D"), [[]])
    Dp, so1 = auto_wait(body("Dp"), [[]] + so)
    T, so2 = auto_wait(body("T", t_extra), [[]] + so1)
    Sb, so3 = auto_wait_loop(body("S"), so2)
    Sp, so4 = auto_wait(body("Sp"), so2 + so3)
    E, _ = auto_wait(body("E", e_extra), so2 + so4)
    c += stamp()
    c += flat([f"s_cmp_eq_u32 s{S_TLO}, 0", "s_cbranch_scc1 L_T", f"s_sub_u32 s{S_LAST}, s{S_TLO}, 1", f"s_cmp_eq_u32 s{S_LAST}, 0", "s_cbranch_scc1 L_Dp",
               f"s_cmp_eq_u32 s{S_W}, 0", f"s_cselect_b32 s{S_LAST}, 1, s{S_LAST}"])
    c += align() + flat(["L_D:"]) + D
    c += flat([f"s_cmp_eq_u32 s{S_TRIP}, 1", "s_cbranch_scc1 L_sigD"])
    outofline.extend(flat(["L_sigD:"]) + signal("h", "L_sig_h1", V3_T) + flat([f"s_sub_u32 s{S_LAST}, s{S_TLO}, 1", f"s_cmp_lg_u32 s{S_LAST}, 1", "s_cbranch_scc1 L_D", "s_branch L_Dp"]))
    c += flat(["L_Dp:", f"s_cmp_lg_u32 s{S_RH}, 0", "s_cbranch_scc1 L_Dp1"] + fixcall(0, 0) + ["L_Dp1:"]) + Dp
    c += flat(["L_T:"]) + stamp() + T + (stamp() if opt.dbgst < 0 else [])
    c += flat([f"s_cmp_lg_u32 s{S_CH}, 0", "s_cbranch_scc1 L_noepi", f"s_cmp_lg_u32 s{S_P}, 0", "s_cbranch_scc1 L_sig_h0"]) + signal("h", "L_sig_h0", V3_T)
    c += flat([f"s_call_b64 s[{S_RET}:{S_RET+1}], L_epi0", "L_noepi:"])
    c += stamp()
    c += flat([f"s_cmp_eq_u32 s{S_TLO}, 15", "s_cbranch_scc1 L_spin_h", f"s_add_u32 s{S_TRIP}, s{S_TLO}, 1", f"s_sub_u32 s{S_LAST}, s{S_THI}, 1"])
    c += align() + flat(["L_S:"]) + Sb
    c += flat([f"s_cmp_eq_u32 s{S_RH}, 0", "s_cbranch_scc1 L_Sp1"] + fixcall(1, 0) + ["L_Sp1:"]) + pollh + Sp
    c += flat(["L_E:"]) + stamp() + pre_e + E + (stamp() if opt.dbgst < 0 else [])
    c += flat([f"s_cmp_eq_u32 s{S_CH}, 0", "s_cbranch_scc1 L_epi_hi", f"s_call_b64 s[{S_RET}:{S_RET+1}], L_epi0", "s_barrier", "L_epi_hi:"])
    outofline.extend(flat(["L_epi0:", "s_nop 7"]) + o_epilogue(0) + flat([f"s_setpc_b64 s[{S_RET}:{S_RET+1}]"]))
    for g in range(2):
        outofline.extend(fix(g))
        for b in range(2): outofline.extend(rare(g, b))
    return c
```

```python
import sys, struct, math
from asmlib import *

NAME = "gated_mix__compressed_kv_cla__glu_gated_glu__prompt"
def f2u(x): return struct.unpack("<I", struct.pack("<f", x))[0]
QSCALE = math.log2(math.e) / math.sqrt(128.0)
LOG2E = math.log2(math.e)

WS_K = 0
WS_V = 16 << 20
WS_A = 32 << 20
WS_X = 56 << 20
WS_F = 64 << 20
WS_FH = WS_F + 4096
WS_FK = WS_F + 8192
WS_G = WS_F + 65536
WS_T = 65 << 20
WS_BYTES = 72 << 20
NSL = 184

P_X, P_C, P_WQ, P_WUK, P_WUV, P_WO, P_BX, P_WG, P_WU, P_WD, P_GW, P_OUT, P_DBG, P_WS = range(4, 32, 2)
S_H, S_P, S_W, S_T0 = 32, 33, 34, 35
SRD_A, SRD_W0, SRD_W1, SRD_WS, SRD_DBG, SRD_K, SRD_V = 36, 40, 44, 48, 52, 56, 60
S_ACTA, S_ACTB, S_W0, S_W1, S_WL, S_CNT, S_SL = 64, 65, 66, 67, 69, 70, 71
S_STK = 68
S_T1, S_T2, S_T3, S_T4 = 72, 73, 74, 75
S_RH, S_CH = 76, 77
S_TRIP, S_TLO, S_THI, S_RING, S_KOFF, S_DLO, S_DHI, S_THR = 78, 79, 80, 81, 82, 83, 84, 85
S_RET = 86
S_LAST, S_THRB = 88, 89
S_M0, S_M1 = 90, 92
S_STAMP = 94
S_GLU, S_STV = 98, 99
S_XO = 3
S_TAG = 101
S_M2 = 16

MF16 = "v_mfma_f32_16x16x32_bf16"
MF32 = "v_mfma_f32_32x32x16_bf16"

class Opt:
    dbgst = -1
    wsoff = 0
    fine = 0
    stamps = False
    pfcode = 1
    pf4 = 1
    nt1 = 1
    nt2 = 0
    ntt = 0
    pf2 = 4
    st0 = 0
    st1 = 22
    align = 0
opt = Opt()
outofline = []

def srd(d, ptr, nbytes):
    return [f"s_mov_b32 s{d}, s{ptr}", f"s_mov_b32 s{d+1}, s{ptr+1}", f"s_mov_b32 s{d+2}, {nbytes}", f"s_mov_b32 s{d+3}, 0x20000"]

nstamp = [0]
def stamp(vt=0):
    if not opt.stamps: return []
    n = nstamp[0]; nstamp[0] += 1
    if opt.dbgst >= 0:
        lab = f"L_dst{n}_{len(outofline)}_{id(object())}"
        if n >= 15: return []
        return tag(["s_memrealtime vcc", f"s_lshl_b32 s{S_STAMP}, s2, 2", f"s_add_u32 s{S_STAMP}, s{S_STAMP}, s{S_W}", "s_waitcnt lgkmcnt(0)", f"s_sub_u32 s{S_STAMP+1}, vcc_lo, s100",
                    f"s_cmp_eq_u32 s{S_STAMP}, {opt.dbgst*4}", f"s_cselect_b32 s{S_STAMP}, {4 + 4*n}, 0x1000", f"v_mov_b32 v{vt}, s{S_STAMP+1}",
                    f"buffer_store_dword v{vt}, off, s[{SRD_DBG}:{SRD_DBG+3}], s{S_STAMP} sc1", "s_nop 0"], "uncounted")
    head = [f"s_memtime s[{S_STAMP}:{S_STAMP+1}]", "s_memrealtime vcc", "s_waitcnt lgkmcnt(0)",
            f"v_mov_b32 v{vt}, s{S_STAMP}", f"v_mov_b32 v{vt+1}, vcc_lo"]
    if n == 0: head = [f"v_mov_b32 v{vt}, s100", f"v_mov_b32 v{vt+1}, s100"]
    c = head + [f"s_lshl_b32 s{S_STAMP}, s2, 2", f"s_add_u32 s{S_STAMP}, s{S_STAMP}, s{S_W}", f"s_lshl_b32 s{S_STAMP}, s{S_STAMP}, 9",
            f"s_add_u32 s{S_STAMP}, s{S_STAMP}, {WS_T + 8*n}",
            f"buffer_store_dwordx2 v[{vt}:{vt+1}], off, s[{SRD_WS}:{SRD_WS+3}], s{S_STAMP}", "s_nop 0"]
    c = tag(c, "uncounted")
    return c + (stamp(vt) if n == 0 else [])

def lane_to(r):
    return [f"v_mbcnt_lo_u32_b32 v{r}, -1, 0", f"v_mbcnt_hi_u32_b32 v{r}, -1, v{r}"]

def spin(label, vaddr, srd_, soff, expect, vt, ret, cmp='ne'):
    outofline.extend(flat([f"{label}:", f"s_mov_b32 s{S_T4}, 0", f"{label}_l:",
                 f"buffer_load_dword v{vt}, v{vaddr}, {s(srd_,4)}, {soff} offen sc1", "s_waitcnt vmcnt(0)",
                 f"v_cmp_{cmp}_u32 vcc, {expect}, v{vt}", f"s_add_u32 s{S_T4}, s{S_T4}, 1", f"s_cbranch_vccz {ret}",
                 "s_sleep 2", f"s_cmp_lt_u32 s{S_T4}, 100000", f"s_cbranch_scc1 {label}_l", f"s_branch {ret}"]))

def flag_off(kind, dst):
    if kind == "k": return [f"s_lshl_b32 s{dst}, s{S_H}, 5", f"s_add_u32 s{dst}, s{dst}, s{S_P}", f"s_lshl_b32 s{dst}, s{dst}, 2", f"s_add_u32 s{dst}, s{dst}, {WS_FK}"]
    return [f"s_lshl_b32 s{dst}, s{S_P}, 5", f"s_add_u32 s{dst}, s{dst}, s{S_H}", f"s_lshl_b32 s{dst}, s{dst}, 2", f"s_add_u32 s{dst}, s{dst}, {WS_FH if kind == 'h' else WS_F}"]
def wave0(label, body):
    return tag([f"s_cmp_lg_u32 s{S_W}, 0", f"s_cbranch_scc1 {label}", "s_mov_b64 exec, 1"] + body + ["s_mov_b64 exec, -1", f"{label}:"], "uncounted")
def signal(kind, label, vt):
    return wave0(label, flag_off(kind, S_T0) + [f"v_mov_b32 v{vt}, s{S_TAG}", f"buffer_store_dword v{vt}, off, {s(SRD_WS,4)}, s{S_T0} sc1"])
TAGGER = 152
def tagger_test(label): return [f"s_lshl_b32 s{S_T0}, s2, 2", f"s_add_u32 s{S_T0}, s{S_T0}, s{S_W}", f"s_cmp_eq_u32 s{S_T0}, {TAGGER*4}", f"s_cbranch_scc1 {label}", f"{label}_r:"]
def tag_load():
    outofline.extend(flat(["L_tagl:"] + lane_to(172) + ["v_lshlrev_b32 v173, 4, v172", "v_lshrrev_b32 v174, 1, v172", "v_lshlrev_b32 v174, 7, v174", "v_and_b32 v172, 1, v172",
        "v_lshl_add_u32 v174, v172, 4, v174", f"s_mov_b32 s{S_T0}, {WS_F}", f"s_mov_b32 s{S_T1}, {WS_FH}", f"s_mov_b32 s{S_T2}, {WS_FK}",
        f"buffer_load_dwordx4 v[160:163], v173, {s(SRD_WS,4)}, s{S_T0} offen sc1", f"buffer_load_dwordx4 v[164:167], v173, {s(SRD_WS,4)}, s{S_T1} offen sc1",
        f"buffer_load_dwordx4 v[168:171], v174, {s(SRD_WS,4)}, s{S_T2} offen sc1", "s_branch L_tagl_r"]))
    return tagger_test("L_tagl")
def tag_pick():
    c = ["L_tagp:", f"s_mov_b32 s{S_T1}, 0", "L_tagp_l:", f"s_add_u32 s{S_T1}, s{S_T1}, 1", f"s_mov_b64 s[{S_M1}:{S_M1+1}], 0"]
    for k in range(12): c += [f"v_cmp_eq_u32 vcc, s{S_T1}, v{160+k}", f"s_or_b64 s[{S_M1}:{S_M1+1}], s[{S_M1}:{S_M1+1}], vcc"]
    c += ["s_cbranch_scc1 L_tagp_l", f"v_mov_b32 v172, s{S_T1}", "s_mov_b64 exec, 1", f"buffer_store_dword v172, off, {s(SRD_DBG,4)}, 0 sc1", "s_mov_b64 exec, -1", "s_branch L_tagp_r"]
    outofline.extend(flat(c))
    return tagger_test("L_tagp")

V_RA = 2
V_RW = 6
V_RG = 14
V_DA = 18
V_DW = 22
V_DG = 26
V_STK, V_STV = 30, 31
F_I = 32
F_J = 64
V_PK = 128

def acc(i, j): return (i*8 + j)*4
def fi(ip, ii, kh): return F_I + (ip & 1)*16 + (ii*2 + kh)*4
def fj(j, kh): return F_J + (j*2 + kh)*4

def rd_j(j, par):
    return [f"ds_read_b128 {v(fj(j, kh), 4)}, {v(V_RA + par*2 + kh)} offset:{(1 + (j >> 2))*16384 + (j & 3)*2048}" for kh in range(2)]
def rd_i(ip, par, gu):
    c = []
    for ii in range(2):
        for kh in range(2):
            for r in range(2):
                d = fi(ip, ii, kh) + 2*r
                if gu and ip >= 2:
                    c.append(f"ds_read_b64_tr_b16 {v(d, 2)}, {v(V_RG + par*2 + (ip & 1))} offset:{3*16384 + ii*8192 + kh*4096 + r*512}")
                else:
                    c.append(f"ds_read_b64_tr_b16 {v(d, 2)}, {v(V_RW + par*4 + (ip & 1)*2 + ii)} offset:{3*(ip >> 1)*16384 + kh*8192 + r*1024}")
    return c
def dma_piece(which, st, gu=False):
    par = st & 1
    vo, sr, so = {0: (V_DW, SRD_W0, S_W0), 1: (V_DA, SRD_A, S_ACTA), 2: (V_DA, SRD_A, S_ACTB), 3: (V_DG if gu else V_DW, SRD_W1, S_W1)}[which]
    g = [f"s_add_u32 m0, s{S_WL}, {par*65536 + which*16384}"]
    nt = "nt " if (which in (0, 3) and (opt.nt1 if st < 8 else opt.nt2)) else ""
    g += [f"buffer_load_dwordx4 {v(vo+d)}, {s(sr,4)}, s{so} offen offset:{d*1024} {nt}lds" for d in range(4)]
    inc = {0: 64*8192, 1: 128, 2: 128, 3: 64*3584 if gu else 64*8192}[which]
    g += [f"s_add_u32 s{so}, s{so}, {inc}"]
    return tag(g, (which, st))

def quad_mfma(ip, swap, zero):
    m = []
    for j in range(8):
        for ii in range(2):
            for kh in range(2):
                d = a_(acc(2*ip + ii, j), 4)
                w = v(fi(ip, ii, kh), 4); x = v(fj(j, kh), 4)
                A, B = (x, w) if swap else (w, x)
                m.append(f"{MF16} {d}, {A}, {B}, {'0' if (zero and kh == 0) else d}")
    return m

def gemm_step(st, glu=True, streams=None, pre=None, vm_need=None, post=None, altmf=None):
    par = st & 1
    p2 = st >= 8
    streams = streams or {}; pre = pre or {}; vm_need = vm_need or {}; post = post or {}; altmf = altmf or {}
    c = []
    for q in range(4):
        pin = {}
        add = lambda p, x: pin.setdefault(p, []).append(x)
        mf = quad_mfma(q, (not p2) and q >= 2, st in (0, 8))
        skip = (not glu) and p2 and q >= 2
        if q < 3:
            rds = rd_i(q + 1, par, p2) if (glu or not p2 or q == 0) else []
            for k, x in enumerate(rds): add(2*k, x)
            if q == 0: add(15, "s_waitcnt lgkmcnt(8)")
            if q == 1: add(29, "s_waitcnt lgkmcnt(0)")
        elif st < 15:
            for k, x in enumerate(rd_i(0, 1 - par, False)): add([0, 1, 2, 5, 6, 9, 10, 13][k], x)
            for j in range(8):
                a, b = rd_j(j, 1 - par)
                add(4*j + 3, a); add(min(4*j + 4, 31), b)
            add(31, "s_waitcnt lgkmcnt(8)")
        w, ds_ = [(3, st + 1), (1, st + 2), (2, st + 2), (0, st + 2)][q]
        if ds_ <= 15:
            g = dma_piece(w, ds_, gu=(ds_ >= 8))
            pos = [1, 5, 9, 13, 17, 19] if q < 3 else [14, 17, 21, 25, 29, 30]
            for x, p in zip(g, pos): add(p, x)
        fill, cap = place(32, pin, streams.get(q, []), 31)
        c += flat(pre.get(q, []))
        if skip:
            c += flat(altmf.get(q, []))
            for p in sorted(fill):
                for x in fill[p]:
                    c.append(x)
                    if x.op.startswith("s_add_u32") and ("s", "m0") in x.defs: c.append(Ins("s_nop 0"))
        else:
            c += interleave(mf, fill)
        if q == 0: c += [VmWait([(3, st)] + vm_need.get(q, [])), Ins("s_barrier")]
        if q == 2 and st == 15: c += [Ins("s_waitcnt lgkmcnt(0)")]
        elif q == 2: c += [VmWait([(0, st + 1), (1, st + 1), (2, st + 1)] + vm_need.get(q, [])), Ins("s_barrier")]
        c += flat(post.get(q, []))
    return c

def setup():
    c = []
    c += ["s_cmp_ge_u32 s2, 256", "s_cbranch_scc1 L_end"]
    if opt.stamps: c += ["s_memrealtime s[100:101]"]
    c += ["s_load_dwordx16 s[4:19], s[0:1], 0", "s_load_dwordx8 s[20:27], s[0:1], 64", "s_load_dwordx4 s[28:31], s[0:1], 96"]
    L, G, L16, T = 128, 129, 130, 132
    c += [f"v_lshrrev_b32 v{T}, 6, v0", f"v_and_b32 v{L}, 63, v0", f"v_readfirstlane_b32 s{S_W}, v{T}"]
    c += [f"s_and_b32 s{S_T0}, s2, 7", f"s_lshl_b32 s{S_T0}, s{S_T0}, 2", f"s_lshr_b32 s{S_H}, s2, 3", f"s_and_b32 s{S_H}, s{S_H}, 3",
          f"s_add_u32 s{S_H}, s{S_H}, s{S_T0}", f"s_lshr_b32 s{S_P}, s2, 5"]
    c += [f"s_and_b32 s{S_W}, s{S_W}, 3", f"s_and_b32 s{S_RH}, s{S_W}, 1", f"s_lshr_b32 s{S_CH}, s{S_W}, 1", f"s_lshl_b32 s{S_WL}, s{S_W}, 12"]
    c += [f"v_lshrrev_b32 v{G}, 4, v{L}", f"v_and_b32 v{L16}, 15, v{L}"]
    c += [f"v_lshlrev_b32 v{T}, 13, v{G}", f"v_lshlrev_b32 v{T+1}, 1, v{G}", f"v_xor_b32 v{T+1}, v{T+1}, v{L16}", f"v_xor_b32 v{T+2}, 8, v{T+1}",
          f"v_lshl_add_u32 v{V_DW}, v{T+1}, 4, v{T}", f"v_lshl_add_u32 v{T+2}, v{T+2}, 4, v{T}", f"v_add_u32 v{V_DW+1}, {4*8192 - 1024}, v{V_DW}",
          f"v_add_u32 v{V_DW+2}, {8*8192 - 2048}, v{T+2}", f"v_add_u32 v{V_DW+3}, {12*8192 - 3072}, v{T+2}"]
    c += [f"v_lshrrev_b32 v{T}, 3, v{L}", f"v_lshlrev_b32 v{T}, 10, v{T}", f"v_and_b32 v{T+1}, 7, v{L}", f"v_xor_b32 v{T+1}, v{T+1}, v{G}", f"v_xor_b32 v{T+2}, 4, v{T+1}",
          f"v_lshl_add_u32 v{V_DA}, v{T+1}, 4, v{T}", f"v_lshl_add_u32 v{T+2}, v{T+2}, 4, v{T}", f"v_add_u32 v{V_DA+1}, {8192 - 1024}, v{T+2}",
          f"v_add_u32 v{V_DA+2}, {2*(8192 - 1024)}, v{V_DA}", f"v_add_u32 v{V_DA+3}, {3*(8192 - 1024)}, v{T+2}"]
    c += [f"s_lshl_b32 s{S_ACTA}, s{S_P}, 18", f"s_lshl_b32 s{S_T0}, s{S_CH}, 17", f"s_add_u32 s{S_ACTA}, s{S_ACTA}, s{S_T0}",
          f"s_lshl_b32 s{S_T0}, s{S_RH}, 15", f"s_add_u32 s{S_ACTA}, s{S_ACTA}, s{S_T0}", f"s_add_u32 s{S_ACTB}, s{S_ACTA}, {64*1024}"]
    c += [f"s_lshl_b32 s{S_W0}, s{S_W}, 17", f"s_lshl_b32 s{S_T0}, s{S_H}, 8", f"s_add_u32 s{S_W0}, s{S_W0}, s{S_T0}", f"s_mov_b32 s{S_W1}, s{S_W0}"]
    c += ["s_waitcnt lgkmcnt(0)"]
    if opt.wsoff: c += [f"s_add_u32 s{P_WS}, s{P_WS}, {opt.wsoff << 20}", f"s_addc_u32 s{P_WS+1}, s{P_WS+1}, 0"]
    c += srd(SRD_W0, P_WUK, 512*8192) + srd(SRD_A, P_C, 2048*1024) + srd(SRD_W1, P_WUV, 512*8192)
    def piece(w, st):
        g = dma_piece(w, st); return [g[0], "s_nop 0"] + g[1:]
    for which in range(4): c += piece(which, 0)
    c += srd(SRD_WS, P_WS, WS_BYTES) + srd(SRD_DBG, P_DBG, 256)
    c += [f"v_lshrrev_b32 v{T}, 1, v{L16}", f"v_xor_b32 v{T}, v{T}, v{G}", f"v_lshlrev_b32 v{T}, 4, v{T}", f"v_lshl_add_u32 v{T}, v{L16}, 7, v{T}",
          f"s_lshl_b32 s{S_T0}, s{S_RH}, 13", f"v_add_u32 v{V_RA}, s{S_T0}, v{T}", f"v_xor_b32 v{V_RA+1}, 64, v{V_RA}",
          f"v_add_u32 v{V_RA+2}, 0x10000, v{V_RA}", f"v_add_u32 v{V_RA+3}, 0x10000, v{V_RA+1}"]
    c += [f"v_lshrrev_b32 v{T}, 2, v{L16}", f"v_and_b32 v{T+1}, 3, v{L16}", f"v_lshl_add_u32 v{T+2}, v{G}, 3, v{T}",
          f"v_and_b32 v{T+3}, 1, v{G}", f"v_lshl_add_u32 v{T+4}, v{T+3}, 2, v{T}",
          f"v_lshlrev_b32 v{T+5}, 8, v{T+2}", f"v_lshl_add_u32 v{T+5}, v{T+1}, 3, v{T+5}",
          f"s_lshl_b32 s{S_T0}, s{S_CH}, 2", f"v_xor_b32 v{T+4}, s{S_T0}, v{T+4}"]
    for i in range(4):
        c += [f"v_xor_b32 v{T+6}, {i}, v{T+4}", f"v_lshl_add_u32 v{V_RW+i}, v{T+6}, 5, v{T+5}", f"v_add_u32 v{V_RW+4+i}, 0x10000, v{V_RW+i}"]
    c += [f"v_lshrrev_b32 v{T+4}, 1, v{T}", f"v_lshl_add_u32 v{T+4}, v{T+3}, 1, v{T+4}",
          f"v_lshlrev_b32 v{T+5}, 7, v{T+2}", f"v_lshl_add_u32 v{T+5}, v{T+1}, 3, v{T+5}",
          f"s_lshl_b32 s{S_T0}, s{S_CH}, 1", f"v_xor_b32 v{T+4}, s{S_T0}, v{T+4}"]
    for fb in range(2):
        c += [f"v_xor_b32 v{T+6}, {fb}, v{T+4}", f"v_lshl_add_u32 v{V_RG+fb}, v{T+6}, 5, v{T+5}", f"v_add_u32 v{V_RG+2+fb}, 0x10000, v{V_RG+fb}"]
    c += [f"v_lshrrev_b32 v{T}, 3, v{L}", f"v_mul_u32_u24 v{T}, 3584, v{T}", f"v_and_b32 v{T+1}, 7, v{L}", f"v_lshlrev_b32 v{T+2}, 1, v{T+3}",
          f"v_xor_b32 v{T+1}, v{T+1}, v{T+2}"]
    for d in range(4):
        c += [f"v_xor_b32 v{T+2}, {4*(d & 1)}, v{T+1}", f"v_lshl_add_u32 v{V_DG+d}, v{T+2}, 4, v{T}"]
        if d: c += [f"v_add_u32 v{V_DG+d}, {d*8*3584 - d*1024}, v{V_DG+d}"]
    c += [f"v_lshrrev_b32 v{T}, 1, v{G}", f"v_lshlrev_b32 v{T+1}, 10, v{T+3}", f"v_lshl_add_u32 v{T+1}, v{T}, 9, v{T+1}",
          f"v_lshrrev_b32 v{T+2}, 3, v{L16}", f"v_lshl_add_u32 v{T+1}, v{T+2}, 8, v{T+1}", f"v_and_b32 v{T+2}, 7, v{L}", f"v_lshl_add_u32 v{V_STK}, v{T+2}, 4, v{T+1}"]
    c += [f"v_lshlrev_b32 v{T+1}, 10, v{T}", f"v_lshl_add_u32 v{T+1}, v{T+3}, 9, v{T+1}", f"v_lshl_add_u32 v{V_STV}, v{L16}, 4, v{T+1}"]
    c += [f"s_lshl_b32 s{S_T0}, s{S_H}, 19", f"s_lshl_b32 s{S_T1}, s{S_P}, 16", f"s_add_u32 s{S_T0}, s{S_T0}, s{S_T1}", f"s_lshl_b32 s{S_T1}, s{S_RH}, 15",
          f"s_add_u32 s{S_T0}, s{S_T0}, s{S_T1}", f"s_lshl_b32 s{S_T1}, s{S_CH}, 12", f"s_add_u32 s{S_STK}, s{S_T0}, s{S_T1}", f"s_add_u32 s{S_STV}, s{S_STK}, {WS_V}"]
    c += [f"s_lshr_b32 s{S_T0}, s{S_H}, 3", f"s_mul_i32 s{S_SL}, s{S_T0}, 7", f"s_lshr_b32 s{S_T0}, s{S_H}, 2", f"s_and_b32 s{S_T0}, s{S_T0}, 1",
          f"s_and_b32 s{S_T1}, s{S_H}, 3", f"s_lshl_b32 s{S_T2}, s{S_T0}, 2", f"s_add_u32 s{S_T2}, s{S_T2}, s{S_T1}",
          f"s_lshr_b32 s{S_T3}, s{S_P}, 2", f"s_cmp_eq_u32 s{S_T3}, s{S_T0}", f"s_cselect_b32 s{S_GLU}, 1, 0",
          f"s_cmp_eq_u32 s{S_T1}, 3", f"s_cselect_b32 s{S_T2}, 3, s{S_T2}", f"s_cselect_b32 s{S_GLU}, s{S_GLU}, 1", f"s_add_u32 s{S_SL}, s{S_SL}, s{S_T2}"]
    c += [f"s_and_b32 s{S_T0}, s{S_H}, 7", f"s_lshl_b32 s{S_T1}, s{S_P}, 3", f"s_add_u32 s{S_T0}, s{S_T0}, s{S_T1}", f"s_lshl_b32 s{S_T0}, s{S_T0}, 17",
          f"s_lshl_b32 s{S_T1}, s{S_W}, 11", f"s_add_u32 s{S_T0}, s{S_T0}, s{S_T1}", f"s_add_u32 s{S_XO}, s{S_T0}, {WS_X}"]
    c += tag_load()
    c += piece(1, 1) + piece(2, 1)
    if opt.pfcode:
        c += tag(["s_getpc_b64 s[88:89]", f"s_lshr_b32 s{S_T0}, s2, 3", f"s_mul_i32 s{S_T0}, s{S_T0}, {opt.pfcode*128}", f"v_min_u32 v{T+10}, {opt.pfcode - 1}, v{L}",
                  f"v_lshl_add_u32 v{T+10}, v{T+10}, 7, s{S_T0}", f"global_load_dword v{T+11}, v{T+10}, s[88:89]"], "pf")
    return flat(c)

def sw_act_w0():
    c = srd(SRD_A, P_X, 2048*1024) + srd(SRD_W0, P_WQ, 512*8192)
    c += [f"s_sub_u32 s{S_T0}, 15, s{S_P}", f"s_cmp_eq_u32 s{S_CH}, 0", f"s_cselect_b32 s{S_T0}, s{S_P}, s{S_T0}", f"s_lshl_b32 s{S_ACTA}, s{S_T0}, 17",
          f"s_lshl_b32 s{S_T0}, s{S_RH}, 15", f"s_add_u32 s{S_ACTA}, s{S_ACTA}, s{S_T0}", f"s_add_u32 s{S_ACTB}, s{S_ACTA}, {64*1024}"]
    c += [f"s_lshl_b32 s{S_W0}, s{S_W}, 17", f"s_lshl_b32 s{S_T0}, s{S_H}, 8", f"s_add_u32 s{S_W0}, s{S_W0}, s{S_T0}"]
    return c
def sw_w1():
    c = [f"s_cmp_eq_u32 s{S_CH}, 0", f"s_cselect_b32 s{SRD_W1}, s{P_WG}, s{P_WU}", f"s_cselect_b32 s{SRD_W1+1}, s{P_WG+1}, s{P_WU+1}",
         f"s_mul_i32 s{SRD_W1+2}, s{S_GLU}, {512*3584}"]
    c += [f"s_mul_i32 s{S_W1}, s{S_RH}, {32*3584}", f"s_lshl_b32 s{S_T0}, s{S_SL}, 7", f"s_add_u32 s{S_W1}, s{S_W1}, s{S_T0}"]
    return c

def kv_chunks():
    out = {0: [], 1: [], 2: [], 3: []}
    n = 0
    for e in range(2):
        for j in range(8):
            srcs = [acc(2*e, j) + b for b in range(4)] + [acc(2*e+1, j) + b for b in range(4)]
            out[e].append((n, srcs, ("K", j >> 1, (j & 1)*128 + e*2048))); n += 1
    for ib in range(4):
        for uu in range(4):
            srcs = [acc(4+ib, 2*uu) + b for b in range(4)] + [acc(4+ib, 2*uu+1) + b for b in range(4)]
            out[2 + (ib >> 1)].append((n, srcs, ("V", uu, (ib & 1)*256 + (ib >> 1)*2048))); n += 1
    for ip in (2, 3): out[ip].sort(key=lambda x: x[2][1])
    return out
def conv_stream(ip):
    c = []
    for n, srcs, _ in kv_chunks()[ip]:
        for k in range(0, 4, 2):
            P = V_PK + 4*n + k
            c += [f"v_accvgpr_read_b32 v{P}, a{srcs[2*k]}", f"v_accvgpr_read_b32 v0, a{srcs[2*k+1]}",
                  f"v_accvgpr_read_b32 v{P+1}, a{srcs[2*k+2]}", f"v_accvgpr_read_b32 v1, a{srcs[2*k+3]}",
                  f"v_cvt_pk_bf16_f32 v{P}, v{P}, v0", f"v_cvt_pk_bf16_f32 v{P+1}, v{P+1}, v1"]
    return c
def kv_stores():
    ch = kv_chunks()
    out = []
    for kind, ips, vo, so in (("K", (0, 1), V_STK, S_STK), ("V", (2, 3), V_STV, S_STV)):
        for uu in range(4):
            grp = [x for ip in ips for x in ch[ip] if x[2][1] == uu]
            for k, (n, _, (_k, _u, off)) in enumerate(grp):
                g = [f"buffer_store_dwordx4 {v(V_PK + 4*n, 4)}, v{vo}, {s(SRD_WS,4)}, s{so} offen offset:{off} sc1"]
                if k == 3 and uu < 3: g += [f"s_add_u32 s{so}, s{so}, 8192"]
                out.append(tag(g, "kv"))
    return out
def init_stores():
    c = lane_to(132) + ["v_lshlrev_b32 v132, 4, v132"] + [f"v_mov_b32 v{128+k}, -1" for k in range(4)]
    c += [f"s_lshr_b32 s{S_T1}, s{S_H}, 3"]
    for q in range(1, 4):
        c += [f"s_xor_b32 s{S_T0}, s{S_T1}, {q}", f"s_lshl_b32 s{S_T0}, s{S_T0}, 15", f"s_add_u32 s{S_T0}, s{S_T0}, s{S_XO}", f"s_add_u32 s{S_T0}, s{S_T0}, {q*8192}"]
        c += [f"buffer_store_dwordx4 v[128:131], v132, {s(SRD_WS,4)}, s{S_T0} offen offset:{k*1024} sc1" for k in range(2)]
    return tag(c, "init")

def touch(k, ntt):
    nt = "nt" if ntt else ""
    T = 128
    st = lane_to(T)
    if k == 0:
        pre = srd(SRD_K, P_X, 2048*1024); n = 16; nt = ""
        st += [f"v_lshlrev_b32 v{T+1}, 7, v{T}", f"s_lshl_b32 s{S_T0}, s2, 2", f"s_add_u32 s{S_T0}, s{S_T0}, s{S_W}", f"s_lshl_b32 s{S_T0}, s{S_T0}, 11"]
    elif k == 1:
        pre = srd(SRD_K, P_WQ, 512*8192); n = 32
        st += [f"v_lshrrev_b32 v{T+1}, 1, v{T}", f"v_lshlrev_b32 v{T+1}, 13, v{T+1}", f"v_and_b32 v{T+2}, 1, v{T}", f"v_lshl_add_u32 v{T+1}, v{T+2}, 7, v{T+1}",
               f"s_lshl_b32 s{S_T0}, s{S_P}, 2", f"s_add_u32 s{S_T0}, s{S_T0}, s{S_W}", f"s_lshl_b32 s{S_T0}, s{S_T0}, 17", f"s_lshl_b32 s{S_T1}, s{S_H}, 8", f"s_add_u32 s{S_T0}, s{S_T0}, s{S_T1}"]
    else:
        pre = [f"s_cmp_eq_u32 s{S_CH}, 0", f"s_cselect_b32 s{SRD_K}, s{P_WG}, s{P_WU}", f"s_cselect_b32 s{SRD_K+1}, s{P_WG+1}, s{P_WU+1}", f"s_mov_b32 s{SRD_K+2}, {512*3584}"]; n = 32
        st += [f"v_mul_u32_u24 v{T+1}, 3584, v{T}", f"s_lshl_b32 s{S_T0}, s{S_P}, 1", f"s_add_u32 s{S_T0}, s{S_T0}, s{S_RH}", f"s_mul_i32 s{S_T0}, s{S_T0}, {32*3584}",
               f"s_lshl_b32 s{S_T1}, s{S_SL}, 7", f"s_add_u32 s{S_T0}, s{S_T0}, s{S_T1}"]
    sh = {16: 4, 32: 5}[n]
    st += [f"v_lshrrev_b32 v{T+2}, {sh}, v{T}", f"v_lshl_add_u32 v{T+1}, v{T+2}, 28, v{T+1}"]
    st = flat(st) + tag([f"buffer_load_dword v{T+3}, v{T+1}, {s(SRD_K,4)}, s{S_T0} offen {nt}"], "pf")
    return pre, st

def p1(vm):
    c = [VmWait([(0, 0), (1, 0), (2, 0)]), Ins("s_barrier")]
    g = dma_piece(0, 1)
    rds = rd_i(0, 0, False)
    for j in range(8): rds += rd_j(j, 0)
    c += flat(rds[:12] + [g[0]] + rds[12:14] + g[1:] + rds[14:] + ["s_waitcnt lgkmcnt(8)"])
    for st in range(6):
        pre = {}; streams = {}
        post = {}
        plan = {0: {}, 1: {(1, 1): (0, 0), (2, 1): (1, 0), (3, 1): (2, 0)},
                2: {(1, 1): (0, 0), (2, 1): (1, 1), (3, 1): (1, 0), (4, 1): (2, 1), (5, 1): (2, 0)},
                3: {(1, 1): (0, 0), (2, 0): (1, 1), (2, 2): (1, 0), (4, 0): (2, 1), (4, 2): (2, 0)},
                4: {(1, 1): (0, 0), (3, 1): (1, 0), (5, 1): (2, 0)}}[opt.pf2]
        for q in range(4):
            if (st, q) in plan:
                a, b = touch(*plan[(st, q)]); pre[q] = a; streams[q] = b
        if st == 1: post[0] = tag_pick()
        c += gemm_step(st, pre=pre, streams=streams, post=post)
        if opt.fine == 1: c += stamp()
    cv = conv_stream(0) + conv_stream(1)
    spin("L_spin_tag", 140, SRD_DBG, "0", "0", 141, "L_spin_tag_r", cmp="eq")
    c += gemm_step(6, pre={1: sw_act_w0()}, streams={0: flat(["v_mov_b32 v140, 0"]) + tag([f"buffer_load_dword v141, v140, {s(SRD_DBG,4)}, 0 offen sc1"], "tag")})
    if opt.fine == 1: c += stamp()
    c += gemm_step(7, pre={0: sw_w1()}, streams={1: cv[:66], 2: cv[66:138], 3: cv[138:192]}, vm_need={0: ["tag"]},
                   post={0: ["v_cmp_eq_u32 vcc, 0, v141", "s_cbranch_vccnz L_spin_tag", "L_spin_tag_r:", f"v_readfirstlane_b32 s{S_TAG}, v141"]})
    c, lgo = auto_wait(c, [[]])
    c, vm = vm_pass(c, vm)
    return c, vm, lgo
```

```python
import sys, struct, math
from asmlib import *

NAME = "gated_mix__compressed_kv_cla__glu_gated_glu__prompt"
def f2u(x): return struct.unpack("<I", struct.pack("<f", x))[0]
QSCALE = math.log2(math.e) / math.sqrt(128.0)
LOG2E = math.log2(math.e)

WS_K = 0
WS_V = 16 << 20
WS_A = 32 << 20
WS_X = 56 << 20
WS_F = 64 << 20
WS_FH = WS_F + 4096
WS_FK = WS_F + 8192
WS_G = WS_F + 65536
WS_T = 65 << 20
WS_BYTES = 72 << 20
NSL = 184

P_X, P_C, P_WQ, P_WUK, P_WUV, P_WO, P_BX, P_WG, P_WU, P_WD, P_GW, P_OUT, P_DBG, P_WS = range(4, 32, 2)
S_H, S_P, S_W, S_T0 = 32, 33, 34, 35
SRD_A, SRD_W0, SRD_W1, SRD_WS, SRD_DBG, SRD_K, SRD_V = 36, 40, 44, 48, 52, 56, 60
S_ACTA, S_ACTB, S_W0, S_W1, S_WL, S_CNT, S_SL = 64, 65, 66, 67, 69, 70, 71
S_STK = 68
S_T1, S_T2, S_T3, S_T4 = 72, 73, 74, 75
S_RH, S_CH = 76, 77
S_TRIP, S_TLO, S_THI, S_RING, S_KOFF, S_DLO, S_DHI, S_THR = 78, 79, 80, 81, 82, 83, 84, 85
S_RET = 86
S_LAST, S_THRB = 88, 89
S_M0, S_M1 = 90, 92
S_STAMP = 94
S_GLU, S_STV = 98, 99
S_XO = 3
S_TAG = 101
S_M2 = 16

MF16 = "v_mfma_f32_16x16x32_bf16"
MF32 = "v_mfma_f32_32x32x16_bf16"

class Opt:
    thr = 0
    sel = 0
    dbgst = -1
    wsoff = 0
    fine = 0
    stamps = False
    pfcode = 1
    pf4 = 1
    nt1 = 1
    nt2 = 0
    ntt = 0
    pf2 = 4
    st0 = 0
    st1 = 22
    align = 0
opt = Opt()
outofline = []

def srd(d, ptr, nbytes):
    return [f"s_mov_b32 s{d}, s{ptr}", f"s_mov_b32 s{d+1}, s{ptr+1}", f"s_mov_b32 s{d+2}, {nbytes}", f"s_mov_b32 s{d+3}, 0x20000"]

nstamp = [0]
def stamp(vt=0):
    if not opt.stamps: return []
    n = nstamp[0]; nstamp[0] += 1
    if opt.thr:
        sel = {0: {1: 94, 3: 12, 7: 13}, 1: {0: 94, 1: 95, 2: 12}, 2: {9: 94, 12: 12, 13: 13}}[opt.sel]
        if n not in sel: return []
        return flat(["s_memrealtime vcc", "s_waitcnt lgkmcnt(0)", f"s_sub_u32 s{sel[n]}, vcc_lo, s100"])
    if opt.dbgst >= 0:
        lab = f"L_dst{n}_{len(outofline)}_{id(object())}"
        if n >= 15: return []
        return tag(["s_memrealtime vcc", f"s_lshl_b32 s{S_STAMP}, s2, 2", f"s_add_u32 s{S_STAMP}, s{S_STAMP}, s{S_W}", "s_waitcnt lgkmcnt(0)", f"s_sub_u32 s{S_STAMP+1}, vcc_lo, s100",
                    f"s_cmp_eq_u32 s{S_STAMP}, {opt.dbgst*4}", f"s_cselect_b32 s{S_STAMP}, {4 + 4*n}, 0x1000", f"v_mov_b32 v{vt}, s{S_STAMP+1}",
                    f"buffer_store_dword v{vt}, off, s[{SRD_DBG}:{SRD_DBG+3}], s{S_STAMP} sc1", "s_nop 0"], "uncounted")
    head = [f"s_memtime s[{S_STAMP}:{S_STAMP+1}]", "s_memrealtime vcc", "s_waitcnt lgkmcnt(0)",
            f"v_mov_b32 v{vt}, s{S_STAMP}", f"v_mov_b32 v{vt+1}, vcc_lo"]
    if n == 0: head = [f"v_mov_b32 v{vt}, s100", f"v_mov_b32 v{vt+1}, s100"]
    c = head + [f"s_lshl_b32 s{S_STAMP}, s2, 2", f"s_add_u32 s{S_STAMP}, s{S_STAMP}, s{S_W}", f"s_lshl_b32 s{S_STAMP}, s{S_STAMP}, 9",
            f"s_add_u32 s{S_STAMP}, s{S_STAMP}, {WS_T + 8*n}",
            f"buffer_store_dwordx2 v[{vt}:{vt+1}], off, s[{SRD_WS}:{SRD_WS+3}], s{S_STAMP}", "s_nop 0"]
    c = tag(c, "uncounted")
    return c + (stamp(vt) if n == 0 else [])

def lane_to(r):
    return [f"v_mbcnt_lo_u32_b32 v{r}, -1, 0", f"v_mbcnt_hi_u32_b32 v{r}, -1, v{r}"]

def spin(label, vaddr, srd_, soff, expect, vt, ret, cmp='ne'):
    outofline.extend(flat([f"{label}:", f"s_mov_b32 s{S_T4}, 0", f"{label}_l:",
                 f"buffer_load_dword v{vt}, v{vaddr}, {s(srd_,4)}, {soff} offen sc1", "s_waitcnt vmcnt(0)",
                 f"v_cmp_{cmp}_u32 vcc, {expect}, v{vt}", f"s_add_u32 s{S_T4}, s{S_T4}, 1", f"s_cbranch_vccz {ret}",
                 "s_sleep 2", f"s_cmp_lt_u32 s{S_T4}, 100000", f"s_cbranch_scc1 {label}_l", f"s_branch {ret}"]))

def flag_off(kind, dst):
    if kind == "k": return [f"s_lshl_b32 s{dst}, s{S_H}, 5", f"s_add_u32 s{dst}, s{dst}, s{S_P}", f"s_lshl_b32 s{dst}, s{dst}, 2", f"s_add_u32 s{dst}, s{dst}, {WS_FK}"]
    return [f"s_lshl_b32 s{dst}, s{S_P}, 5", f"s_add_u32 s{dst}, s{dst}, s{S_H}", f"s_lshl_b32 s{dst}, s{dst}, 2", f"s_add_u32 s{dst}, s{dst}, {WS_FH if kind == 'h' else WS_F}"]
def wave0(label, body):
    return tag([f"s_cmp_lg_u32 s{S_W}, 0", f"s_cbranch_scc1 {label}", "s_mov_b64 exec, 1"] + body + ["s_mov_b64 exec, -1", f"{label}:"], "uncounted")
def signal(kind, label, vt):
    return wave0(label, flag_off(kind, S_T0) + [f"v_mov_b32 v{vt}, s{S_TAG}", f"buffer_store_dword v{vt}, off, {s(SRD_WS,4)}, s{S_T0} sc1"])
TAGGER = 152
def tagger_test(label): return [f"s_lshl_b32 s{S_T0}, s2, 2", f"s_add_u32 s{S_T0}, s{S_T0}, s{S_W}", f"s_cmp_eq_u32 s{S_T0}, {TAGGER*4}", f"s_cbranch_scc1 {label}", f"{label}_r:"]
def tag_load():
    outofline.extend(flat(["L_tagl:"] + lane_to(172) + ["v_lshlrev_b32 v173, 4, v172", "v_lshrrev_b32 v174, 1, v172", "v_lshlrev_b32 v174, 7, v174", "v_and_b32 v172, 1, v172",
        "v_lshl_add_u32 v174, v172, 4, v174", f"s_mov_b32 s{S_T0}, {WS_F}", f"s_mov_b32 s{S_T1}, {WS_FH}", f"s_mov_b32 s{S_T2}, {WS_FK}",
        f"buffer_load_dwordx4 v[160:163], v173, {s(SRD_WS,4)}, s{S_T0} offen sc1", f"buffer_load_dwordx4 v[164:167], v173, {s(SRD_WS,4)}, s{S_T1} offen sc1",
        f"buffer_load_dwordx4 v[168:171], v174, {s(SRD_WS,4)}, s{S_T2} offen sc1", "s_branch L_tagl_r"]))
    return tagger_test("L_tagl")
def tag_pick():
    c = ["L_tagp:", f"s_mov_b32 s{S_T1}, 0", "L_tagp_l:", f"s_add_u32 s{S_T1}, s{S_T1}, 1", f"s_mov_b64 s[{S_M1}:{S_M1+1}], 0"]
    for k in range(12): c += [f"v_cmp_eq_u32 vcc, s{S_T1}, v{160+k}", f"s_or_b64 s[{S_M1}:{S_M1+1}], s[{S_M1}:{S_M1+1}], vcc"]
    c += ["s_cbranch_scc1 L_tagp_l", f"v_mov_b32 v172, s{S_T1}", "s_mov_b64 exec, 1", f"buffer_store_dword v172, off, {s(SRD_DBG,4)}, 0 sc1", "s_mov_b64 exec, -1", "s_branch L_tagp_r"]
    outofline.extend(flat(c))
    return tagger_test("L_tagp")

V_RA = 2
V_RW = 6
V_RG = 14
V_DA = 18
V_DW = 22
V_DG = 26
V_STK, V_STV = 30, 31
F_I = 32
F_J = 64
V_PK = 128

def acc(i, j): return (i*8 + j)*4
def fi(ip, ii, kh): return F_I + (ip & 1)*16 + (ii*2 + kh)*4
def fj(j, kh): return F_J + (j*2 + kh)*4

def rd_j(j, par):
    return [f"ds_read_b128 {v(fj(j, kh), 4)}, {v(V_RA + par*2 + kh)} offset:{(1 + (j >> 2))*16384 + (j & 3)*2048}" for kh in range(2)]
def rd_i(ip, par, gu):
    c = []
    for ii in range(2):
        for kh in range(2):
            for r in range(2):
                d = fi(ip, ii, kh) + 2*r
                if gu and ip >= 2:
                    c.append(f"ds_read_b64_tr_b16 {v(d, 2)}, {v(V_RG + par*2 + (ip & 1))} offset:{3*16384 + ii*8192 + kh*4096 + r*512}")
                else:
                    c.append(f"ds_read_b64_tr_b16 {v(d, 2)}, {v(V_RW + par*4 + (ip & 1)*2 + ii)} offset:{3*(ip >> 1)*16384 + kh*8192 + r*1024}")
    return c
def dma_piece(which, st, gu=False):
    par = st & 1
    vo, sr, so = {0: (V_DW, SRD_W0, S_W0), 1: (V_DA, SRD_A, S_ACTA), 2: (V_DA, SRD_A, S_ACTB), 3: (V_DG if gu else V_DW, SRD_W1, S_W1)}[which]
    g = [f"s_add_u32 m0, s{S_WL}, {par*65536 + which*16384}"]
    nt = "nt " if (which in (0, 3) and (opt.nt1 if st < 8 else opt.nt2)) else ""
    g += [f"buffer_load_dwordx4 {v(vo+d)}, {s(sr,4)}, s{so} offen offset:{d*1024} {nt}lds" for d in range(4)]
    inc = {0: 64*8192, 1: 128, 2: 128, 3: 64*3584 if gu else 64*8192}[which]
    g += [f"s_add_u32 s{so}, s{so}, {inc}"]
    return tag(g, (which, st))

def quad_mfma(ip, swap, zero):
    m = []
    for j in range(8):
        for ii in range(2):
            for kh in range(2):
                d = a_(acc(2*ip + ii, j), 4)
                w = v(fi(ip, ii, kh), 4); x = v(fj(j, kh), 4)
                A, B = (x, w) if swap else (w, x)
                m.append(f"{MF16} {d}, {A}, {B}, {'0' if (zero and kh == 0) else d}")
    return m

def gemm_step(st, glu=True, streams=None, pre=None, vm_need=None, post=None, altmf=None):
    par = st & 1
    p2 = st >= 8
    streams = streams or {}; pre = pre or {}; vm_need = vm_need or {}; post = post or {}; altmf = altmf or {}
    c = []
    for q in range(4):
        pin = {}
        add = lambda p, x: pin.setdefault(p, []).append(x)
        mf = quad_mfma(q, (not p2) and q >= 2, st in (0, 8))
        skip = (not glu) and p2 and q >= 2
        if q < 3:
            rds = rd_i(q + 1, par, p2) if (glu or not p2 or q == 0) else []
            for k, x in enumerate(rds): add(2*k, x)
            if q == 0: add(15, "s_waitcnt lgkmcnt(8)")
            if q == 1: add(29, "s_waitcnt lgkmcnt(0)")
        elif st < 15:
            for k, x in enumerate(rd_i(0, 1 - par, False)): add([0, 1, 2, 5, 6, 9, 10, 13][k], x)
            for j in range(8):
                a, b = rd_j(j, 1 - par)
                add(4*j + 3, a); add(min(4*j + 4, 31), b)
            add(31, "s_waitcnt lgkmcnt(8)")
        w, ds_ = [(3, st + 1), (1, st + 2), (2, st + 2), (0, st + 2)][q]
        if ds_ <= 15:
            g = dma_piece(w, ds_, gu=(ds_ >= 8))
            pos = [1, 5, 9, 13, 17, 19] if q < 3 else [14, 17, 21, 25, 29, 30]
            for x, p in zip(g, pos): add(p, x)
        fill, cap = place(32, pin, streams.get(q, []), 31)
        c += flat(pre.get(q, []))
        if skip:
            c += flat(altmf.get(q, []))
            for p in sorted(fill):
                for x in fill[p]:
                    c.append(x)
                    if x.op.startswith("s_add_u32") and ("s", "m0") in x.defs: c.append(Ins("s_nop 0"))
        else:
            c += interleave(mf, fill)
        if q == 0: c += [VmWait([(3, st)] + vm_need.get(q, [])), Ins("s_barrier")]
        if q == 2 and st == 15: c += [Ins("s_waitcnt lgkmcnt(0)")]
        elif q == 2: c += [VmWait([(0, st + 1), (1, st + 1), (2, st + 1)] + vm_need.get(q, [])), Ins("s_barrier")]
        c += flat(post.get(q, []))
    return c

def setup():
    c = []
    c += ["s_cmp_ge_u32 s2, 256", "s_cbranch_scc1 L_end"]
    if opt.stamps: c += ["s_memrealtime s[100:101]"]
    c += ["s_load_dwordx16 s[4:19], s[0:1], 0", "s_load_dwordx8 s[20:27], s[0:1], 64", "s_load_dwordx4 s[28:31], s[0:1], 96"]
    L, G, L16, T = 128, 129, 130, 132
    c += [f"v_lshrrev_b32 v{T}, 6, v0", f"v_and_b32 v{L}, 63, v0", f"v_readfirstlane_b32 s{S_W}, v{T}"]
    c += [f"s_and_b32 s{S_T0}, s2, 7", f"s_lshl_b32 s{S_T0}, s{S_T0}, 2", f"s_lshr_b32 s{S_H}, s2, 3", f"s_and_b32 s{S_H}, s{S_H}, 3",
          f"s_add_u32 s{S_H}, s{S_H}, s{S_T0}", f"s_lshr_b32 s{S_P}, s2, 5"]
    c += [f"s_and_b32 s{S_W}, s{S_W}, 3", f"s_and_b32 s{S_RH}, s{S_W}, 1", f"s_lshr_b32 s{S_CH}, s{S_W}, 1", f"s_lshl_b32 s{S_WL}, s{S_W}, 12"]
    c += [f"v_lshrrev_b32 v{G}, 4, v{L}", f"v_and_b32 v{L16}, 15, v{L}"]
    c += [f"v_lshlrev_b32 v{T}, 13, v{G}", f"v_lshlrev_b32 v{T+1}, 1, v{G}", f"v_xor_b32 v{T+1}, v{T+1}, v{L16}", f"v_xor_b32 v{T+2}, 8, v{T+1}",
          f"v_lshl_add_u32 v{V_DW}, v{T+1}, 4, v{T}", f"v_lshl_add_u32 v{T+2}, v{T+2}, 4, v{T}", f"v_add_u32 v{V_DW+1}, {4*8192 - 1024}, v{V_DW}",
          f"v_add_u32 v{V_DW+2}, {8*8192 - 2048}, v{T+2}", f"v_add_u32 v{V_DW+3}, {12*8192 - 3072}, v{T+2}"]
    c += [f"v_lshrrev_b32 v{T}, 3, v{L}", f"v_lshlrev_b32 v{T}, 10, v{T}", f"v_and_b32 v{T+1}, 7, v{L}", f"v_xor_b32 v{T+1}, v{T+1}, v{G}", f"v_xor_b32 v{T+2}, 4, v{T+1}",
          f"v_lshl_add_u32 v{V_DA}, v{T+1}, 4, v{T}", f"v_lshl_add_u32 v{T+2}, v{T+2}, 4, v{T}", f"v_add_u32 v{V_DA+1}, {8192 - 1024}, v{T+2}",
          f"v_add_u32 v{V_DA+2}, {2*(8192 - 1024)}, v{V_DA}", f"v_add_u32 v{V_DA+3}, {3*(8192 - 1024)}, v{T+2}"]
    c += [f"s_lshl_b32 s{S_ACTA}, s{S_P}, 18", f"s_lshl_b32 s{S_T0}, s{S_CH}, 17", f"s_add_u32 s{S_ACTA}, s{S_ACTA}, s{S_T0}",
          f"s_lshl_b32 s{S_T0}, s{S_RH}, 15", f"s_add_u32 s{S_ACTA}, s{S_ACTA}, s{S_T0}", f"s_add_u32 s{S_ACTB}, s{S_ACTA}, {64*1024}"]
    c += [f"s_lshl_b32 s{S_W0}, s{S_W}, 17", f"s_lshl_b32 s{S_T0}, s{S_H}, 8", f"s_add_u32 s{S_W0}, s{S_W0}, s{S_T0}", f"s_mov_b32 s{S_W1}, s{S_W0}"]
    c += ["s_waitcnt lgkmcnt(0)"]
    if opt.wsoff: c += [f"s_add_u32 s{P_WS}, s{P_WS}, {opt.wsoff << 20}", f"s_addc_u32 s{P_WS+1}, s{P_WS+1}, 0"]
    c += srd(SRD_W0, P_WUK, 512*8192) + srd(SRD_A, P_C, 2048*1024) + srd(SRD_W1, P_WUV, 512*8192)
    def piece(w, st):
        g = dma_piece(w, st); return [g[0], "s_nop 0"] + g[1:]
    for which in range(4): c += piece(which, 0)
    c += srd(SRD_WS, P_WS, WS_BYTES) + srd(SRD_DBG, P_DBG, 256)
    c += [f"v_lshrrev_b32 v{T}, 1, v{L16}", f"v_xor_b32 v{T}, v{T}, v{G}", f"v_lshlrev_b32 v{T}, 4, v{T}", f"v_lshl_add_u32 v{T}, v{L16}, 7, v{T}",
          f"s_lshl_b32 s{S_T0}, s{S_RH}, 13", f"v_add_u32 v{V_RA}, s{S_T0}, v{T}", f"v_xor_b32 v{V_RA+1}, 64, v{V_RA}",
          f"v_add_u32 v{V_RA+2}, 0x10000, v{V_RA}", f"v_add_u32 v{V_RA+3}, 0x10000, v{V_RA+1}"]
    c += [f"v_lshrrev_b32 v{T}, 2, v{L16}", f"v_and_b32 v{T+1}, 3, v{L16}", f"v_lshl_add_u32 v{T+2}, v{G}, 3, v{T}",
          f"v_and_b32 v{T+3}, 1, v{G}", f"v_lshl_add_u32 v{T+4}, v{T+3}, 2, v{T}",
          f"v_lshlrev_b32 v{T+5}, 8, v{T+2}", f"v_lshl_add_u32 v{T+5}, v{T+1}, 3, v{T+5}",
          f"s_lshl_b32 s{S_T0}, s{S_CH}, 2", f"v_xor_b32 v{T+4}, s{S_T0}, v{T+4}"]
    for i in range(4):
        c += [f"v_xor_b32 v{T+6}, {i}, v{T+4}", f"v_lshl_add_u32 v{V_RW+i}, v{T+6}, 5, v{T+5}", f"v_add_u32 v{V_RW+4+i}, 0x10000, v{V_RW+i}"]
    c += [f"v_lshrrev_b32 v{T+4}, 1, v{T}", f"v_lshl_add_u32 v{T+4}, v{T+3}, 1, v{T+4}",
          f"v_lshlrev_b32 v{T+5}, 7, v{T+2}", f"v_lshl_add_u32 v{T+5}, v{T+1}, 3, v{T+5}",
          f"s_lshl_b32 s{S_T0}, s{S_CH}, 1", f"v_xor_b32 v{T+4}, s{S_T0}, v{T+4}"]
    for fb in range(2):
        c += [f"v_xor_b32 v{T+6}, {fb}, v{T+4}", f"v_lshl_add_u32 v{V_RG+fb}, v{T+6}, 5, v{T+5}", f"v_add_u32 v{V_RG+2+fb}, 0x10000, v{V_RG+fb}"]
    c += [f"v_lshrrev_b32 v{T}, 3, v{L}", f"v_mul_u32_u24 v{T}, 3584, v{T}", f"v_and_b32 v{T+1}, 7, v{L}", f"v_lshlrev_b32 v{T+2}, 1, v{T+3}",
          f"v_xor_b32 v{T+1}, v{T+1}, v{T+2}"]
    for d in range(4):
        c += [f"v_xor_b32 v{T+2}, {4*(d & 1)}, v{T+1}", f"v_lshl_add_u32 v{V_DG+d}, v{T+2}, 4, v{T}"]
        if d: c += [f"v_add_u32 v{V_DG+d}, {d*8*3584 - d*1024}, v{V_DG+d}"]
    c += [f"v_lshrrev_b32 v{T}, 1, v{G}", f"v_lshlrev_b32 v{T+1}, 10, v{T+3}", f"v_lshl_add_u32 v{T+1}, v{T}, 9, v{T+1}",
          f"v_lshrrev_b32 v{T+2}, 3, v{L16}", f"v_lshl_add_u32 v{T+1}, v{T+2}, 8, v{T+1}", f"v_and_b32 v{T+2}, 7, v{L}", f"v_lshl_add_u32 v{V_STK}, v{T+2}, 4, v{T+1}"]
    c += [f"v_lshlrev_b32 v{T+1}, 10, v{T}", f"v_lshl_add_u32 v{T+1}, v{T+3}, 9, v{T+1}", f"v_lshl_add_u32 v{V_STV}, v{L16}, 4, v{T+1}"]
    c += [f"s_lshl_b32 s{S_T0}, s{S_H}, 19", f"s_lshl_b32 s{S_T1}, s{S_P}, 16", f"s_add_u32 s{S_T0}, s{S_T0}, s{S_T1}", f"s_lshl_b32 s{S_T1}, s{S_RH}, 15",
          f"s_add_u32 s{S_T0}, s{S_T0}, s{S_T1}", f"s_lshl_b32 s{S_T1}, s{S_CH}, 12", f"s_add_u32 s{S_STK}, s{S_T0}, s{S_T1}", f"s_add_u32 s{S_STV}, s{S_STK}, {WS_V}"]
    c += [f"s_lshr_b32 s{S_T0}, s{S_H}, 3", f"s_mul_i32 s{S_SL}, s{S_T0}, 7", f"s_lshr_b32 s{S_T0}, s{S_H}, 2", f"s_and_b32 s{S_T0}, s{S_T0}, 1",
          f"s_and_b32 s{S_T1}, s{S_H}, 3", f"s_lshl_b32 s{S_T2}, s{S_T0}, 2", f"s_add_u32 s{S_T2}, s{S_T2}, s{S_T1}",
          f"s_lshr_b32 s{S_T3}, s{S_P}, 2", f"s_cmp_eq_u32 s{S_T3}, s{S_T0}", f"s_cselect_b32 s{S_GLU}, 1, 0",
          f"s_cmp_eq_u32 s{S_T1}, 3", f"s_cselect_b32 s{S_T2}, 3, s{S_T2}", f"s_cselect_b32 s{S_GLU}, s{S_GLU}, 1", f"s_add_u32 s{S_SL}, s{S_SL}, s{S_T2}"]
    c += [f"s_and_b32 s{S_T0}, s{S_H}, 7", f"s_lshl_b32 s{S_T1}, s{S_P}, 3", f"s_add_u32 s{S_T0}, s{S_T0}, s{S_T1}", f"s_lshl_b32 s{S_T0}, s{S_T0}, 17",
          f"s_lshl_b32 s{S_T1}, s{S_W}, 11", f"s_add_u32 s{S_T0}, s{S_T0}, s{S_T1}", f"s_add_u32 s{S_XO}, s{S_T0}, {WS_X}"]
    c += tag_load()
    c += piece(1, 1) + piece(2, 1)
    if opt.pfcode:
        c += tag(["s_getpc_b64 s[88:89]", f"s_lshr_b32 s{S_T0}, s2, 3", f"s_mul_i32 s{S_T0}, s{S_T0}, {opt.pfcode*128}", f"v_min_u32 v{T+10}, {opt.pfcode - 1}, v{L}",
                  f"v_lshl_add_u32 v{T+10}, v{T+10}, 7, s{S_T0}", f"global_load_dword v{T+11}, v{T+10}, s[88:89]"], "pf")
    return flat(c)

def sw_act_w0():
    c = srd(SRD_A, P_X, 2048*1024) + srd(SRD_W0, P_WQ, 512*8192)
    c += [f"s_sub_u32 s{S_T0}, 15, s{S_P}", f"s_cmp_eq_u32 s{S_CH}, 0", f"s_cselect_b32 s{S_T0}, s{S_P}, s{S_T0}", f"s_lshl_b32 s{S_ACTA}, s{S_T0}, 17",
          f"s_lshl_b32 s{S_T0}, s{S_RH}, 15", f"s_add_u32 s{S_ACTA}, s{S_ACTA}, s{S_T0}", f"s_add_u32 s{S_ACTB}, s{S_ACTA}, {64*1024}"]
    c += [f"s_lshl_b32 s{S_W0}, s{S_W}, 17", f"s_lshl_b32 s{S_T0}, s{S_H}, 8", f"s_add_u32 s{S_W0}, s{S_W0}, s{S_T0}"]
    return c
def sw_w1():
    c = [f"s_cmp_eq_u32 s{S_CH}, 0", f"s_cselect_b32 s{SRD_W1}, s{P_WG}, s{P_WU}", f"s_cselect_b32 s{SRD_W1+1}, s{P_WG+1}, s{P_WU+1}",
         f"s_mul_i32 s{SRD_W1+2}, s{S_GLU}, {512*3584}"]
    c += [f"s_mul_i32 s{S_W1}, s{S_RH}, {32*3584}", f"s_lshl_b32 s{S_T0}, s{S_SL}, 7", f"s_add_u32 s{S_W1}, s{S_W1}, s{S_T0}"]
    return c

def kv_chunks():
    out = {0: [], 1: [], 2: [], 3: []}
    n = 0
    for e in range(2):
        for j in range(8):
            srcs = [acc(2*e, j) + b for b in range(4)] + [acc(2*e+1, j) + b for b in range(4)]
            out[e].append((n, srcs, ("K", j >> 1, (j & 1)*128 + e*2048))); n += 1
    for ib in range(4):
        for uu in range(4):
            srcs = [acc(4+ib, 2*uu) + b for b in range(4)] + [acc(4+ib, 2*uu+1) + b for b in range(4)]
            out[2 + (ib >> 1)].append((n, srcs, ("V", uu, (ib & 1)*256 + (ib >> 1)*2048))); n += 1
    for ip in (2, 3): out[ip].sort(key=lambda x: x[2][1])
    return out
def conv_stream(ip):
    c = []
    for n, srcs, _ in kv_chunks()[ip]:
        for k in range(0, 4, 2):
            P = V_PK + 4*n + k
            c += [f"v_accvgpr_read_b32 v{P}, a{srcs[2*k]}", f"v_accvgpr_read_b32 v0, a{srcs[2*k+1]}",
                  f"v_accvgpr_read_b32 v{P+1}, a{srcs[2*k+2]}", f"v_accvgpr_read_b32 v1, a{srcs[2*k+3]}",
                  f"v_cvt_pk_bf16_f32 v{P}, v{P}, v0", f"v_cvt_pk_bf16_f32 v{P+1}, v{P+1}, v1"]
    return c
def kv_stores():
    ch = kv_chunks()
    out = []
    for kind, ips, vo, so in (("K", (0, 1), V_STK, S_STK), ("V", (2, 3), V_STV, S_STV)):
        for uu in range(4):
            grp = [x for ip in ips for x in ch[ip] if x[2][1] == uu]
            for k, (n, _, (_k, _u, off)) in enumerate(grp):
                g = [f"buffer_store_dwordx4 {v(V_PK + 4*n, 4)}, v{vo}, {s(SRD_WS,4)}, s{so} offen offset:{off} sc1"]
                if k == 3 and uu < 3: g += [f"s_add_u32 s{so}, s{so}, 8192"]
                out.append(tag(g, "kv"))
    return out
def init_stores():
    c = lane_to(132) + ["v_lshlrev_b32 v132, 4, v132"] + [f"v_mov_b32 v{128+k}, -1" for k in range(4)]
    c += [f"s_lshr_b32 s{S_T1}, s{S_H}, 3"]
    for q in range(1, 4):
        c += [f"s_xor_b32 s{S_T0}, s{S_T1}, {q}", f"s_lshl_b32 s{S_T0}, s{S_T0}, 15", f"s_add_u32 s{S_T0}, s{S_T0}, s{S_XO}", f"s_add_u32 s{S_T0}, s{S_T0}, {q*8192}"]
        c += [f"buffer_store_dwordx4 v[128:131], v132, {s(SRD_WS,4)}, s{S_T0} offen offset:{k*1024} sc1" for k in range(2)]
    return tag(c, "init")

def touch(k, ntt):
    nt = "nt" if ntt else ""
    T = 128
    st = lane_to(T)
    if k == 0:
        pre = srd(SRD_K, P_X, 2048*1024); n = 16; nt = ""
        st += [f"v_lshlrev_b32 v{T+1}, 7, v{T}", f"s_lshl_b32 s{S_T0}, s2, 2", f"s_add_u32 s{S_T0}, s{S_T0}, s{S_W}", f"s_lshl_b32 s{S_T0}, s{S_T0}, 11"]
    elif k == 1:
        pre = srd(SRD_K, P_WQ, 512*8192); n = 32
        st += [f"v_lshrrev_b32 v{T+1}, 1, v{T}", f"v_lshlrev_b32 v{T+1}, 13, v{T+1}", f"v_and_b32 v{T+2}, 1, v{T}", f"v_lshl_add_u32 v{T+1}, v{T+2}, 7, v{T+1}",
               f"s_lshl_b32 s{S_T0}, s{S_P}, 2", f"s_add_u32 s{S_T0}, s{S_T0}, s{S_W}", f"s_lshl_b32 s{S_T0}, s{S_T0}, 17", f"s_lshl_b32 s{S_T1}, s{S_H}, 8", f"s_add_u32 s{S_T0}, s{S_T0}, s{S_T1}"]
    else:
        pre = [f"s_cmp_eq_u32 s{S_CH}, 0", f"s_cselect_b32 s{SRD_K}, s{P_WG}, s{P_WU}", f"s_cselect_b32 s{SRD_K+1}, s{P_WG+1}, s{P_WU+1}", f"s_mov_b32 s{SRD_K+2}, {512*3584}"]; n = 32
        st += [f"v_mul_u32_u24 v{T+1}, 3584, v{T}", f"s_lshl_b32 s{S_T0}, s{S_P}, 1", f"s_add_u32 s{S_T0}, s{S_T0}, s{S_RH}", f"s_mul_i32 s{S_T0}, s{S_T0}, {32*3584}",
               f"s_lshl_b32 s{S_T1}, s{S_SL}, 7", f"s_add_u32 s{S_T0}, s{S_T0}, s{S_T1}"]
    sh = {16: 4, 32: 5}[n]
    st += [f"v_lshrrev_b32 v{T+2}, {sh}, v{T}", f"v_lshl_add_u32 v{T+1}, v{T+2}, 28, v{T+1}"]
    st = flat(st) + tag([f"buffer_load_dword v{T+3}, v{T+1}, {s(SRD_K,4)}, s{S_T0} offen {nt}"], "pf")
    return pre, st

def p1(vm):
    c = [VmWait([(0, 0), (1, 0), (2, 0)]), Ins("s_barrier")]
    g = dma_piece(0, 1)
    rds = rd_i(0, 0, False)
    for j in range(8): rds += rd_j(j, 0)
    c += flat(rds[:12] + [g[0]] + rds[12:14] + g[1:] + rds[14:] + ["s_waitcnt lgkmcnt(8)"])
    for st in range(6):
        pre = {}; streams = {}
        post = {}
        plan = {0: {}, 1: {(1, 1): (0, 0), (2, 1): (1, 0), (3, 1): (2, 0)},
                2: {(1, 1): (0, 0), (2, 1): (1, 1), (3, 1): (1, 0), (4, 1): (2, 1), (5, 1): (2, 0)},
                3: {(1, 1): (0, 0), (2, 0): (1, 1), (2, 2): (1, 0), (4, 0): (2, 1), (4, 2): (2, 0)},
                4: {(1, 1): (0, 0), (3, 1): (1, 0), (5, 1): (2, 0)}}[opt.pf2]
        for q in range(4):
            if (st, q) in plan:
                a, b = touch(*plan[(st, q)]); pre[q] = a; streams[q] = b
        if st == 1: post[0] = tag_pick()
        c += gemm_step(st, pre=pre, streams=streams, post=post)
        if opt.fine == 1: c += stamp()
    cv = conv_stream(0) + conv_stream(1)
    spin("L_spin_tag", 140, SRD_DBG, "0", "0", 141, "L_spin_tag_r", cmp="eq")
    c += gemm_step(6, pre={1: sw_act_w0()}, streams={0: flat(["v_mov_b32 v140, 0"]) + tag([f"buffer_load_dword v141, v140, {s(SRD_DBG,4)}, 0 offen sc1"], "tag")})
    if opt.fine == 1: c += stamp()
    c += gemm_step(7, pre={0: sw_w1()}, streams={1: cv[:66], 2: cv[66:138], 3: cv[138:192]}, vm_need={0: ["tag"]},
                   post={0: ["v_cmp_eq_u32 vcc, 0, v141", "s_cbranch_vccnz L_spin_tag", "L_spin_tag_r:", f"v_readfirstlane_b32 s{S_TAG}, v141"]})
    c, lgo = auto_wait(c, [[]])
    c, vm = vm_pass(c, vm)
    return c, vm, lgo
```

```python
from g3 import *

S4_AH, S4_AC, S4_WH, S4_WC, S4_HA, S4_HW, S4_KS, S4_MT = S_ACTA, S_ACTB, S_W0, S_W1, S_CNT, 8, 9, 0
S4_AB, S4_WB, S4_GO = 1, 10, 11
V4_DW = 2
V4_A = 6
V4_G = 8
V4_GA = 12
V4_DL = 14
V4_FA = 15
V4_OA = 16
V4_RB = 32
V4_T = 48
V4_ACC = (64, 128)
V4_WF = 192
A4_X = 0
NP = 23
def slot(n): return (n + 6) % 8

def ld_w(n):
    c = [f"s_add_u32 m0, s{S_WL}, {32768 + slot(n)*16384}"]
    if n < 7:
        c += [f"buffer_load_dwordx4 v{V4_DW+d}, {s(SRD_W0,4)}, s{S4_WH} offen offset:{d*1024} lds" for d in range(4)]
        c += [f"s_add_u32 s{S4_WH}, s{S4_WH}, 65536"]
    else:
        c = [f"s_add_u32 s{S4_WC}, s{S4_WB}, s{S4_HW}"] + c
        c += [f"buffer_load_dwordx4 v{V4_DW+d}, {s(SRD_W1,4)}, s{S4_WC} offen offset:{d*1024} lds" for d in range(4)]
        c += [f"s_add_u32 s{S4_HW}, s{S4_HW}, 65536", f"s_and_b32 s{S4_HW}, s{S4_HW}, {16*65536 - 1}"]
    return tag(c, ("w", n))
def ld_a(n):
    so = S4_AH if n < 7 else S4_AC
    c = [] if n < 7 else [f"s_add_u32 s{S4_AC}, s{S4_AB}, s{S4_HA}"]
    for sl in range(2):
        for j in range(2):
            c += [f"buffer_load_dwordx4 {a_(A4_X + (n % 6)*16 + (j*2+sl)*4, 4)}, v{V4_A+j}, {s(SRD_WS,4)}, s{so} offen offset:{sl*2048} sc1"]
    if n < 7: c += [f"s_add_u32 s{S4_AH}, s{S4_AH}, 4096"]
    else: c += [f"s_add_u32 s{S4_HA}, s{S4_HA}, 4096", f"s_and_b32 s{S4_HA}, s{S4_HA}, {16*4096 - 1}"]
    return tag(c, ("a", n))
def rd_wf(n, i):
    part = int(n >= 7); sl_ = slot(n)
    base = V4_RB + (sl_ >> 2)*8 + i
    ro = 2048 if part else 4096
    return [f"ds_read_b64_tr_b16 {v(V4_WF + (i*2+sl)*4 + 2*r, 2)}, v{base} offset:{(sl_ & 3)*16384 + sl*8192 + r*ro}" for sl in range(2) for r in range(2)]

def with_nop(g):
    out = []
    for x in g:
        out.append(x)
        if ("s", "m0") in x.defs: out.append(Ins("s_nop 0"))
    return out

def p4_setup():
    L, T = V_LANE, V4_T
    G, L16 = T + 10, T + 11
    c = srd(SRD_W0, P_WD, 1792*1024) + srd(SRD_W1, P_WO, 4096*1024)
    c += [f"s_lshr_b32 s{S4_KS}, s{S_H}, 3", f"s_bfe_u32 s{S_T1}, s{S_H}, 0x10002", f"s_mul_i32 s{S_T1}, s{S_T1}, 15", f"s_xor_b32 s{S4_MT}, s{S_P}, s{S_T1}"]
    c += [f"s_and_b32 s{S_T2}, s{S_H}, 3", f"s_lshl_b32 s{S_T2}, s{S_T2}, 8", f"s_lshl_b32 s{S_T1}, s{S_W}, 14", f"s_add_u32 s{S_T2}, s{S_T2}, s{S_T1}",
          f"s_mul_i32 s{S4_WH}, s{S4_KS}, {448*1024}", f"s_add_u32 s{S4_WH}, s{S4_WH}, s{S_T2}",
          f"s_lshl_b32 s{S4_WB}, s{S4_KS}, 20", f"s_add_u32 s{S4_WB}, s{S4_WB}, s{S_T2}",
          f"s_and_b32 s{S_T2}, s{S_H}, 7", f"s_lshl_b32 s{S4_HW}, s{S_T2}, 17", f"s_lshl_b32 s{S4_HA}, s{S_T2}, 13"]
    c += [f"s_lshl_b32 s{S_T2}, s{S4_MT}, 2", f"s_add_u32 s{S_T2}, s{S_T2}, s{S_W}", f"s_mul_i32 s{S_T1}, s{S_T2}, {NSL*2048}", f"s_add_u32 s{S_T1}, s{S_T1}, {WS_A}",
          f"s_mul_i32 s{S4_AH}, s{S4_KS}, {14*2048}", f"s_add_u32 s{S4_AH}, s{S4_AH}, s{S_T1}",
          f"s_lshl_b32 s{S4_AB}, s{S4_KS}, 16", f"s_add_u32 s{S4_AB}, s{S4_AB}, s{S_T1}", f"s_add_u32 s{S4_AB}, s{S4_AB}, {56*2048}",
          f"s_lshl_b32 s{S4_GO}, s{S_T2}, 7", f"s_add_u32 s{S4_GO}, s{S4_GO}, {WS_G}"]
    sc = c
    c = [f"v_lshrrev_b32 v{G}, 4, v{L}", f"v_and_b32 v{L16}, 15, v{L}"]
    c += [f"v_lshlrev_b32 v{T}, 10, v{G}", f"v_lshlrev_b32 v{T+1}, 1, v{G}", f"v_xor_b32 v{T+1}, v{T+1}, v{L16}", f"v_xor_b32 v{T+2}, 8, v{T+1}",
          f"v_lshl_add_u32 v{V4_DW}, v{T+1}, 4, v{T}", f"v_lshl_add_u32 v{T+2}, v{T+2}, 4, v{T}", f"v_add_u32 v{V4_DW+1}, {4096 - 1024}, v{T+2}",
          f"v_add_u32 v{V4_DW+2}, {2*(4096 - 1024)}, v{V4_DW}", f"v_add_u32 v{V4_DW+3}, {3*(4096 - 1024)}, v{T+2}"]
    c += [f"s_and_b32 s{S_T2}, s{S4_KS}, 1", f"s_lshl_b32 s{S_T1}, s{S_T2}, 10", f"v_lshl_add_u32 v{V4_A}, v{L}, 4, s{S_T1}", f"v_xor_b32 v{V4_A+1}, 0x400, v{V4_A}",
          f"s_lshl_b32 s{S_T1}, s{S_T2}, 6", f"v_lshl_add_u32 v{V4_GA}, v{L16}, 2, s{S_T1}", f"v_xor_b32 v{V4_GA+1}, 64, v{V4_GA}"]
    c += [f"v_lshrrev_b32 v{T+2}, 2, v{L16}", f"v_and_b32 v{T+3}, 3, v{L16}", f"v_and_b32 v{T+4}, 1, v{G}", f"v_lshl_add_u32 v{T+5}, v{T+4}, 2, v{T+2}",
          f"v_lshl_add_u32 v{T+6}, v{G}, 2, v{T+2}", f"v_lshrrev_b32 v{T+7}, 1, v{G}", f"v_lshlrev_b32 v{V4_DL}, 11, v{T+7}",
          f"v_lshlrev_b32 v{T+3}, 3, v{T+3}", f"v_lshl_add_u32 v{T+6}, v{T+6}, 8, v{T+3}", f"v_add_u32 v{T+6}, 0x8000, v{T+6}",
          f"s_lshr_b32 s{S_T2}, s{S4_KS}, 1", f"s_lshl_b32 s{S_T2}, s{S_T2}, 2", f"v_xor_b32 v{T+5}, s{S_T2}, v{T+5}"]
    for i in range(8):
        c += [f"v_xor_b32 v{T+8}, {i}, v{T+5}", f"v_lshl_add_u32 v{V4_RB+i}, v{T+8}, 5, v{T+6}", f"v_add_u32 v{V4_RB+8+i}, 0x10000, v{V4_RB+i}"]
    c += [f"v_and_b32 v{V4_FA}, 7, v{L}", f"v_lshlrev_b32 v{V4_FA}, 2, v{V4_FA}", f"v_lshlrev_b32 v{V4_OA}, 10, v{L16}", f"v_lshl_add_u32 v{V4_OA}, v{G}, 3, v{V4_OA}"]
    c += [f"s_lshl_b32 s{S_T1}, s{S_P}, 7", f"s_add_u32 s{S_T1}, s{S_T1}, {WS_FH}", f"v_and_b32 v{V_PA}, 31, v{L}", f"v_lshl_add_u32 v{V_PA}, v{V_PA}, 2, s{S_T1}"]
    return flat(sc), flat(c)

def poll_h(): return flat([f"buffer_load_dword v{V_PV}, v{V_PA}, {s(SRD_WS,4)}, 0 offen sc1"])
def pre_e():
    c = flat(["s_waitcnt vmcnt(8)", f"v_cmp_ne_u32 vcc, s{S_TAG}, v{V_PV}", "s_cbranch_vccnz L_spin_h", "L_spin_h_r:"])
    spin("L_spin_h", V_PA, SRD_WS, "0", f"s{S_TAG}", V_PV, "L_spin_h_r")
    return c
def early_loads():
    c = with_nop(ld_w(0)) + ld_a(0) + with_nop(ld_w(1))
    c += tag([f"buffer_load_dword v{V4_G+j}, v{V4_GA+j}, {s(SRD_WS,4)}, s{S4_GO} offen sc1" for j in range(2)], "g")
    c += ld_a(1)
    return c

def p4():
    T = V4_T
    L, PA, PE, PV = V_LANE, V4_FA, V_PE, V_PV
    _, vm0 = vm_pass(early_loads(), [])
    c = with_nop(ld_w(2)) + ld_a(2) + with_nop(ld_w(3)) + flat(srd(SRD_V, P_OUT, 2048*1024))
    c += o_epilogue(1)
    c += stamp()
    c += [VmWait([("w", 0)]), Ins("s_barrier")]
    for i in range(8): c += flat(rd_wf(0, i))
    sched = {n: [ld_w(n + 4) if n + 4 < NP else [], ld_a(n + 3) if n + 3 < NP else []] for n in range(NP)}
    sched[6] = [ld_w(10), ld_w(11)]; sched[7] = [ld_a(9), ld_a(10)]
    sig = signal("c", "L_sig_c", 0)
    for n in range(NP):
        part = int(n >= 7)
        need = [("a", n)] + ([("w", n + 1)] if n + 1 < NP else [])
        if n == opt.sig_it: need += ["ctx"]
        if n == 7: need += ["F"]
        it = [VmWait(need, lg0=False)]
        if n + 1 < NP: it += [Ins("s_barrier")]
        if opt.fine == 2 and n < 12 and n != 7: it += stamp()
        if n == opt.sig_it: it += sig
        if n == 7:
            it += stamp()
            it += flat([f"v_cmp_ne_u32 vcc, s{S_TAG}, v{PV}", "s_cbranch_vccnz L_spin_c", "L_spin_c_r:"])
            spin("L_spin_c", PA, SRD_WS, f"s{S_T3}", f"s{S_TAG}", PV, "L_spin_c_r")
            it += stamp()
        mf = []
        for i in range(8):
            for j in range(2):
                for sl in range(2):
                    d = v(V4_ACC[part] + (i*2+j)*4, 4)
                    mf.append(f"{MF16} {d}, {v(V4_WF + (i*2+sl)*4, 4)}, {a_(A4_X + (n % 6)*16 + (j*2+sl)*4, 4)}, {'0' if n in (0, 7) and sl == 0 else d}")
        pin = {}
        if n + 1 < NP:
            for i in range(8):
                r = rd_wf(n + 1, i)
                for k in range(4): pin.setdefault(min(4*i + 3 + k, 31), []).append(r[k])
        for p_ in (2, 10, 18): pin.setdefault(p_, []).insert(0, Ins(f"s_waitcnt lgkmcnt({4 if p_ == 2 else 8})"))
        st = []
        if n == 5:
            st += flat([f"s_lshl_b32 s{S_T3}, s{S_P}, 2", f"s_add_u32 s{S_T3}, s{S_T3}, s{S4_KS}", f"s_lshl_b32 s{S_T3}, s{S_T3}, 5", f"s_add_u32 s{S_T3}, s{S_T3}, {WS_F}"])
            st += tag([f"buffer_load_dword v{PV}, v{PA}, {s(SRD_WS,4)}, s{S_T3} offen sc1"], "F")
        st += with_nop(sched[n][0]) + with_nop(sched[n][1])
        if n == 5: st += flat([f"v_add_u32 v{V4_RB+i}, v{V4_RB+i}, v{V4_DL}" for i in range(8)])
        if n == 6: it += flat([f"v_add_u32 v{V4_RB+8+i}, v{V4_RB+8+i}, v{V4_DL}" for i in range(8)])
        if n == 8: st += flat([f"v_sub_f32 v{V4_G+2+j}, 1.0, v{V4_G+j}" for j in range(2)])
        if 9 <= n < 17:
            i = n - 9
            st = merge_streams([st, flat([f"v_mul_f32 v{V4_ACC[0] + (i*2+j)*4 + b}, v{V4_ACC[0] + (i*2+j)*4 + b}, v{V4_G+2+j}" for j in range(2) for b in range(4)])])
        fill, _ = place(32, pin, st, 30)
        c += it + interleave(mf, fill)
    c, _ = auto_wait([x for x in c], [[]])
    c, vm = vm_pass(c, vm0)
    c += stamp()
    B, A = V4_ACC
    e = [f"v_lshlrev_b32 v{T}, 4, v{L}"]
    e += [f"s_lshl_b32 s{S_T1}, s{S4_KS}, 15", f"s_add_u32 s{S_T1}, s{S_T1}, s{S_XO}", "s_nop 2"]
    def comb(q):
        j, hf = q & 1, q >> 1
        return [f"v_fmac_f32 v{B + ((4*hf+i)*2+j)*4 + b}, v{A + ((4*hf+i)*2+j)*4 + b}, v{V4_G+j}" for i in range(4) for b in range(4)]
    for q in range(1, 4):
        j, hf = q & 1, q >> 1
        P = 192 + 8*q
        e += comb(q)
        e += [f"s_xor_b32 s{S_T0}, s{S4_KS}, {q}", f"s_lshl_b32 s{S_T0}, s{S_T0}, 15", f"s_add_u32 s{S_T0}, s{S_T0}, s{S_XO}", f"s_add_u32 s{S_T0}, s{S_T0}, {q*8192}"]
        for i in range(4):
            r = B + ((4*hf+i)*2+j)*4
            e += [f"v_cvt_pk_bf16_f32 v{P+2*i}, v{r}, v{r+1}", f"v_cvt_pk_bf16_f32 v{P+2*i+1}, v{r+2}, v{r+3}"]
            if i & 1: e += [f"buffer_store_dwordx4 {v(P + 4*(i >> 1), 4)}, v{T}, {s(SRD_WS,4)}, s{S_T0} offen offset:{(i >> 1)*1024} sc1"]
    e += comb(0)
    e += [f"s_lshl_b32 s{S_T0}, s{S4_MT}, 2", f"s_add_u32 s{S_T0}, s{S_T0}, s{S_W}", f"s_lshl_b32 s{S_T0}, s{S_T0}, 1", f"s_and_b32 s{S_T2}, s{S4_KS}, 1", f"s_add_u32 s{S_T0}, s{S_T0}, s{S_T2}",
          f"s_lshl_b32 s{S_T0}, s{S_T0}, 14", f"s_and_b32 s{S_T2}, s{S_H}, 3", f"s_lshl_b32 s{S_T2}, s{S_T2}, 8", f"s_add_u32 s{S_T0}, s{S_T0}, s{S_T2}",
          f"s_lshr_b32 s{S_T2}, s{S4_KS}, 1", f"s_lshl_b32 s{S_T2}, s{S_T2}, 7", f"s_add_u32 s{S_T0}, s{S_T0}, s{S_T2}",
          f"v_add_u32 v{T+2}, 8192, v{T}", f"v_add_u32 v{T+3}, 16384, v{T}", f"v_add_u32 v{T+4}, 24576, v{T}", f"s_mov_b32 s{S_T4}, 0"]
    e += stamp()
    R = 128
    e += ["L_x:"]
    for q in range(1, 4):
        e += [f"buffer_load_dwordx4 {v(R + 8*q + 4*k, 4)}, v{T+1+q}, {s(SRD_WS,4)}, s{S_T1} offen offset:{k*1024} sc1" for k in range(2)]
    e += ["s_waitcnt vmcnt(0)"]
    e += [f"v_max3_u32 v{T+5}, v{R+8}, v{R+9}, v{R+10}"]
    for k in range(11, 31, 2): e += [f"v_max3_u32 v{T+5}, v{T+5}, v{R+k}, v{R+k+1}"]
    e += [f"v_max_u32 v{T+5}, v{T+5}, v{R+31}", f"v_cmp_eq_u32 vcc, -1, v{T+5}", f"s_add_u32 s{S_T4}, s{S_T4}, 1", "s_cbranch_vccz L_x_ok",
          "s_sleep 1", f"s_cmp_lt_u32 s{S_T4}, 100000", "s_cbranch_scc1 L_x", "L_x_ok:"]
    e += stamp()
    for i in range(4):
        r = B + i*8
        for q in range(1, 4):
            x = R + 8*q + 2*i
            e += [f"v_lshlrev_b32 v{T+5}, 16, v{x}", f"v_and_b32 v{T+6}, 0xffff0000, v{x}", f"v_lshlrev_b32 v{T+7}, 16, v{x+1}", f"v_and_b32 v{T+8}, 0xffff0000, v{x+1}"]
            e += [f"v_add_f32 v{r+b}, v{r+b}, v{T+5+b}" for b in range(4)]
        e += [f"v_cvt_pk_bf16_f32 v{r}, v{r}, v{r+1}", f"v_cvt_pk_bf16_f32 v{r+1}, v{r+2}, v{r+3}",
              f"buffer_store_dwordx2 {v(r,2)}, v{V4_OA}, {s(SRD_V,4)}, s{S_T0} offen offset:{32*i}"]
    return c + flat(e)

def auto_wait_seg(code):
    out = []; seg = []
    for x in code:
        if x.kind == "smem":
            if seg: out += auto_wait(seg, [[]])[0]; seg = []
            out.append(x)
        else: seg.append(x)
    out += auto_wait(seg, [[]])[0]
    return out, None

def build():
    nstamp[0] = 0
    del outofline[:]
    c = setup()
    c, vm = vm_pass(c, [])
    c += stamp()
    x, vm, lg = p1(vm)
    c += x
    if opt.stamps: c += stamp()
    c += flat([f"s_cmp_eq_u32 s{S_GLU}, 0", "s_cbranch_scc1 L_p2n"])
    n0 = nstamp[0]
    c += p2(True, vm, lg, p4_setup()[0])
    nstamp[0] = n0
    p2n = p2(False, vm, lg, p4_setup()[0])
    c += flat(["L_p2_done:"])
    if opt.thr:
        c += flat(["s_cmp_lg_u32 s2, 8", "s_cbranch_scc1 L_nx", "s_getreg_b32 s19, hwreg(HW_REG_XCC_ID, 0, 4)", "s_add_u32 s19, s19, 1", "v_mov_b32 v0, s19",
                   f"buffer_store_dword v0, off, {s(SRD_DBG,4)}, 0 offset:8 sc1", "L_nx:"])
    c += p3(pre_e(), p4_setup()[1], poll_h(), early_loads())
    c += stamp()
    c += p4()
    if opt.stamps: c += flat(["s_waitcnt vmcnt(0)"]) + stamp()
    if opt.thr:
        regs = {0: [94, 12, 13], 1: [94, 95, 12], 2: [94, 12, 13]}[opt.sel] + [18]
        d = ["s_memrealtime vcc", "s_waitcnt lgkmcnt(0)", "s_sub_u32 s18, vcc_lo, s100", f"s_cmp_lt_u32 s18, {opt.thr}", "s_cbranch_scc1 L_end",
             f"s_lshl_b32 s19, s2, 2", f"s_add_u32 s19, s19, s{S_W}", "s_cmp_lg_u32 s19, 0", "s_cbranch_scc1 L_end",
             f"buffer_load_dword v0, off, {s(SRD_DBG,4)}, 0 offset:8 sc1", "s_getreg_b32 s19, hwreg(HW_REG_XCC_ID, 0, 4)", "s_add_u32 s19, s19, 1", "s_waitcnt vmcnt(0)",
             "v_readfirstlane_b32 s20, v0", "s_nop 3", "s_cmp_lg_u32 s19, s20", "s_cbranch_scc1 L_end"]
        for k, r in enumerate(regs):
            d += [f"s_lshr_b32 s19, s{r}, 7", f"s_and_b32 s20, s{r}, 127", "v_cvt_f32_u32 v0, s19", "v_cvt_f32_u32 v1, s20", f"v_cvt_pk_bf16_f32 v{4+k}, v0, v1"]
        d += [f"buffer_store_dwordx4 v[4:7], off, {s(SRD_V,4)}, 0"]
        c += flat(d)
    c += flat(["L_end:", "s_endpgm"])
    c += flat(["L_p2n:"]) + p2n + flat(["s_branch L_p2_done"])
    c += outofline
    c += flat(["s_endpgm", ".fill 1024, 4, 0xbf800000"])
    errs = check_hazards(c)
    for e in errs[:40]: print("HAZARD", e, file=sys.stderr)
    assert not errs
    hdr = open("cdna_kernels/" + NAME + ".s.ref").read().split("; Override launch")[0]
    out = hdr + f"""; Written with my own generator script: one fused persistent kernel, 256 workgroups, one per CU.
; @launch grid=(256,1,1) block=(256,1,1) lds=163840
.amdgcn_target "amdgcn-amd-amdhsa--gfx950"
.text
.globl {NAME}_kernel
.p2align 8
.type {NAME}_kernel,@function
{NAME}_kernel:
""" + text(c) + f""".section .rodata,"a"
.p2align 6
.amdhsa_kernel {NAME}_kernel
  .amdhsa_next_free_vgpr 512
  .amdhsa_next_free_sgpr 102
  .amdhsa_accum_offset 256
  .amdhsa_group_segment_fixed_size 0
  .amdhsa_kernarg_size 112
  .amdhsa_user_sgpr_count 2
  .amdhsa_user_sgpr_kernarg_segment_ptr 1
  .amdhsa_system_sgpr_workgroup_id_x 1
.end_amdhsa_kernel
"""
    return out

if __name__ == "__main__":
    opt.stamps = "--stamps" in sys.argv
    opt.sig_it = 3
    opt.e_vm = 18
    opt.pfcode = 21
    for a in sys.argv[2:]:
        if "=" in a:
            k, x = a.split("="); setattr(opt, k, int(x))
    o = build()
    open(sys.argv[1], "w").write(o)
    print("nstamps", nstamp[0], "bytes", len(o), file=sys.stderr)
```

```python
import re

def rng(kind, a, n=1):
    return f"{kind}{a}" if n == 1 else f"{kind}[{a}:{a+n-1}]"
def v(a, n=1): return rng("v", a, n)
def a_(a, n=1): return rng("a", a, n)
def s(a, n=1): return rng("s", a, n)

_REG = re.compile(r"^-?(?:abs\()?\|?([vas])(?:(\d+)|\[(\d+):(\d+)\])\)?\|?$")
def regs_of(tok):
    tok = tok.strip()
    if tok in ("vcc", "vcc_lo", "vcc_hi"): return {("s", "vcc")}
    if tok in ("exec", "exec_lo", "exec_hi"): return {("s", "exec")}
    if tok == "m0": return {("s", "m0")}
    m = _REG.match(tok)
    if not m: return set()
    k = m.group(1)
    if m.group(2) is not None: return {(k, int(m.group(2)))}
    return {(k, i) for i in range(int(m.group(3)), int(m.group(4)) + 1)}

TRANS = ("v_exp_f32", "v_log_f32", "v_rcp_f32", "v_rsq_f32", "v_sqrt_f32", "v_sin_f32", "v_cos_f32")

class Ins:
    __slots__ = ("text", "op", "ops", "defs", "uses", "kind", "passes", "srcc", "srcab", "wide_data", "label", "mods")
    def __init__(self, text):
        self.text = text
        t = text.split(";")[0].strip()
        self.label = None
        self.defs, self.uses = set(), set()
        self.kind = "other"; self.passes = 0; self.srcc = set(); self.srcab = set(); self.wide_data = set()
        self.op = ""; self.ops = []; self.mods = ""
        if not t: self.kind = "blank"; return
        if t.endswith(":"): self.label = t[:-1]; self.kind = "label"; return
        if t.startswith("."): self.kind = "directive"; return
        p = t.split(None, 1)
        op = p[0]; self.op = op
        rest = p[1] if len(p) > 1 else ""
        rest = re.sub(r"\s+(op_sel|op_sel_hi|neg_lo|neg_hi):\[[^\]]*\]", "", rest)
        ops = [x.strip() for x in rest.split(",")] if rest else []
        if ops:
            last = ops[-1].split()
            self.mods = " ".join(last[1:]); ops[-1] = last[0] if last else ""
        self.ops = ops
        R = regs_of
        base = re.sub(r"_e(32|64)$", "", op)
        if op.startswith("v_mfma"):
            self.kind = "mfma"; self.passes = 8 if "32x32" in op else 4
            self.defs = R(ops[0]); self.srcab = R(ops[1]) | R(ops[2]); self.srcc = R(ops[3]); self.uses = self.srcab | self.srcc
        elif op.startswith("ds_read") or op.startswith("ds_bpermute") or op.startswith("ds_swizzle"):
            self.kind = "ds"; self.defs = R(ops[0])
            for o in ops[1:]: self.uses |= R(o)
        elif op.startswith("ds_"):
            self.kind = "ds"
            for o in ops: self.uses |= R(o)
        elif op.startswith("buffer_load") or op.startswith("global_load"):
            self.kind = "vmem"
            if "lds" in self.mods.split() or "_lds_" in op:
                for o in ops: self.uses |= R(o)
                self.uses |= {("s", "m0")}; self.kind = "dma"
            else:
                self.defs = R(ops[0])
                for o in ops[1:]: self.uses |= R(o)
        elif op.startswith("buffer_store") or op.startswith("buffer_atomic"):
            self.kind = "vmem"
            for o in ops: self.uses |= R(o)
            if "x4" in op or "x3" in op: self.wide_data = R(ops[0])
            if op.startswith("buffer_atomic") and "sc0" in self.mods.split(): self.defs = R(ops[0])
        elif op.startswith("global_store") or op.startswith("global_atomic"):
            self.kind = "vmem"
            for o in ops: self.uses |= R(o)
            if "x4" in op or "x3" in op: self.wide_data = R(ops[1])
        elif op.startswith("buffer_"):
            self.kind = "vmem"
        elif op.startswith("v_"):
            self.kind = "valu"
            if base.startswith("v_permlane") and "swap" in base:
                self.defs = R(ops[0]) | R(ops[1]); self.uses = set(self.defs)
            elif base in ("v_nop",): pass
            else:
                self.defs = R(ops[0])
                st = 1
                if "_co_" in base or base.startswith("v_div_scale"):
                    self.defs |= R(ops[1]); st = 2
                for o in ops[st:]: self.uses |= R(o)
                if base.startswith("v_fmac") or base.startswith("v_writelane") or base.startswith("v_dot2c"): self.uses |= R(ops[0])
                if base.startswith("v_cmpx"): self.defs |= {("s", "exec")}
        elif op.startswith("s_load") or op.startswith("s_mem") or op.startswith("s_buffer_load"):
            self.kind = "smem"; self.defs = R(ops[0])
            for o in ops[1:]: self.uses |= R(o)
        elif op.startswith("s_"):
            self.kind = "salu"
            if op in ("s_waitcnt", "s_nop", "s_barrier", "s_endpgm", "s_sleep", "s_setprio") or op.startswith("s_cbranch") or op == "s_branch":
                self.kind = "ctl"
            elif op.startswith("s_cmp") or op.startswith("s_bitcmp") or op == "s_setpc_b64":
                for o in ops: self.uses |= R(o)
            else:
                self.defs = R(ops[0])
                for o in ops[1:]: self.uses |= R(o)
                if "saveexec" in op: self.defs |= {("s", "exec")}
                if op in ("s_addk_i32", "s_mulk_i32"): self.uses |= R(ops[0])
    def states(self):
        if self.kind in ("blank", "label", "directive"): return 0
        if self.op == "s_nop": return int(self.ops[0], 0) + 1
        return 1
    def __repr__(self): return self.text

def I(x): return x if isinstance(x, Ins) else Ins(x)
def flat(x):
    out = []
    if isinstance(x, (list, tuple)):
        for y in x: out += flat(y)
    elif isinstance(x, Ins): out.append(x)
    else:
        for ln in x.split("\n"):
            if ln.strip(): out.append(Ins(ln.strip()))
    return out

def interleave(main, fill):
    out = list(flat(fill.get(-1, [])))
    for i, m in enumerate(main):
        out += flat(m)
        out += flat(fill.get(i, []))
    for k in fill:
        assert -1 <= k < len(main), (k, len(main))
    return out

def spread(fill, items, lo, hi):
    n = len(items)
    for i, it in enumerate(items):
        pos = lo + (i * (hi - lo)) // n
        fill.setdefault(pos, []).append(it)

_LG = re.compile(r"lgkmcnt\((\d+)\)")
def lgkm_pass(code, state):
    st = list(state); needs = {}
    for idx, ins in enumerate(code):
        if ins.op == "s_waitcnt":
            m = _LG.search(ins.text)
            if m:
                n = int(m.group(1))
                if len(st) > n: st = st[len(st) - n:] if n else []
            continue
        touch = ins.uses | ins.defs
        last = -1
        for j, d in enumerate(st):
            if d & touch: last = j
        if ins.kind == "ds" and last >= 0 and not (st[last] & ins.uses) and not any(d & ins.uses for d in st):
            last = -1
        if last >= 0:
            n = len(st) - 1 - last
            needs[idx] = min(n, 15); st = st[last + 1:]
        if ins.kind == "ds": st.append(frozenset(ins.defs))
        assert ins.kind != "smem" or ins.op.startswith("s_mem"), "smem inside auto-wait region"
    return needs, st

def apply_waits(code, needs):
    out = []
    for idx, ins in enumerate(code):
        if idx in needs: out.append(Ins(f"s_waitcnt lgkmcnt({needs[idx]})"))
        out.append(ins)
    return out

def auto_wait(code, states_in):
    code = flat(code)
    for _ in range(4):
        merged = {}
        for st in states_in:
            needs, _o = lgkm_pass(code, st)
            for k, n in needs.items(): merged[k] = min(n, merged.get(k, 99))
        if not merged: break
        code = apply_waits(code, merged)
    outs = []
    for st in states_in:
        needs, o = lgkm_pass(code, st); assert not needs
        if o not in outs: outs.append(o)
    return code, outs

def auto_wait_loop(body, states_in):
    body = flat(body)
    code, outs = auto_wait(body, states_in)
    sts = list(states_in)
    for _ in range(4):
        new = [o for o in outs if o not in sts]
        if not new: break
        sts += new
        code, outs = auto_wait(body, sts)
    return code, outs

def need_states(p, c):
    n = 0
    vg = lambda S: {r for r in S if r[0] in "va"}
    sg = lambda S: {r for r in S if r[0] == "s"}
    if p.kind == "valu":
        pd = vg(p.defs); ps = sg(p.defs)
        if c.kind == "mfma" and pd & c.uses: n = max(n, 2)
        if c.kind == "valu":
            if c.op.startswith("v_permlane") and pd & c.uses: n = max(n, 2)
            if (c.op.startswith("v_readlane") or c.op.startswith("v_readfirstlane")) and pd & c.uses: n = max(n, 1)
            if "dpp" in c.op or "row_" in c.mods or "quad_perm" in c.mods:
                if pd & c.uses: n = max(n, 2)
            if re.sub(r"_e(32|64)$", "", p.op) in TRANS and pd & c.uses and re.sub(r"_e(32|64)$", "", c.op) not in TRANS: n = max(n, 1)
            if ps & c.uses: n = max(n, 4 if "lane" in c.op else 2)
        if c.kind in ("vmem", "dma") and ps & c.uses: n = max(n, 5)
        if ("s", "exec") in p.defs and c.kind == "mfma": n = max(n, 4)
    if p.kind == "salu" and ("s", "m0") in p.defs and c.kind == "dma": n = max(n, 1)
    if p.kind == "vmem" and p.wide_data and p.wide_data & c.defs: n = max(n, 2)
    if p.kind == "mfma":
        big = {4: 8, 8: 12}[p.passes]
        if c.kind == "mfma":
            if p.defs & c.srcab: n = max(n, big)
            if p.defs & c.srcc and not (p.defs == c.srcc and p.passes == c.passes): n = max(n, big - 2)
            if p.defs & c.defs and not (p.defs & c.srcc) and p.passes != c.passes: n = max(n, big)
        elif c.kind in ("valu", "vmem", "ds", "dma"):
            if p.defs & (c.uses | c.defs): n = max(n, big)
            if c.kind == "valu" and p.srcc & c.defs: n = max(n, p.passes - 1)
    return n

def check_hazards(code):
    code = [c for c in code]
    labels = {c.label: i for i, c in enumerate(code) if c.label}
    errs = []
    def succ(i):
        c = code[i]
        if c.op == "s_endpgm" or c.op == "s_setpc_b64": return []
        if c.op == "s_branch": return [labels[c.ops[0]]]
        if c.op.startswith("s_cbranch"): return [i + 1, labels[c.ops[0]]]
        return [i + 1] if i + 1 < len(code) else []
    for i, p in enumerate(code):
        if p.kind not in ("valu", "salu", "vmem", "mfma"): continue
        stack = [(j, 0) for j in succ(i)]; seen = {}
        while stack:
            j, d = stack.pop()
            if d >= 12 or seen.get(j, 99) <= d: continue
            seen[j] = d
            c = code[j]
            if c.kind not in ("blank", "label", "directive"):
                n = need_states(p, c)
                if n > d: errs.append((i, j, n, d, p.text, c.text))
            for k in succ(j): stack.append((k, d + c.states()))
    return errs

def text(code):
    out = []
    for c in code:
        out.append(c.text if c.kind in ("label", "directive") else "  " + c.text)
    return "\n".join(out) + "\n"

class VmWait(Ins):
    __slots__ = ("need", "lg0")
    def __init__(self, need, lg0=True):
        if lg0 is True: lg0 = " lgkmcnt(0)"
        elif lg0 is False: lg0 = ""
        else: lg0 = f" lgkmcnt({lg0})"
        Ins.__init__(self, "s_waitcnt vmcnt(0)" + lg0)
        self.need = set(need); self.lg0 = lg0
class Tagged(Ins):
    __slots__ = ("tag",)
    def __init__(self, text, tag):
        Ins.__init__(self, text); self.tag = tag
def tag(items, t):
    out = []
    for x in flat(items):
        out.append(Tagged(x.text, t) if x.kind in ("vmem", "dma") else x)
    return out
def vm_pass(code, state):
    st = list(state); out = []
    for ins in code:
        if isinstance(ins, VmWait):
            last = -1
            for j, t in enumerate(st):
                if t in ins.need: last = j
            n = min(63, len(st) - 1 - last)
            st = st[len(st) - n:] if n else []
            out.append(Ins(f"s_waitcnt vmcnt({n})" + ins.lg0))
            continue
        if ins.kind in ("vmem", "dma"):
            t = getattr(ins, "tag", None)
            if t != "uncounted": st.append(t)
        out.append(ins)
    return out, st

def cost(ins):
    ins = I(ins)
    if ins.kind in ("label", "blank", "directive"): return 0
    if ins.op in TRANS: return 8
    if ins.kind in ("dma", "vmem"): return 8
    return 4

def place(n, pinned, stream, last, first=0):
    stream = flat(stream)
    base = [sum(cost(x) for x in flat(pinned.get(i, []))) for i in range(n)]
    fill = {}; k = 0; cap = 0
    for gp in range(first, last + 1):
        rem = sum(cost(x) for x in stream[k:]) + sum(base[gp:last + 1])
        level = rem / (last + 1 - gp)
        used = base[gp]
        while k < len(stream) and (used + cost(stream[k]) / 2 <= level or gp == last):
            fill.setdefault(gp, []).append(stream[k]); used += cost(stream[k]); k += 1
        cap = max(cap, used)
    out = {}
    for i in set(list(pinned) + list(fill)):
        out[i] = flat(pinned.get(i, [])) + flat(fill.get(i, []))
    return out, cap

COSTS = {"dma": 8, "vmem": 8}
def cost(ins):
    ins = I(ins)
    if ins.kind in ("label", "blank", "directive"): return 0
    if ins.op in TRANS: return 8
    return COSTS.get(ins.kind, 4)

def place_dp(n, pinned, stream, last, budget, first=0, extra_base=None):
    stream = flat(stream); m = len(stream)
    base = [sum(cost(x) for x in flat(pinned.get(i, []))) + (extra_base or {}).get(i, 0) for i in range(n)]
    cs = [0]
    for x in stream: cs.append(cs[-1] + cost(x))
    INF = float("inf")
    best = [INF]*(m + 1); best[0] = 0; back = []
    for gp in range(first, last + 1):
        nb = [INF]*(m + 1); bk = [0]*(m + 1)
        for k in range(m + 1):
            if best[k] == INF: continue
            for k2 in range(k, m + 1):
                load = base[gp] + cs[k2] - cs[k]
                val = best[k] + 1000*max(0, load - budget) + load*load/100.0
                if val < nb[k2]: nb[k2] = val; bk[k2] = k
                if load > budget + 80: break
        best = nb; back.append(bk)
    assert best[m] < INF
    k = m; fill = {}
    for gp in range(last, first - 1, -1):
        k0 = back[gp - first][k]; fill[gp] = stream[k0:k]; k = k0
    out = {}; over = 0
    for i in set(list(pinned) + list(fill)):
        out[i] = flat(pinned.get(i, [])) + flat(fill.get(i, []))
        if i >= 0: over += max(0, base[i] + sum(cost(x) for x in fill.get(i, [])) - budget)
    return out, over
```

```python
import sys, struct, math
from asmlib import *

NAME = "gated_mix__compressed_kv_cla__glu_gated_glu__prompt"
def f2u(x): return struct.unpack("<I", struct.pack("<f", x))[0]
QSCALE = math.log2(math.e) / math.sqrt(128.0)
LOG2E = math.log2(math.e)

WS_K = 0
WS_V = 16 << 20
WS_A = 32 << 20
WS_X = 56 << 20
WS_F = 64 << 20
WS_FH = WS_F + 4096
WS_FK = WS_F + 8192
WS_G = WS_F + 65536
WS_T = 65 << 20
WS_BYTES = 72 << 20
NSL = 184

P_X, P_C, P_WQ, P_WUK, P_WUV, P_WO, P_BX, P_WG, P_WU, P_WD, P_GW, P_OUT, P_DBG, P_WS = range(4, 32, 2)
S_H, S_P, S_W, S_T0 = 32, 33, 34, 35
SRD_A, SRD_W0, SRD_W1, SRD_WS, SRD_DBG, SRD_K, SRD_V = 36, 40, 44, 48, 52, 56, 60
S_ACTA, S_ACTB, S_W0, S_W1, S_WL, S_CNT, S_SL = 64, 65, 66, 67, 69, 70, 71
S_STK = 68
S_T1, S_T2, S_T3, S_T4 = 72, 73, 74, 75
S_RH, S_CH = 76, 77
S_TRIP, S_TLO, S_THI, S_RING, S_KOFF, S_DLO, S_DHI, S_THR = 78, 79, 80, 81, 82, 83, 84, 85
S_RET = 86
S_LAST, S_THRB = 88, 89
S_M0, S_M1 = 90, 92
S_STAMP = 94
S_GLU, S_STV = 98, 99
S_XO = 3
S_TAG = 101
S_ROT = 96
S_M2 = 16

MF16 = "v_mfma_f32_16x16x32_bf16"
MF32 = "v_mfma_f32_32x32x16_bf16"

class Opt:
    barpad = 12
    dmac = 8
    lastload = 1
    pfc2 = 0
    xst = 0
    rot1 = 0
    rot2 = 0
    ends = 0
    thr = 0
    sel = 0
    dbgst = -1
    wsoff = 0
    fine = 0
    stamps = False
    pfcode = 1
    pf4 = 1
    nt1 = 1
    nt2 = 0
    ntt = 0
    pf2 = 4
    st0 = 0
    st1 = 22
    align = 0
opt = Opt()
outofline = []

def srd(d, ptr, nbytes):
    return [f"s_mov_b32 s{d}, s{ptr}", f"s_mov_b32 s{d+1}, s{ptr+1}", f"s_mov_b32 s{d+2}, {nbytes}", f"s_mov_b32 s{d+3}, 0x20000"]

nstamp = [0]
def stamp(vt=0, final=False):
    if not opt.stamps: return []
    if opt.ends and not final: return []
    n = nstamp[0]; nstamp[0] += 1
    if opt.thr:
        sel = {0: {1: 94, 3: 12, 7: 13}, 1: {0: 94, 1: 95, 2: 12}, 2: {9: 94, 12: 12, 13: 13}}[opt.sel]
        if n not in sel: return []
        return flat(["s_memrealtime vcc", "s_waitcnt lgkmcnt(0)", f"s_sub_u32 s{sel[n]}, vcc_lo, s100"])
    if opt.dbgst >= 0:
        lab = f"L_dst{n}_{len(outofline)}_{id(object())}"
        if n >= 15: return []
        return tag(["s_memrealtime vcc", f"s_lshl_b32 s{S_STAMP}, s2, 2", f"s_add_u32 s{S_STAMP}, s{S_STAMP}, s{S_W}", "s_waitcnt lgkmcnt(0)", f"s_sub_u32 s{S_STAMP+1}, vcc_lo, s100",
                    f"s_cmp_eq_u32 s{S_STAMP}, {opt.dbgst*4}", f"s_cselect_b32 s{S_STAMP}, {4 + 4*n}, 0x1000", f"v_mov_b32 v{vt}, s{S_STAMP+1}",
                    f"buffer_store_dword v{vt}, off, s[{SRD_DBG}:{SRD_DBG+3}], s{S_STAMP} sc1", "s_nop 0"], "uncounted")
    head = [f"s_memtime s[{S_STAMP}:{S_STAMP+1}]", "s_memrealtime vcc", "s_waitcnt lgkmcnt(0)",
            f"v_mov_b32 v{vt}, s{S_STAMP}", f"v_mov_b32 v{vt+1}, vcc_lo"]
    if n == 0: head = [f"v_mov_b32 v{vt}, s100", f"v_mov_b32 v{vt+1}, s100"]
    c = head + [f"s_lshl_b32 s{S_STAMP}, s2, 2", f"s_add_u32 s{S_STAMP}, s{S_STAMP}, s{S_W}", f"s_lshl_b32 s{S_STAMP}, s{S_STAMP}, 9",
            f"s_add_u32 s{S_STAMP}, s{S_STAMP}, {WS_T + 8*n}",
            f"buffer_store_dwordx2 v[{vt}:{vt+1}], off, s[{SRD_WS}:{SRD_WS+3}], s{S_STAMP}", "s_nop 0"]
    c = tag(c, "uncounted")
    return c + (stamp(vt, final) if n == 0 else [])

def lane_to(r):
    return [f"v_mbcnt_lo_u32_b32 v{r}, -1, 0", f"v_mbcnt_hi_u32_b32 v{r}, -1, v{r}"]

def spin(label, vaddr, srd_, soff, expect, vt, ret, cmp='ne'):
    outofline.extend(flat([f"{label}:", f"s_mov_b32 s{S_T4}, 0", f"{label}_l:",
                 f"buffer_load_dword v{vt}, v{vaddr}, {s(srd_,4)}, {soff} offen sc1", "s_waitcnt vmcnt(0)",
                 f"v_cmp_{cmp}_u32 vcc, {expect}, v{vt}", f"s_add_u32 s{S_T4}, s{S_T4}, 1", f"s_cbranch_vccz {ret}",
                 "s_sleep 2", f"s_cmp_lt_u32 s{S_T4}, 100000", f"s_cbranch_scc1 {label}_l", f"s_branch {ret}"]))

def flag_off(kind, dst):
    if kind == "k": return [f"s_lshl_b32 s{dst}, s{S_H}, 5", f"s_add_u32 s{dst}, s{dst}, s{S_P}", f"s_lshl_b32 s{dst}, s{dst}, 2", f"s_add_u32 s{dst}, s{dst}, {WS_FK}"]
    return [f"s_lshl_b32 s{dst}, s{S_P}, 5", f"s_add_u32 s{dst}, s{dst}, s{S_H}", f"s_lshl_b32 s{dst}, s{dst}, 2", f"s_add_u32 s{dst}, s{dst}, {WS_FH if kind == 'h' else WS_F}"]
def wave0(label, body):
    return tag([f"s_cmp_lg_u32 s{S_W}, 0", f"s_cbranch_scc1 {label}", "s_mov_b64 exec, 1"] + body + ["s_mov_b64 exec, -1", f"{label}:"], "uncounted")
def signal(kind, label, vt):
    return wave0(label, flag_off(kind, S_T0) + [f"v_mov_b32 v{vt}, s{S_TAG}", f"buffer_store_dword v{vt}, off, {s(SRD_WS,4)}, s{S_T0} sc1"])
TAGGER = 152
def tagger_test(label): return [f"s_lshl_b32 s{S_T0}, s2, 2", f"s_add_u32 s{S_T0}, s{S_T0}, s{S_W}", f"s_cmp_eq_u32 s{S_T0}, {TAGGER*4}", f"s_cbranch_scc1 {label}", f"{label}_r:"]
def tag_load():
    outofline.extend(flat(["L_tagl:"] + lane_to(172) + ["v_lshlrev_b32 v173, 4, v172", "v_lshrrev_b32 v174, 1, v172", "v_lshlrev_b32 v174, 7, v174", "v_and_b32 v172, 1, v172",
        "v_lshl_add_u32 v174, v172, 4, v174", f"s_mov_b32 s{S_T0}, {WS_F}", f"s_mov_b32 s{S_T1}, {WS_FH}", f"s_mov_b32 s{S_T2}, {WS_FK}",
        f"buffer_load_dwordx4 v[160:163], v173, {s(SRD_WS,4)}, s{S_T0} offen sc1", f"buffer_load_dwordx4 v[164:167], v173, {s(SRD_WS,4)}, s{S_T1} offen sc1",
        f"buffer_load_dwordx4 v[168:171], v174, {s(SRD_WS,4)}, s{S_T2} offen sc1", "s_branch L_tagl_r"]))
    return tagger_test("L_tagl")
def tag_pick():
    c = ["L_tagp:", f"s_mov_b32 s{S_T1}, 0", "L_tagp_l:", f"s_add_u32 s{S_T1}, s{S_T1}, 1", f"s_mov_b64 s[{S_M1}:{S_M1+1}], 0"]
    for k in range(12): c += [f"v_cmp_eq_u32 vcc, s{S_T1}, v{160+k}", f"s_or_b64 s[{S_M1}:{S_M1+1}], s[{S_M1}:{S_M1+1}], vcc"]
    c += ["s_cbranch_scc1 L_tagp_l", f"v_mov_b32 v172, s{S_T1}", "s_mov_b64 exec, 1", f"buffer_store_dword v172, off, {s(SRD_DBG,4)}, 0 sc1", "s_mov_b64 exec, -1", "s_branch L_tagp_r"]
    outofline.extend(flat(c))
    return tagger_test("L_tagp")

V_RA = 2
V_RW = 6
V_RG = 14
V_DA = 18
V_DW = 22
V_DG = 26
V_STK, V_STV = 30, 31
F_I = 32
F_J = 64
V_PK = 128

def acc(i, j): return (i*8 + j)*4
def fi(ip, ii, kh): return F_I + (ip & 1)*16 + (ii*2 + kh)*4
def fj(j, kh): return F_J + (j*2 + kh)*4

def rd_j(j, par):
    return [f"ds_read_b128 {v(fj(j, kh), 4)}, {v(V_RA + par*2 + kh)} offset:{(1 + (j >> 2))*16384 + (j & 3)*2048}" for kh in range(2)]
def rd_i(ip, par, gu):
    c = []
    for ii in range(2):
        for kh in range(2):
            for r in range(2):
                d = fi(ip, ii, kh) + 2*r
                if gu and ip >= 2:
                    c.append(f"ds_read_b64_tr_b16 {v(d, 2)}, {v(V_RG + par*2 + (ip & 1))} offset:{3*16384 + ii*8192 + kh*4096 + r*512}")
                else:
                    c.append(f"ds_read_b64_tr_b16 {v(d, 2)}, {v(V_RW + par*4 + (ip & 1)*2 + ii)} offset:{3*(ip >> 1)*16384 + kh*8192 + r*1024}")
    return c
def dma_piece(which, st, gu=False):
    par = st & 1
    vo, sr, so = {0: (V_DW, SRD_W0, S_W0), 1: (V_DA, SRD_A, S_ACTA), 2: (V_DA, SRD_A, S_ACTB), 3: (V_DG if gu else V_DW, SRD_W1, S_W1)}[which]
    g = [f"s_add_u32 m0, s{S_WL}, {par*65536 + which*16384}"]
    nt = "nt " if (which in (0, 3) and (opt.nt1 if st < 8 else opt.nt2)) else ""
    g += [f"buffer_load_dwordx4 {v(vo+d)}, {s(sr,4)}, s{so} offen offset:{d*1024} {nt}lds" for d in range(4)]
    inc = {0: 64*8192, 1: 128, 2: 128, 3: 64*3584 if gu else 64*8192}[which]
    t = st & 7
    if (opt.rot1 if st < 8 else opt.rot2) and t in (1, 3, 5):
        g += [[f"s_cmp_eq_u32 s{S_ROT}, {7 - t}", f"s_cselect_b32 s{S_ROT+1}, {8*inc}, 0"], f"s_sub_u32 s{so}, s{so}, s{S_ROT+1}"]
    g += [f"s_add_u32 s{so}, s{so}, {inc}"]
    return [tag(x, (which, st)) for x in g]

def quad_mfma(ip, swap, zero):
    m = []
    for j in range(8):
        for ii in range(2):
            for kh in range(2):
                d = a_(acc(2*ip + ii, j), 4)
                w = v(fi(ip, ii, kh), 4); x = v(fj(j, kh), 4)
                A, B = (x, w) if swap else (w, x)
                m.append(f"{MF16} {d}, {A}, {B}, {'0' if (zero and kh == 0) else d}")
    return m

def gemm_step(st, glu=True, streams=None, pre=None, vm_need=None, post=None, altmf=None):
    par = st & 1
    p2 = st >= 8
    streams = streams or {}; pre = pre or {}; vm_need = vm_need or {}; post = post or {}; altmf = altmf or {}
    c = []
    for q in range(4):
        pin = {}
        add = lambda p, x: pin.setdefault(p, []).append(x)
        mf = quad_mfma(q, (not p2) and q >= 2, st in (0, 8))
        skip = (not glu) and p2 and q >= 2
        if q < 3:
            rds = rd_i(q + 1, par, p2) if (glu or not p2 or q == 0) else []
            for k, x in enumerate(rds): add(2*k, x)
            if q == 0: add(15, "s_waitcnt lgkmcnt(8)")
            if q == 1: add(29, "s_waitcnt lgkmcnt(0)")
        elif st < 15:
            for k, x in enumerate(rd_i(0, 1 - par, False)): add([0, 1, 2, 5, 6, 9, 10, 13][k], x)
            for j in range(8):
                a, b = rd_j(j, 1 - par)
                add(4*j + 3, a); add(min(4*j + 4, 31), b)
            add(31, "s_waitcnt lgkmcnt(8)")
        w, ds_ = [(3, st + 1), (1, st + 2), (2, st + 2), (0, st + 2)][q]
        if ds_ <= 15:
            g = dma_piece(w, ds_, gu=(ds_ >= 8))
            pos = [1, 5, 9, 13, 17, 19, 21, 23] if q < 3 else [13, 14, 17, 18, 21, 22, 25, 26]
            for x, p in zip(g, pos): add(p, x)
        fill, cap = place(32, pin, streams.get(q, []), 31)
        c += flat(pre.get(q, []))
        if skip:
            c += flat(altmf.get(q, []))
            for p in sorted(fill):
                for x in fill[p]:
                    c.append(x)
                    if x.op.startswith("s_add_u32") and ("s", "m0") in x.defs: c.append(Ins("s_nop 0"))
        else:
            c += interleave(mf, fill)
        if q == 0: c += [VmWait([(3, st)] + vm_need.get(q, [])), Ins("s_barrier")]
        if q == 2 and st == 15: c += [Ins("s_waitcnt lgkmcnt(0)")]
        elif q == 2: c += [VmWait([(0, st + 1), (1, st + 1), (2, st + 1)] + vm_need.get(q, [])), Ins("s_barrier")]
        c += flat(post.get(q, []))
    return c

npf = [0]
def code_touch(label, nlines, vt):
    if not opt.pfc2: return [], []
    npf[0] += 1
    pre = [f"s_getpc_b64 s[{S_M0}:{S_M0+1}]", f"L_pc{npf[0]}:", f"s_add_u32 s{S_M0}, s{S_M0}, {label}-L_pc{npf[0]}", f"s_addc_u32 s{S_M0+1}, s{S_M0+1}, 0"]
    st = flat(lane_to(vt) + [f"s_lshr_b32 s{S_T4}, s2, 3", f"s_mul_i32 s{S_T4}, s{S_T4}, {nlines*128}", f"v_min_u32 v{vt}, {nlines - 1}, v{vt}", f"v_lshl_add_u32 v{vt}, v{vt}, 7, s{S_T4}"])
    st += tag([f"global_load_dword v{vt+1}, v{vt}, s[{S_M0}:{S_M0+1}]"], "pf")
    return pre, st

def rot_add(regs):
    c = []
    for r, inc in regs: c += [f"s_mul_i32 s{S_T0}, s{S_ROT}, {inc}", f"s_add_u32 s{r}, s{r}, s{S_T0}"]
    return c

def setup():
    c = []
    c += ["s_cmp_ge_u32 s2, 256", "s_cbranch_scc1 L_end"]
    if opt.stamps: c += ["s_memrealtime s[100:101]"]
    c += ["s_load_dwordx16 s[4:19], s[0:1], 0", "s_load_dwordx8 s[20:27], s[0:1], 64", "s_load_dwordx4 s[28:31], s[0:1], 96"]
    L, G, L16, T = 128, 129, 130, 132
    c += [f"v_lshrrev_b32 v{T}, 6, v0", f"v_and_b32 v{L}, 63, v0", f"v_readfirstlane_b32 s{S_W}, v{T}"]
    c += [f"s_and_b32 s{S_T0}, s2, 7", f"s_lshl_b32 s{S_T0}, s{S_T0}, 2", f"s_lshr_b32 s{S_H}, s2, 3", f"s_and_b32 s{S_H}, s{S_H}, 3",
          f"s_add_u32 s{S_H}, s{S_H}, s{S_T0}", f"s_lshr_b32 s{S_P}, s2, 5"]
    c += [f"s_and_b32 s{S_W}, s{S_W}, 3", f"s_and_b32 s{S_RH}, s{S_W}, 1", f"s_lshr_b32 s{S_CH}, s{S_W}, 1", f"s_lshl_b32 s{S_WL}, s{S_W}, 12"]
    c += [f"v_lshrrev_b32 v{G}, 4, v{L}", f"v_and_b32 v{L16}, 15, v{L}"]
    c += [f"v_lshlrev_b32 v{T}, 13, v{G}", f"v_lshlrev_b32 v{T+1}, 1, v{G}", f"v_xor_b32 v{T+1}, v{T+1}, v{L16}", f"v_xor_b32 v{T+2}, 8, v{T+1}",
          f"v_lshl_add_u32 v{V_DW}, v{T+1}, 4, v{T}", f"v_lshl_add_u32 v{T+2}, v{T+2}, 4, v{T}", f"v_add_u32 v{V_DW+1}, {4*8192 - 1024}, v{V_DW}",
          f"v_add_u32 v{V_DW+2}, {8*8192 - 2048}, v{T+2}", f"v_add_u32 v{V_DW+3}, {12*8192 - 3072}, v{T+2}"]
    c += [f"v_lshrrev_b32 v{T}, 3, v{L}", f"v_lshlrev_b32 v{T}, 10, v{T}", f"v_and_b32 v{T+1}, 7, v{L}", f"v_xor_b32 v{T+1}, v{T+1}, v{G}", f"v_xor_b32 v{T+2}, 4, v{T+1}",
          f"v_lshl_add_u32 v{V_DA}, v{T+1}, 4, v{T}", f"v_lshl_add_u32 v{T+2}, v{T+2}, 4, v{T}", f"v_add_u32 v{V_DA+1}, {8192 - 1024}, v{T+2}",
          f"v_add_u32 v{V_DA+2}, {2*(8192 - 1024)}, v{V_DA}", f"v_add_u32 v{V_DA+3}, {3*(8192 - 1024)}, v{T+2}"]
    c += [f"s_lshl_b32 s{S_ACTA}, s{S_P}, 18", f"s_lshl_b32 s{S_T0}, s{S_CH}, 17", f"s_add_u32 s{S_ACTA}, s{S_ACTA}, s{S_T0}",
          f"s_lshl_b32 s{S_T0}, s{S_RH}, 15", f"s_add_u32 s{S_ACTA}, s{S_ACTA}, s{S_T0}", f"s_add_u32 s{S_ACTB}, s{S_ACTA}, {64*1024}"]
    c += [f"s_lshl_b32 s{S_W0}, s{S_W}, 17", f"s_lshl_b32 s{S_T0}, s{S_H}, 8", f"s_add_u32 s{S_W0}, s{S_W0}, s{S_T0}", f"s_mov_b32 s{S_W1}, s{S_W0}"]
    c += [f"s_add_u32 s{S_ROT}, s{S_H}, s{S_P}", f"s_and_b32 s{S_ROT}, s{S_ROT}, 3", f"s_lshl_b32 s{S_ROT}, s{S_ROT}, 1"]
    if opt.rot1: c += rot_add([(S_ACTA, 128), (S_ACTB, 128), (S_W0, 64*8192), (S_W1, 64*8192)])
    c += ["s_waitcnt lgkmcnt(0)"]
    if opt.wsoff: c += [f"s_add_u32 s{P_WS}, s{P_WS}, {opt.wsoff << 20}", f"s_addc_u32 s{P_WS+1}, s{P_WS+1}, 0"]
    c += srd(SRD_W0, P_WUK, 512*8192) + srd(SRD_A, P_C, 2048*1024) + srd(SRD_W1, P_WUV, 512*8192)
    def piece(w, st):
        g = dma_piece(w, st); return [g[0], "s_nop 0"] + g[1:]
    for which in range(4): c += piece(which, 0)
    c += srd(SRD_WS, P_WS, WS_BYTES) + srd(SRD_DBG, P_DBG, 256)
    c += [f"v_lshrrev_b32 v{T}, 1, v{L16}", f"v_xor_b32 v{T}, v{T}, v{G}", f"v_lshlrev_b32 v{T}, 4, v{T}", f"v_lshl_add_u32 v{T}, v{L16}, 7, v{T}",
          f"s_lshl_b32 s{S_T0}, s{S_RH}, 13", f"v_add_u32 v{V_RA}, s{S_T0}, v{T}", f"v_xor_b32 v{V_RA+1}, 64, v{V_RA}",
          f"v_add_u32 v{V_RA+2}, 0x10000, v{V_RA}", f"v_add_u32 v{V_RA+3}, 0x10000, v{V_RA+1}"]
    c += [f"v_lshrrev_b32 v{T}, 2, v{L16}", f"v_and_b32 v{T+1}, 3, v{L16}", f"v_lshl_add_u32 v{T+2}, v{G}, 3, v{T}",
          f"v_and_b32 v{T+3}, 1, v{G}", f"v_lshl_add_u32 v{T+4}, v{T+3}, 2, v{T}",
          f"v_lshlrev_b32 v{T+5}, 8, v{T+2}", f"v_lshl_add_u32 v{T+5}, v{T+1}, 3, v{T+5}",
          f"s_lshl_b32 s{S_T0}, s{S_CH}, 2", f"v_xor_b32 v{T+4}, s{S_T0}, v{T+4}"]
    for i in range(4):
        c += [f"v_xor_b32 v{T+6}, {i}, v{T+4}", f"v_lshl_add_u32 v{V_RW+i}, v{T+6}, 5, v{T+5}", f"v_add_u32 v{V_RW+4+i}, 0x10000, v{V_RW+i}"]
    c += [f"v_lshrrev_b32 v{T+4}, 1, v{T}", f"v_lshl_add_u32 v{T+4}, v{T+3}, 1, v{T+4}",
          f"v_lshlrev_b32 v{T+5}, 7, v{T+2}", f"v_lshl_add_u32 v{T+5}, v{T+1}, 3, v{T+5}",
          f"s_lshl_b32 s{S_T0}, s{S_CH}, 1", f"v_xor_b32 v{T+4}, s{S_T0}, v{T+4}"]
    for fb in range(2):
        c += [f"v_xor_b32 v{T+6}, {fb}, v{T+4}", f"v_lshl_add_u32 v{V_RG+fb}, v{T+6}, 5, v{T+5}", f"v_add_u32 v{V_RG+2+fb}, 0x10000, v{V_RG+fb}"]
    c += [f"v_lshrrev_b32 v{T}, 3, v{L}", f"v_mul_u32_u24 v{T}, 3584, v{T}", f"v_and_b32 v{T+1}, 7, v{L}", f"v_lshlrev_b32 v{T+2}, 1, v{T+3}",
          f"v_xor_b32 v{T+1}, v{T+1}, v{T+2}"]
    for d in range(4):
        c += [f"v_xor_b32 v{T+2}, {4*(d & 1)}, v{T+1}", f"v_lshl_add_u32 v{V_DG+d}, v{T+2}, 4, v{T}"]
        if d: c += [f"v_add_u32 v{V_DG+d}, {d*8*3584 - d*1024}, v{V_DG+d}"]
    c += [f"v_lshrrev_b32 v{T}, 1, v{G}", f"v_lshlrev_b32 v{T+1}, 10, v{T+3}", f"v_lshl_add_u32 v{T+1}, v{T}, 9, v{T+1}",
          f"v_lshrrev_b32 v{T+2}, 3, v{L16}", f"v_lshl_add_u32 v{T+1}, v{T+2}, 8, v{T+1}", f"v_and_b32 v{T+2}, 7, v{L}", f"v_lshl_add_u32 v{V_STK}, v{T+2}, 4, v{T+1}"]
    c += [f"v_lshlrev_b32 v{T+1}, 10, v{T}", f"v_lshl_add_u32 v{T+1}, v{T+3}, 9, v{T+1}", f"v_lshl_add_u32 v{V_STV}, v{L16}, 4, v{T+1}"]
    c += [f"s_lshl_b32 s{S_T0}, s{S_H}, 19", f"s_lshl_b32 s{S_T1}, s{S_P}, 16", f"s_add_u32 s{S_T0}, s{S_T0}, s{S_T1}", f"s_lshl_b32 s{S_T1}, s{S_RH}, 15",
          f"s_add_u32 s{S_T0}, s{S_T0}, s{S_T1}", f"s_lshl_b32 s{S_T1}, s{S_CH}, 12", f"s_add_u32 s{S_STK}, s{S_T0}, s{S_T1}", f"s_add_u32 s{S_STV}, s{S_STK}, {WS_V}"]
    c += [f"s_lshr_b32 s{S_T0}, s{S_H}, 3", f"s_mul_i32 s{S_SL}, s{S_T0}, 7", f"s_lshr_b32 s{S_T0}, s{S_H}, 2", f"s_and_b32 s{S_T0}, s{S_T0}, 1",
          f"s_and_b32 s{S_T1}, s{S_H}, 3", f"s_lshl_b32 s{S_T2}, s{S_T0}, 2", f"s_add_u32 s{S_T2}, s{S_T2}, s{S_T1}",
          f"s_lshr_b32 s{S_T3}, s{S_P}, 2", f"s_cmp_eq_u32 s{S_T3}, s{S_T0}", f"s_cselect_b32 s{S_GLU}, 1, 0",
          f"s_cmp_eq_u32 s{S_T1}, 3", f"s_cselect_b32 s{S_T2}, 3, s{S_T2}", f"s_cselect_b32 s{S_GLU}, s{S_GLU}, 1", f"s_add_u32 s{S_SL}, s{S_SL}, s{S_T2}"]
    c += [f"s_and_b32 s{S_T0}, s{S_H}, 7", f"s_lshl_b32 s{S_T1}, s{S_P}, 3", f"s_add_u32 s{S_T0}, s{S_T0}, s{S_T1}", f"s_lshl_b32 s{S_T0}, s{S_T0}, 17",
          f"s_lshl_b32 s{S_T1}, s{S_W}, 11", f"s_add_u32 s{S_T0}, s{S_T0}, s{S_T1}", f"s_add_u32 s{S_XO}, s{S_T0}, {WS_X}"]
    c += tag_load()
    c += piece(1, 1) + piece(2, 1)
    if opt.pfcode:
        c += tag(["s_getpc_b64 s[88:89]", f"s_lshr_b32 s{S_T0}, s2, 3", f"s_mul_i32 s{S_T0}, s{S_T0}, {opt.pfcode*128}", f"v_min_u32 v{T+10}, {opt.pfcode - 1}, v{L}",
                  f"v_lshl_add_u32 v{T+10}, v{T+10}, 7, s{S_T0}", f"global_load_dword v{T+11}, v{T+10}, s[88:89]"], "pf")
    return flat(c)

def sw_act_w0():
    c = srd(SRD_A, P_X, 2048*1024) + srd(SRD_W0, P_WQ, 512*8192)
    c += [f"s_sub_u32 s{S_T0}, 15, s{S_P}", f"s_cmp_eq_u32 s{S_CH}, 0", f"s_cselect_b32 s{S_T0}, s{S_P}, s{S_T0}", f"s_lshl_b32 s{S_ACTA}, s{S_T0}, 17",
          f"s_lshl_b32 s{S_T0}, s{S_RH}, 15", f"s_add_u32 s{S_ACTA}, s{S_ACTA}, s{S_T0}", f"s_add_u32 s{S_ACTB}, s{S_ACTA}, {64*1024}"]
    c += [f"s_lshl_b32 s{S_W0}, s{S_W}, 17", f"s_lshl_b32 s{S_T0}, s{S_H}, 8", f"s_add_u32 s{S_W0}, s{S_W0}, s{S_T0}"]
    if opt.rot2: c += rot_add([(S_ACTA, 128), (S_ACTB, 128), (S_W0, 64*8192)])
    return c
def sw_w1():
    c = [f"s_cmp_eq_u32 s{S_CH}, 0", f"s_cselect_b32 s{SRD_W1}, s{P_WG}, s{P_WU}", f"s_cselect_b32 s{SRD_W1+1}, s{P_WG+1}, s{P_WU+1}",
         f"s_mul_i32 s{SRD_W1+2}, s{S_GLU}, {512*3584}"]
    c += [f"s_mul_i32 s{S_W1}, s{S_RH}, {32*3584}", f"s_lshl_b32 s{S_T0}, s{S_SL}, 7", f"s_add_u32 s{S_W1}, s{S_W1}, s{S_T0}"]
    if opt.rot2: c += rot_add([(S_W1, 64*3584)])
    return c

def kv_chunks():
    out = {0: [], 1: [], 2: [], 3: []}
    n = 0
    for e in range(2):
        for j in range(8):
            srcs = [acc(2*e, j) + b for b in range(4)] + [acc(2*e+1, j) + b for b in range(4)]
            out[e].append((n, srcs, ("K", j >> 1, (j & 1)*128 + e*2048))); n += 1
    for ib in range(4):
        for uu in range(4):
            srcs = [acc(4+ib, 2*uu) + b for b in range(4)] + [acc(4+ib, 2*uu+1) + b for b in range(4)]
            out[2 + (ib >> 1)].append((n, srcs, ("V", uu, (ib & 1)*256 + (ib >> 1)*2048))); n += 1
    for ip in (2, 3): out[ip].sort(key=lambda x: x[2][1])
    return out
def conv_stream(ip):
    c = []
    for n, srcs, _ in kv_chunks()[ip]:
        for k in range(0, 4, 2):
            P = V_PK + 4*n + k
            c += [f"v_accvgpr_read_b32 v{P}, a{srcs[2*k]}", f"v_accvgpr_read_b32 v0, a{srcs[2*k+1]}",
                  f"v_accvgpr_read_b32 v{P+1}, a{srcs[2*k+2]}", f"v_accvgpr_read_b32 v1, a{srcs[2*k+3]}",
                  f"v_cvt_pk_bf16_f32 v{P}, v{P}, v0", f"v_cvt_pk_bf16_f32 v{P+1}, v{P+1}, v1"]
    return c
def kv_stores():
    ch = kv_chunks()
    out = []
    for kind, ips, vo, so in (("K", (0, 1), V_STK, S_STK), ("V", (2, 3), V_STV, S_STV)):
        for uu in range(4):
            grp = [x for ip in ips for x in ch[ip] if x[2][1] == uu]
            for k, (n, _, (_k, _u, off)) in enumerate(grp):
                g = [f"buffer_store_dwordx4 {v(V_PK + 4*n, 4)}, v{vo}, {s(SRD_WS,4)}, s{so} offen offset:{off} sc1"]
                if opt.xst == 1: g = ["s_nop 0"]
                if opt.xst == 2: g = [g[0].replace(" sc1", "")]
                if opt.xst == 3: g = [g[0].replace(" sc1", " sc1 nt")]
                if k == 3 and uu < 3: g += [f"s_add_u32 s{so}, s{so}, 8192"]
                out.append(tag(g, "kv"))
    return out
def init_stores():
    c = lane_to(132) + ["v_lshlrev_b32 v132, 4, v132"] + [f"v_mov_b32 v{128+k}, -1" for k in range(4)]
    c += [f"s_lshr_b32 s{S_T1}, s{S_H}, 3"]
    for q in range(1, 4):
        c += [f"s_xor_b32 s{S_T0}, s{S_T1}, {q}", f"s_lshl_b32 s{S_T0}, s{S_T0}, 15", f"s_add_u32 s{S_T0}, s{S_T0}, s{S_XO}", f"s_add_u32 s{S_T0}, s{S_T0}, {q*8192}"]
        c += [f"buffer_store_dwordx4 v[128:131], v132, {s(SRD_WS,4)}, s{S_T0} offen offset:{k*1024} sc1" for k in range(2)]
    return tag(c, "init")

def touch(k, ntt):
    nt = "nt" if ntt else ""
    T = 128
    st = lane_to(T)
    if k == 0:
        pre = srd(SRD_K, P_X, 2048*1024); n = 16; nt = ""
        st += [f"v_lshlrev_b32 v{T+1}, 7, v{T}", f"s_lshl_b32 s{S_T0}, s2, 2", f"s_add_u32 s{S_T0}, s{S_T0}, s{S_W}", f"s_lshl_b32 s{S_T0}, s{S_T0}, 11"]
    elif k == 1:
        pre = srd(SRD_K, P_WQ, 512*8192); n = 32
        st += [f"v_lshrrev_b32 v{T+1}, 1, v{T}", f"v_lshlrev_b32 v{T+1}, 13, v{T+1}", f"v_and_b32 v{T+2}, 1, v{T}", f"v_lshl_add_u32 v{T+1}, v{T+2}, 7, v{T+1}",
               f"s_lshl_b32 s{S_T0}, s{S_P}, 2", f"s_add_u32 s{S_T0}, s{S_T0}, s{S_W}", f"s_lshl_b32 s{S_T0}, s{S_T0}, 17", f"s_lshl_b32 s{S_T1}, s{S_H}, 8", f"s_add_u32 s{S_T0}, s{S_T0}, s{S_T1}"]
    else:
        pre = [f"s_cmp_eq_u32 s{S_CH}, 0", f"s_cselect_b32 s{SRD_K}, s{P_WG}, s{P_WU}", f"s_cselect_b32 s{SRD_K+1}, s{P_WG+1}, s{P_WU+1}", f"s_mov_b32 s{SRD_K+2}, {512*3584}"]; n = 32
        st += [f"v_mul_u32_u24 v{T+1}, 3584, v{T}", f"s_lshl_b32 s{S_T0}, s{S_P}, 1", f"s_add_u32 s{S_T0}, s{S_T0}, s{S_RH}", f"s_mul_i32 s{S_T0}, s{S_T0}, {32*3584}",
               f"s_lshl_b32 s{S_T1}, s{S_SL}, 7", f"s_add_u32 s{S_T0}, s{S_T0}, s{S_T1}"]
    sh = {16: 4, 32: 5}[n]
    st += [f"v_lshrrev_b32 v{T+2}, {sh}, v{T}", f"v_lshl_add_u32 v{T+1}, v{T+2}, 28, v{T+1}"]
    st = flat(st) + tag([f"buffer_load_dword v{T+3}, v{T+1}, {s(SRD_K,4)}, s{S_T0} offen {nt}"], "pf")
    return pre, st

def p1(vm):
    c = [VmWait([(0, 0), (1, 0), (2, 0)]), Ins("s_barrier")]
    g = dma_piece(0, 1)
    rds = rd_i(0, 0, False)
    for j in range(8): rds += rd_j(j, 0)
    c += flat(rds[:12] + [g[0]] + rds[12:14] + g[1:] + rds[14:] + ["s_waitcnt lgkmcnt(8)"])
    for st in range(6):
        pre = {}; streams = {}
        post = {}
        plan = {0: {}, 1: {(1, 1): (0, 0), (2, 1): (1, 0), (3, 1): (2, 0)},
                2: {(1, 1): (0, 0), (2, 1): (1, 1), (3, 1): (1, 0), (4, 1): (2, 1), (5, 1): (2, 0)},
                3: {(1, 1): (0, 0), (2, 0): (1, 1), (2, 2): (1, 0), (4, 0): (2, 1), (4, 2): (2, 0)},
                4: {(1, 1): (0, 0), (3, 1): (1, 0), (5, 1): (2, 0)}}[opt.pf2]
        for q in range(4):
            if (st, q) in plan:
                a, b = touch(*plan[(st, q)]); pre[q] = a; streams[q] = b
        if st == 4: pre[2], streams[2] = code_touch("L_c1", 6, 134)
        if st == 1: post[0] = tag_pick()
        c += gemm_step(st, pre=pre, streams=streams, post=post)
        if opt.fine == 1: c += stamp()
    cv = conv_stream(0) + conv_stream(1)
    c += flat(["L_c1:"])
    spin("L_spin_tag", 140, SRD_DBG, "0", "0", 141, "L_spin_tag_r", cmp="eq")
    c += gemm_step(6, pre={1: sw_act_w0()}, streams={0: flat(["v_mov_b32 v140, 0"]) + tag([f"buffer_load_dword v141, v140, {s(SRD_DBG,4)}, 0 offen sc1"], "tag")})
    if opt.fine == 1: c += stamp()
    c += gemm_step(7, pre={0: sw_w1()}, streams={1: cv[:66], 2: cv[66:138], 3: cv[138:192]}, vm_need={0: ["tag"]},
                   post={0: ["v_cmp_eq_u32 vcc, 0, v141", "s_cbranch_vccnz L_spin_tag", "L_spin_tag_r:", f"v_readfirstlane_b32 s{S_TAG}, v141"]})
    c, lgo = auto_wait(c, [[]])
    c, vm = vm_pass(c, vm)
    return c, vm, lgo
```

```python
from g1 import *

A_Q = (0, 32); A_KF = 64; A_VF = 96; A_O = (128, 192)
def VS(g, b): return 64 + g*32 + b*16
def VN(g): return 128 + g*16
def VP(g, b): return 160 + g*16 + b*8
V_X = 192
V_L = (208, 209); V_SUM = (210, 211); V_CK = 212
V3_RD, V3_DM, V3_THR, V3_NINF, V3_ST, V_QW, V_QW2, V_LANE = 18, 19, 20, 21, 22, 23, 24, 25
V3_T = 220
V_PA, V_PE, V_PV = 26, 27, 28
S_QS = 96
S_FLO, S_FHI = S_STK, S_STV

def dma4(srd_, so, t):
    return tag([f"buffer_load_dwordx4 v{V3_DM}, {s(srd_,4)}, s{so} offen offset:{d*1024} sc1 lds" for d in range(4)], t)
def stage_dma(t=None):
    g = flat(["s_add_u32 m0, m0, 49152", "s_and_b32 m0, m0, 0x1ffff"]) + dma4(SRD_V, S_KOFF, t)
    g2 = flat(["s_sub_u32 m0, m0, 16384", f"s_add_u32 s{S_KOFF}, s{S_KOFF}, 16384"]) + dma4(SRD_K, S_KOFF, t)
    return g, g2
def trip_lim(dst, src, add):
    return [f"s_add_u32 s{dst}, s{src}, {add + 3}", f"s_lshl_b32 s{dst}, s{dst}, 14"]

def p3_setup():
    L = V_LANE; t = V3_T
    pre = [f"s_lshl_b32 s{S_T0}, s{S_H}, 19", f"s_add_u32 s{SRD_K}, s{P_WS}, s{S_T0}", f"s_addc_u32 s{SRD_K+1}, s{P_WS+1}, 0",
           f"s_add_u32 s{SRD_V}, s{SRD_K}, {WS_V}", f"s_addc_u32 s{SRD_V+1}, s{SRD_K+1}, 0"]
    c = [f"s_sub_u32 s{S_T0}, 16, s{S_P}", f"s_lshl_b32 s{SRD_K+2}, s{S_T0}, 15", f"s_mov_b32 s{SRD_V+2}, s{SRD_K+2}",
         f"s_mov_b32 s{SRD_K+3}, 0x20000", f"s_mov_b32 s{SRD_V+3}, 0x20000"]
    c += lane_to(L)
    c += [f"v_and_b32 v{V_PA}, 7, v{L}", f"v_lshlrev_b32 v{V_PA}, 2, v{V_PA}", f"s_lshl_b32 s{S_T3}, s{S_H}, 7", f"s_add_u32 s{S_T3}, s{S_T3}, {WS_FK}"]
    c += tag([f"buffer_load_dword v{V_PV}, v{V_PA}, {s(SRD_WS,4)}, s{S_T3} offen sc1"], "poll")
    c += [f"v_lshl_add_u32 v{V3_DM}, v{L}, 4, s{S_WL}", f"s_mov_b32 s{S_KOFF}, 0"]
    c += [f"s_lshl_b32 s{S_T0}, s{S_P}, 1", f"s_add_u32 s{S_TLO}, s{S_T0}, s{S_CH}", f"s_sub_u32 s{S_THI}, 31, s{S_TLO}",
          f"s_lshl_b32 s{S_T0}, s{S_P}, 2", f"s_add_u32 s{S_DLO}, s{S_T0}, s{S_W}", f"s_sub_u32 s{S_DHI}, 63, s{S_DLO}", f"s_mov_b32 s{S_THR}, {f2u(2.0**30):#x}",
          f"s_lshl_b32 s{S_T0}, s{S_RH}, 31", f"s_xor_b32 s{S_FLO}, s{S_T0}, 0xff800000", f"s_xor_b32 s{S_FHI}, s{S_T0}, 0x7f800000"]
    c += [f"v_lshlrev_b32 v{V3_RD}, 4, v{L}", f"v_and_b32 v{t}, 31, v{L}", f"v_lshrrev_b32 v{t+1}, 5, v{L}", f"v_lshlrev_b32 v{t+2}, 2, v{t+1}", f"v_sub_u32 v{V3_THR}, v{t}, v{t+2}",
          f"v_mov_b32 v{V3_NINF}, 0xff800000", f"v_and_b32 v{t+3}, 15, v{L}",
          f"v_lshrrev_b32 v{t}, 4, v{t}", f"v_lshlrev_b32 v{t}, 10, v{t}", f"v_lshl_add_u32 v{t+2}, v{t+1}, 8, v{t}", f"v_lshl_add_u32 v{V3_ST}, v{t+3}, 4, v{t+2}"]
    c += [f"v_lshl_add_u32 v{t}, v{t+1}, 9, v{t}", f"v_lshl_add_u32 v{t}, v{t+3}, 4, v{t}",
          f"s_lshl_b32 s{S_T0}, s{S_RH}, 15", f"s_lshl_b32 s{S_T1}, s{S_CH}, 12", f"s_add_u32 s{S_T0}, s{S_T0}, s{S_T1}", f"s_add_u32 s{S_T0}, s{S_T0}, 0x10000",
          f"v_add_u32 v{V_QW}, s{S_T0}, v{t}", f"s_lshl_b32 s{S_T0}, s{S_RH}, 15", f"v_add_u32 v{V_QW2}, s{S_T0}, v{V_QW}"]
    return pre, c

def nopm0(g): return g[:2] + [Ins("s_nop 0")] + g[2:]
def first_dmas():
    c = flat([f"s_add_u32 m0, s{S_WL}, 0x20000", "s_nop 0"]) + dma4(SRD_K, S_KOFF, "k0")
    g, g2 = stage_dma("st0")
    return c + flat([f"s_add_u32 m0, s{S_WL}, 16384", "s_nop 0"]) + g[2:] + g2

def q_reads(e):
    c = []
    for j in range(8):
        srcs = [acc(2*e, j) + b for b in range(4)] + [acc(2*e+1, j) + b for b in range(4)]
        c += [f"v_accvgpr_read_b32 v{128 + (e*8+j)*8 + k}, a{r}" for k, r in enumerate(srcs)]
    return c
def q_finish():
    c = [f"s_mov_b32 s{S_QS}, {f2u(QSCALE):#x}", f"s_mov_b32 s{S_QS+1}, {f2u(QSCALE):#x}"]
    for e in range(2):
        for j in range(8):
            t = 128 + (e*8+j)*8
            c += [f"v_pk_mul_f32 {v(t+2*k,2)}, {v(t+2*k,2)}, s[{S_QS}:{S_QS+1}]" for k in range(4)]
            c += [f"v_cvt_pk_bf16_f32 v{t+k}, v{t+2*k}, v{t+2*k+1}" for k in range(4)]
            c += [f"ds_write_b128 v{V_QW if j < 4 else V_QW2}, {v(t,4)} offset:{(j >> 1)*8192 + e*2048 + (j & 1)*256}"]
    return c

def blk_to(dst):
    return [f"s_sub_u32 s{dst}, 15, s{S_P}", f"s_cmp_eq_u32 s{S_RH}, 0", f"s_cselect_b32 s{dst}, s{S_P}, s{dst}"]

S_HO = P_C
def h_head():
    return blk_to(S_T0) + [f"s_mul_i32 s{S_T0}, s{S_T0}, {4*NSL}", f"s_lshl_b32 s{S_T1}, s{S_SL}, 1", f"s_add_u32 s{S_T0}, s{S_T0}, s{S_T1}", f"s_add_u32 s{S_T0}, s{S_T0}, s{S_CH}",
         f"s_lshl_b32 s{S_T0}, s{S_T0}, 11", f"s_add_u32 s{S_HO}, s{S_T0}, {WS_A}", f"s_mov_b32 s{S_QS}, {f2u(-LOG2E):#x}", f"s_mov_b32 s{S_QS+1}, {f2u(-LOG2E):#x}"]
def h_chunk(j, pk):
    t = 32 + 16*(j & 1)
    gs = [acc(4, j) + b for b in range(4)] + [acc(6, j) + b for b in range(4)]
    us = [acc(5, j) + b for b in range(4)] + [acc(7, j) + b for b in range(4)]
    c = [f"v_accvgpr_read_b32 v{t+k}, a{r}" for k, r in enumerate(gs)]
    if pk: c += [f"v_pk_mul_f32 {v(t+2*k,2)}, {v(t+2*k,2)}, s[{S_QS}:{S_QS+1}]" for k in range(4)]
    else: c += [f"v_mul_f32 v{t+k}, s{S_QS}, v{t+k}" for k in range(8)]
    for k in range(8): c += [f"v_exp_f32 v{t+k}, v{t+k}", f"v_accvgpr_read_b32 v{t+8+k}, a{us[k]}"]
    if pk: c += [f"v_pk_add_f32 {v(t+2*k,2)}, {v(t+2*k,2)}, 1.0 op_sel_hi:[1,0]" for k in range(4)]
    else: c += [f"v_add_f32 v{t+k}, 1.0, v{t+k}" for k in range(8)]
    c += [f"v_rcp_f32 v{t+k}, v{t+k}" for k in range(8)]
    if pk: c += [f"v_pk_mul_f32 {v(t+2*k,2)}, {v(t+2*k,2)}, {v(t+8+2*k,2)}" for k in range(4)]
    else: c += [f"v_mul_f32 v{t+k}, v{t+k}, v{t+8+k}" for k in range(8)]
    c += [f"v_cvt_pk_bf16_f32 v{t+8+k}, v{t+2*k}, v{t+2*k+1}" for k in range(4)]
    c += [f"buffer_store_dwordx4 {v(t+8,4)}, v{V3_RD}, {s(SRD_WS,4)}, s{S_HO} offen offset:{(j & 1)*1024} sc1"]
    if j & 1: c += [f"s_add_u32 s{S_HO}, s{S_HO}, {NSL*2048}"]
    return tag(c, "h")

A_GF = 160
def g_epilogue():
    c = blk_to(S_T0) + [f"s_lshl_b32 s{S_T0}, s{S_T0}, 9", f"s_add_u32 s{S_T0}, s{S_T0}, {WS_G}", f"s_mov_b32 s{S_T1}, {f2u(-LOG2E):#x}",
         f"v_and_b32 v2, 15, v{V_LANE}", "v_lshlrev_b32 v2, 2, v2"]
    c += [f"v_accvgpr_read_b32 v{4+j}, a{128+4*j}" for j in range(8)]
    c += [f"v_mul_f32 v{4+j}, s{S_T1}, v{4+j}" for j in range(8)]
    c += [f"v_exp_f32 v{4+j}, v{4+j}" for j in range(8)]
    c += [f"v_add_f32 v{4+j}, 1.0, v{4+j}" for j in range(8)]
    c += [f"v_rcp_f32 v{4+j}, v{4+j}" for j in range(8)]
    c += [f"buffer_store_dword v{4+j}, v2, {s(SRD_WS,4)}, s{S_T0} offen offset:{64*j} sc1" for j in range(8)]
    return tag(c, "h")

def p2(glu, vm, lg, s15):
    sfx = "g" if glu else "n"
    c = []
    sts = kv_stores()
    cv = conv_stream(2) + conv_stream(3)
    pre3, set3 = p3_setup()
    fd = first_dmas()
    if not glu:
        c += flat(["s_nop 7"] + cv + lane_to(0) + ["v_lshrrev_b32 v0, 4, v0", "v_lshlrev_b32 v0, 4, v0"] + srd(SRD_K, P_GW, 1024))
        c += flat([f"s_lshl_b32 s{S_T0}, s{S_ROT}, 7" if opt.rot2 else f"s_mov_b32 s{S_T0}, 0"])
        for k in range(16):
            c += tag([f"buffer_load_dwordx4 {a_(A_GF + 4*k, 4)}, v0, {s(SRD_K,4)}, s{S_T0} offen offset:{64*(k & 3)}"], "gate")
            if k & 3 == 3: c += flat([f"s_add_u32 s{S_T0}, s{S_T0}, 256", f"s_and_b32 s{S_T0}, s{S_T0}, 1023"])
    k = 0
    sig_done = False
    for st in range(8, 16):
        streams = {q: [] for q in range(4)}; pre = {}; need = {}; post = {}; alt = {}
        if st == 8 and glu:
            streams = {0: cv[:66], 1: cv[66:132], 2: cv[132:], 3: []}
        for q in range(4):
            qi = (st - 8)*4 + q
            k1 = 0 if qi < opt.st0 else min(len(sts), ((qi + 1 - opt.st0)*len(sts) + (opt.st1 - opt.st0) - 1)//(opt.st1 - opt.st0))
            if q == 2 and k >= len(sts) and not sig_done:
                need[2] = ["kv"]; post[2] = signal("k", f"L_sig_kv_{sfx}", 0); sig_done = True
            streams[q] = merge_streams([flat(streams[q]), flat(sts[k:k1])]); k = k1
        if st == 12 and glu:
            pre[2], x = code_touch("L_c2", 7, 140); streams[2] = merge_streams([streams[2], x])
        if st == 13 and glu:
            pre[1], x = code_touch("L_epi0", 1, 142); streams[1] = merge_streams([streams[1], x])
        if st == 15 and glu: c += flat(["L_c2:"])
        if st == 14:
            ini = init_stores()
            streams[0] = ini[:13]; streams[1] = ini[13:19]; streams[2] = ini[19:]
        if not glu:
            if st == 8: need[0] = ["gate"]
            alt[2] = [f"{MF16} {a_(128+4*j,4)}, {a_(A_GF + 4*((st-8)*2+kh), 4)}, {v(fj(j,kh),4)}, {'0' if st == 8 and kh == 0 else a_(128+4*j,4)}" for j in range(8) for kh in range(2)]
        if st == 14:
            assert sig_done or not glu
            pre[3] = pre3; streams[3] = list(streams[3]) + set3
        if st == 15:
            need[0] = ["poll"]
            post[0] = [f"v_cmp_ne_u32 vcc, s{S_TAG}, v{V_PV}", f"s_cbranch_vccnz L_spin_kv{sfx}", f"L_spin_kv{sfx}_r:"]
            spin(f"L_spin_kv{sfx}", V_PA, SRD_WS, f"s{S_T3}", f"s{S_TAG}", V_PV, f"L_spin_kv{sfx}_r")
            streams[0] = flat(s15) + flat(pro_scalars(glu))
            qr = q_reads(0) + q_reads(1)
            streams[1] = merge_streams([fd[:11], flat(qr[:32])])
            streams[2] = flat(["s_nop 7"] if not glu else []) + merge_streams([fd[11:], flat(qr[32:66])]); streams[3] = qr[66:]
            post[3] = q_finish()
        code = gemm_step(st, glu, streams, pre, need, post, alt)
        if opt.fine == 1 and st < 15: code += stamp()
        code, lg = auto_wait(code, lg)
        c += code
    assert sig_done
    c += stamp()
    c += p3_prologue(glu)
    c, vm = vm_pass(c, vm)
    assert vm[-12:] == ["st2"]*8 + ["st3"]*4
    return c

def sm_stream(g, b):
    S = VS(g, b); X = V_X + 8*g; P = VP(g, b); sm = V_SUM[g]
    e = lambda j: f"v_exp_f32 v{X + j % 8}, v{S + j}"
    c = [e(0), e(1), e(2)]
    for j in range(1, 16):
        c.append(f"v_add_f32 v{sm}, v{X}, v{X+1}" if j == 1 else f"v_add_f32 v{sm}, v{sm}, v{X + j % 8}")
        if j & 1: c.append(f"v_cvt_pk_bf16_f32 v{P + j//2}, v{X + (j-1) % 8}, v{X + j % 8}")
        if j + 2 < 16: c.append(e(j + 2))
    return c
def merge_streams(ss):
    ss = [x for x in ss if x]
    if not ss: return []
    out = []; n = max(len(x) for x in ss); pos = [0]*len(ss)
    for k in range(1, n + 1):
        for i, x in enumerate(ss):
            while pos[i] < len(x)*k//n: out.append(x[pos[i]]); pos[i] += 1
    return out

def qk_mfma(groups, b):
    m = []
    for f in range(8):
        for g in groups:
            d = v(VS(g, b), 16)
            m.append(f"{MF32} {d}, {a_(A_KF + 4*f, 4)}, {a_(A_Q[g] + 4*f, 4)}, {v(VN(g), 16) if f == 0 else d}")
    return m
def pv_mfma(groups, b):
    m = []
    for f in range(8):
        db, mm = f >> 1, f & 1
        for g in groups:
            d = a_(A_O[g] + 16*db, 16)
            m.append(f"{MF32} {d}, {a_(A_VF + 4*f, 4)}, {v(VP(g, b) + 4*mm, 4)}, {d}")
    return m
def rdk(f, uu): return f"ds_read_b128 {a_(A_KF + 4*f, 4)}, v{V3_RD} offset:{uu*8192 + f*1024}"
def rdv(f, uu): return f"ds_read_b128 {a_(A_VF + 4*f, 4)}, v{V3_RD} offset:{16384 + uu*8192 + f*1024}"

V_MK = [213, 214, 215, 216, 217, 218, 219, 248, 249, 250, 251, 252, 29, 30, 31, 17]
def mask_setup():
    def kc(j):
        ap, b = j >> 2, j & 3
        return 16*(ap & 1) + 8*(ap >> 1) + b
    c = []
    for j in range(16):
        c += [f"v_subrev_u32 v{V_MK[j]}, {kc(j)}, v{V3_THR}", f"v_bfi_b32 v{V_MK[j]}, s{S_T3}, v{V3_NINF}, v{V_MK[j]}"]
    return [f"s_mov_b32 s{S_T3}, 0x7fffffff"] + c
def fix_a(g):
    return [f"v_min_f32 v{VN(g)+j}, v{VN(g)+j}, v{V_MK[j]}" for j in range(16)]
def fix_b(g):
    F = S_FLO if g == 0 else S_FHI
    return [f"v_min3_f32 v{VN(g)+j}, v{VN(g)+j}, v{V_MK[j]}, s{F}" for j in range(16)]
def fix_a_cond(g, lab):
    return [f"s_cmp_{'lg' if g == 0 else 'eq'}_u32 s{S_RH}, 0", f"s_cbranch_scc1 {lab}"] + fix_a(g) + ["s_nop 1", f"{lab}:"]

def iteration(name, it, qk, sm, pv, pend, dma=True, rd_k=True, rd_v=True, vmn=16, loop=None, inl_fix=None, extra=(), late=()):
    c = []
    mq = qk_mfma(qk, it); mp = pv_mfma(pv, it)
    mf = mq + mp
    nq, n = len(mq), len(mf)
    pin = {}
    add = lambda p, x: pin.setdefault(p, []).append(x)
    uu = 1 - it
    kstep = max(len(qk), 1); vstep = len(pv)
    xb = {}
    if it == 1:
        barpos = 2 if nq else -1
        add(barpos, [f"s_waitcnt vmcnt({vmn}) lgkmcnt(0)", "s_barrier"]); xb[barpos] = opt.barpad
    if rd_k:
        for f in range(8):
            p = f*kstep + kstep - 1
            if it == 1: p = max(p, 3 + (f*(nq - 3))//8)
            if f == 7 and it == 0: add(p, "s_waitcnt lgkmcnt(4)")
            add(p, rdk(f, uu))
    if rd_v:
        for f in range(8):
            if f == 6 and rd_k and it == 1: add(nq + f*vstep + vstep - 1, "s_waitcnt lgkmcnt(6)")
            add(nq + f*vstep + vstep - 1, rdv(f, uu))
    if it == 0 and rd_k: add(n - 1, [f"v_add_u32 v{V3_RD}, 0x8000, v{V3_RD}", f"v_and_b32 v{V3_RD}, 0x1ffff, v{V3_RD}"])
    if dma:
        g, g2 = stage_dma()
        if it == 0:
            add(0, g2[0]); add(1, g2[1])
            for k, x in enumerate(g2[2:]): add(3 + (k*(n - 4))//4, x)
        else:
            add(0, g[0]); add(1, g[1])
            for k, x in enumerate(g[2:]): add(nq + (k*(n - nq))//4, x)
    for k, x in enumerate(late): add(3 + (k*(n - 4))//len(late), x)
    thr = S_THR
    if loop and it == 0: add(n - 1, [f"s_cmp_eq_u32 s{S_KOFF}, s{S_LAST}", f"s_cselect_b32 s{S_THRB}, -1.0, s{S_THR}"])
    if loop and it == 1: thr = S_THRB
    st = [f"v_add_f32 v{V_L[g]}, v{V_L[g]}, v{V_SUM[g]}" for g in pend]
    sms = [sm_stream(g, 1 - it) for g in sm]
    if opt.lastload and it == 1:
        for x in sms: add(n - 1, x.pop())
    body = merge_streams(sms)
    if inl_fix is not None:
        body = body[:10] + merge_streams([body[10:], fix_b(inl_fix)])
    st += merge_streams([flat(body), flat(extra)])
    post = []
    if sm:
        ck = V_SUM[sm[0]]
        if len(sm) == 2:
            st += [f"v_add_f32 v{V_CK}, v{V_SUM[0]}, v{V_SUM[1]}"]; ck = V_CK
        st += [f"v_cmp_nge_f32 vcc, s{thr}, v{ck}"]
        calls = [f"s_call_b64 s[{S_RET}:{S_RET+1}], L_rare{g}{1-it}" for g in sm]
        if loop and it == 1:
            post = [f"s_cbranch_vccz {loop}", f"v_cmp_nge_f32 vcc, s{S_THR}, v{ck}", f"s_cbranch_vccnz {name}_rare", f"{name}_rarer:"]
            outofline.extend(flat([f"{name}_rare:"] + calls + [f"s_cmp_lg_u32 s{S_KOFF}, s{S_LAST}", f"s_cbranch_scc1 {loop}", f"s_branch {name}_rarer"]))
        else:
            post = [f"s_cbranch_vccnz {name}_rare", f"{name}_rarer:"]
            outofline.extend(flat([f"{name}_rare:"] + calls + [f"s_branch {name}_rarer"]))
    add(n - 1, post)
    pre = pin.pop(-1, [])
    COSTS["dma"] = opt.dmac
    fill, cap = place_dp(n, pin, st, n - 2, 24, extra_base=xb)
    COSTS["dma"] = 8
    fill[-1] = flat(pre)
    c += interleave(mf, fill)
    return flat(c), cap

def body(kind, extra=()):
    B2, H = [0, 1], [1]
    if kind == "D":
        A, c1 = iteration("L_DA", 0, B2, B2, B2, B2, loop="L_D")
        B, c2 = iteration("L_DB", 1, B2, B2, B2, B2, loop="L_D")
    elif kind == "Dp":
        A, c1 = iteration("L_DpA", 0, B2, B2, B2, B2, inl_fix=0)
        B, c2 = iteration("L_DpB", 1, B2, B2, B2, B2)
    elif kind == "T":
        A, c1 = iteration("L_TA", 0, H, B2, B2, B2)
        B, c2 = iteration("L_TB", 1, H, H, B2, B2, extra=extra)
        def cond(it):
            outofline.extend(flat([f"L_Tfix{it}:"] + (fix_b(1) + ["s_nop 1"] if it else fix_a_cond(1, "L_Tfix0x")) + [f"s_branch L_Tfix{it}_r"]))
            return flat([f"s_cmp_eq_u32 s{S_TLO}, 15", f"s_cbranch_scc1 L_Tfix{it}", f"L_Tfix{it}_r:"])
        pf = []
        if opt.pf4:
            pf = flat([f"s_cmp_eq_u32 s{S_CH}, 0", f"s_cselect_b32 s{SRD_A}, s{P_WO}, s{P_WD}", f"s_cselect_b32 s{SRD_A+1}, s{P_WO+1}, s{P_WD+1}",
              f"s_cselect_b32 s{S_T0}, 64, 28", f"s_lshl_b32 s{SRD_A+2}, s{S_T0}, 16",
              f"s_lshl_b32 s{S_T0}, s{S_RH}, 8", f"s_add_u32 s{S_T0}, s{S_T0}, s2", f"s_lshl_b32 s{S_T0}, s{S_T0}, 13",
              f"v_lshlrev_b32 v{V_PA}, 7, v{V_LANE}", f"buffer_load_dword v253, v{V_PA}, {s(SRD_A,4)}, s{S_T0} offen"])
        A = pf + cond(0) + A; B = cond(1) + B
    elif kind == "S":
        A, c1 = iteration("L_SA", 0, H, H, H, H, loop="L_S")
        B, c2 = iteration("L_SB", 1, H, H, H, H, loop="L_S")
    elif kind == "Sp":
        nv = len([x for x in extra[0] if x.kind in ("vmem", "dma")])
        A, c1 = iteration("L_SpA", 0, H, H, H, H, inl_fix=1, dma=False, extra=extra[0])
        B, c2 = iteration("L_SpB", 1, H, H, H, H, dma=False, rd_k=False, vmn=nv, late=extra[1])
    else:
        A, c1 = iteration("L_EA", 0, [], H, H, H, dma=False, rd_k=False, extra=extra[2])
        B, c2 = iteration("L_EB", 1, [], [], H, H, dma=False, rd_k=False, rd_v=False, vmn=opt.e_vm, extra=extra[3])
    print("body", kind, "caps", c1, c2, file=sys.stderr)
    return A + B

def rowmax(S, t):
    c = [f"v_max3_f32 v{t}, v{S}, v{S+1}, v{S+2}"]
    for j in range(3, 15, 2): c += [f"v_max3_f32 v{t}, v{t}, v{S+j}, v{S+j+1}"]
    c += [f"v_max_f32 v{t}, v{t}, v{S+15}", f"v_mov_b32 v{t+1}, v{t}", "s_nop 1", f"v_permlane32_swap_b32 v{t}, v{t+1}", f"v_max_f32 v{t}, v{t}, v{t+1}"]
    return c

def rare(g, b):
    t = V3_T
    c = [f"L_rare{g}{b}:", "s_nop 15"]
    c += rowmax(VS(g, b), t)
    c += [f"v_max_f32 v{t}, 0, v{t}", f"v_exp_f32 v{t+1}, -v{t}"]
    for j in range(16):
        c += [f"v_sub_f32 v{r+j}, v{r+j}, v{t}" for r in (VN(g), VS(g, 0), VS(g, 1))]
    c += [f"v_mul_f32 v{V_L[g]}, v{V_L[g]}, v{t+1}"]
    for j in range(0, 64, 4):
        c += [f"v_accvgpr_read_b32 v{t+2+k}, a{A_O[g]+j+k}" for k in range(4)]
        c += [f"v_mul_f32 v{t+2+k}, v{t+2+k}, v{t+1}" for k in range(4)]
        c += [f"v_accvgpr_write_b32 a{A_O[g]+j+k}, v{t+2+k}" for k in range(4)]
    c += sm_stream(g, b)
    c += ["s_nop 1", f"s_setpc_b64 s[{S_RET}:{S_RET+1}]"]
    return flat(c)

def o_epilogue(g, t=V3_T, pk=None, so=S_T0):
    Dg = S_DLO if g == 0 else S_DHI
    c = [f"s_mul_i32 s{so}, s{Dg}, {NSL}", f"s_lshl_b32 s{S_T1}, s{S_H}, 2", f"s_add_u32 s{so}, s{so}, s{S_T1}",
         f"s_lshl_b32 s{so}, s{so}, 11", f"s_add_u32 s{so}, s{so}, {WS_A + 56*2048}"]
    c += [f"v_mov_b32 v{t}, v{V_L[g]}", f"v_mov_b32 v{t+1}, v{V_L[g]}", "s_nop 1", f"v_permlane32_swap_b32 v{t}, v{t+1}", f"v_add_f32 v{t}, v{t}, v{t+1}", f"v_rcp_f32 v{t}, v{t}", "s_nop 0", f"v_mov_b32 v{t+1}, v{t}"]
    sts = []
    for db in range(4):
        for m in range(2):
            q = t + 4 + 12*m
            d = q if pk is None else pk + 4*(db*2 + m)
            c += [f"v_accvgpr_read_b32 v{q+4+k}, a{A_O[g] + 16*db + 8*m + k}" for k in range(8)]
            c += [f"v_pk_mul_f32 {v(q+4+2*k,2)}, {v(q+4+2*k,2)}, {v(t,2)}" for k in range(4)]
            c += [f"v_cvt_pk_bf16_f32 v{d+k}, v{q+4+2*k}, v{q+5+2*k}" for k in range(4)]
            x = [f"buffer_store_dwordx4 {v(d,4)}, v{V3_ST}, {s(SRD_WS,4)}, s{so} offen offset:{m*512 + (db & 1)*2048} sc1"]
            if db == 1 and m == 1: x += [f"s_add_u32 s{so}, s{so}, 4096"]
            if pk is None: c += x
            else: sts += x
    if pk is None: return tag(c, "ctx")
    return flat(c), tag(sts, "ctx")

def align(): return flat([f".p2align {opt.align}"]) if opt.align else []

S_QA, S_QB = P_WG, P_WG + 1
def pro_scalars(glu):
    c = [f"s_lshl_b32 s{S_T0}, s{S_W}, 13", f"s_add_u32 s{S_QA}, s{S_T0}, 0x10000", f"s_sub_u32 s{S_QB}, {0x18000 + 7*8192}, s{S_T0}", f"s_lshl_b32 s{S_T0}, s{S_CH}, 15",
         f"s_sub_u32 s{S_QB}, s{S_QB}, s{S_T0}"]
    if glu:
        c += [f"s_mul_i32 s{S_T0}, s{S_RH}, 15", f"s_xor_b32 s{S_T0}, s{S_T0}, s{S_P}"] + h_head()[3:-2]
    return c

def p3_prologue(glu):
    sfx = "g" if glu else "n"
    t = V3_T
    H = (lambda j, pk: h_chunk(j, pk)) if glu else (lambda j, pk: [])
    c = [f"v_add_u32 v{t+4}, s{S_QA}, v{V3_RD}", f"v_add_u32 v{t+5}, s{S_QB}, v{V3_RD}", f"v_add_u32 v{t+2}, 0x20000, v{V3_RD}"]
    if glu: c += h_head()[-2:]
    F = (lambda: stamp()) if opt.fine == 2 else (lambda: [])
    c += [VmWait(["k0", "st0"]), "s_barrier"]
    c += F()
    rd = []
    for f in range(8):
        rd += [f"ds_read_b128 {a_(A_KF + 4*f, 4)}, v{t+2} offset:{f*1024}"]
        rd += [f"ds_read_b128 {a_(A_Q[g] + 4*f, 4)}, v{t+4+g} offset:{f*1024}" for g in range(2)]
    ini = flat([f"v_mov_b64 {v(VN(0)+2*j, 2)}, 0" for j in range(8)] + [f"v_mov_b64 {v(V_L[0], 2)}, 0"])
    h0 = H(0, True) if glu else g_epilogue()
    w0 = ini + h0
    c += rd[:4] + merge_streams([flat(rd[4:]), w0[:40]]) + w0[40:]
    def pfix(u):
        outofline.extend(flat([f"L_pf{u}{sfx}:"] + (fix_b(0) + ["s_nop 1"] if u else mask_setup() + fix_a_cond(0, f"L_pfx{sfx}")) + [f"s_branch L_pf{u}{sfx}_r"]))
        return [f"s_cmp_eq_u32 s{S_TLO}, 0", f"s_cbranch_scc1 L_pf{u}{sfx}", f"L_pf{u}{sfx}_r:"]
    c += pfix(0)
    c += ["s_waitcnt lgkmcnt(0)"]
    c += F()
    g, g2 = stage_dma("st1")
    pin = {2*f + 1: [f"ds_read_b128 {a_(A_KF + 4*f, 4)}, v{t+2} offset:{8192 + f*1024}"] for f in range(8)}
    pin[0] = ["s_barrier"]
    h1 = H(1, False)
    fill, _ = place(16, pin, merge_streams([nopm0(g) + g2, h1[:45]]), 15)
    mq = qk_mfma([0, 1], 0)
    mq[1] = mq[1].rsplit(",", 1)[0] + ", 0"
    c += interleave(mq, fill)
    c += F()
    c += merge_streams([flat([rdv(f, 0) for f in range(8)]), h1[45:] if glu else flat(["s_nop 5"])])
    for j in range(2, 8, 2): c += merge_streams([H(j, True), H(j + 1, True)])
    c += F()
    g, g2 = stage_dma("st2"); g3, _ = stage_dma("st3")
    mx = merge_streams([rowmax(VS(g_, 0), t + 4 + 2*g_) for g_ in range(2)])
    mx += [f"v_mov_b32 v{t+5}, v{t+4}", f"v_sub_f32 v{t+8}, 0, v{t+6}", f"v_sub_f32 v{t+9}, 0, v{t+6}", f"v_mov_b32 v{t+7}, v{t+6}"]
    mx += [f"v_pk_add_f32 {v(VN(0)+2*j,2)}, {v(VN(0)+2*j,2)}, {v(t+4,2)} neg_lo:[0,1] neg_hi:[0,1]" for j in range(8)]
    mx += [f"v_mov_b64 {v(VN(1)+2*j, 2)}, {v(t+8,2)}" for j in range(8)]
    for g_ in range(2):
        mx += [f"v_pk_add_f32 {v(VS(g_,0)+2*j,2)}, {v(VS(g_,0)+2*j,2)}, {v(t+4+2*g_,2)} neg_lo:[0,1] neg_hi:[0,1]" for j in range(8)]
    mx += [f"v_mov_b64 {v(t, 2)}, 0", f"v_mov_b64 {v(t+2, 2)}, 0"]
    c += g[:2] + merge_streams([flat(mx), g[2:]])
    c += pfix(1)
    c += ["s_waitcnt lgkmcnt(0)"]
    c += F()
    pin = {2*f + 1: [rdk(f, 0)] for f in range(8)}
    for k, x in enumerate(g2): pin.setdefault([0, 0, 2, 6, 10, 14][k], []).append(x)
    for k, x in enumerate(g3): pin.setdefault([16, 16, 17, 19, 21, 23][k], []).append(x)
    mf = qk_mfma([0, 1], 1) + [f"{MF32} {a_(128 + 16*k, 16)}, {v(t,4)}, {v(t,4)}, 0" for k in range(8)]
    fill, _ = place_dp(24, pin, merge_streams([sm_stream(0, 0), sm_stream(1, 0)]) + mask_setup(), 23, 24)
    c += interleave(mf, fill)
    c += F()
    c += ["s_waitcnt lgkmcnt(0)"]
    return flat(c)

def p3(pre_e, t_extra, pollh, e_extra):
    c = []
    D, so = auto_wait_loop(body("D"), [[]])
    Dp, so1 = auto_wait(body("Dp"), [[]] + so)
    T, so2 = auto_wait(body("T", t_extra), [[]] + so1)
    Sb, so3 = auto_wait_loop(body("S"), so2)
    Sp, so4 = auto_wait(body("Sp", e_extra), so2 + so3)
    E, _ = auto_wait(body("E", e_extra), so2 + so4)
    c += stamp()
    c += flat([f"s_cmp_eq_u32 s{S_TLO}, 0", "s_cbranch_scc1 L_T", f"s_cmp_eq_u32 s{S_TLO}, 1", "s_cbranch_scc1 L_Dp"] + trip_lim(S_LAST, S_TLO, -1) +
               [f"s_cmp_eq_u32 s{S_W}, 0", f"s_cselect_b32 s{S_LAST}, {4 << 14}, s{S_LAST}"])
    c += align() + flat(["L_D:"]) + D
    c += flat([f"s_cmp_eq_u32 s{S_KOFF}, {4 << 14}", "s_cbranch_scc1 L_sigD"])
    outofline.extend(flat(["L_sigD:"]) + signal("h", "L_sig_h1", V3_T) + flat(trip_lim(S_LAST, S_TLO, -1) + [f"s_cmp_lg_u32 s{S_TLO}, 2", "s_cbranch_scc1 L_D", "s_branch L_Dp"]))
    c += flat(["L_Dp:"] + fix_a_cond(0, "L_Dp1")) + Dp
    c += flat(["L_T:"]) + stamp() + T + (stamp() if opt.dbgst < 0 else [])
    c += flat([f"s_cmp_lg_u32 s{S_CH}, 0", "s_cbranch_scc1 L_noepi", f"s_cmp_lg_u32 s{S_P}, 0", "s_cbranch_scc1 L_sig_h0"]) + signal("h", "L_sig_h0", V3_T)
    c += flat([f"s_call_b64 s[{S_RET}:{S_RET+1}], L_epi0", "L_noepi:"])
    c += stamp()
    c += flat([f"s_cmp_eq_u32 s{S_TLO}, 15", "s_cbranch_scc1 L_noS"] + trip_lim(S_TRIP, S_THI, -2) + [f"s_mov_b32 s{S_LAST}, s{S_TRIP}", f"s_cmp_lg_u32 s{S_KOFF}, s{S_TRIP}", "s_cbranch_scc1 L_S",
               "L_Sx:"]) + pollh + flat([f"s_add_u32 s{S_LAST}, s{S_LAST}, 16384"])
    c += align() + flat(["L_S:"]) + Sb
    c += flat([f"s_cmp_eq_u32 s{S_KOFF}, s{S_TRIP}", "s_cbranch_scc1 L_Sx"])
    c += pre_e + flat(fix_a_cond(1, "L_Sp1")) + Sp
    spin("L_noS", V_PA, SRD_WS, "0", f"s{S_TAG}", V_PV, "L_noS2")
    outofline.extend(flat(["L_noS2:"]) + e_extra[0] + e_extra[1] + flat(["s_branch L_E"]))
    c += flat(["L_E:"]) + stamp() + E + (stamp() if opt.dbgst < 0 else [])
    c += flat([f"s_cmp_eq_u32 s{S_CH}, 0", "s_cbranch_scc1 L_epi_hi", f"s_call_b64 s[{S_RET}:{S_RET+1}], L_epi0", "s_barrier", "L_epi_hi:"])
    outofline.extend(flat(["L_epi0:", "s_nop 7"]) + o_epilogue(0) + flat([f"s_setpc_b64 s[{S_RET}:{S_RET+1}]"]))
    for g in range(2):
        for b in range(2): outofline.extend(rare(g, b))
    return c
```

```python
from g3 import *

S4_AH, S4_AC, S4_WH, S4_WC, S4_HA, S4_HW, S4_KS, S4_MT = S_ACTA, S_ACTB, S_W0, S_W1, S_CNT, 8, 9, 0
S4_AB, S4_WB, S4_GO = 1, 10, 11
V4_DW = 2
V4_A = 6
V4_G = 8
V4_GA = 12
V4_DL = 14
V4_FA = 15
V4_OA = 16
V4_RB = 32
V4_T = 48
V4_ACC = (64, 128)
V4_WF = 192
A4_X = 0
NP = 23
def slot(n): return (n + 6) % 8

S4_WE, S4_AE, S4_OA, S4_T = 12, 13, 4, 5
class Glued(Ins):
    __slots__ = ("parts",)
    def __init__(self, parts):
        Ins.__init__(self, parts[0]); self.parts = flat(parts); self.kind = "vmem_like"
COSTS["vmem_like"] = 8
def unglue(code):
    out = []
    for x in code: out += x.parts if isinstance(x, Glued) else [x]
    return out
def wrap_add(r, inc, end, span):
    c = [Ins(f"s_add_u32 s{r}, s{r}, {inc}")]
    if opt.rot4: c += [Glued([f"s_cmp_eq_u32 s{r}, {end}", f"s_cselect_b32 s{S4_T}, {span}, 0"]), Ins(f"s_sub_u32 s{r}, s{r}, s{S4_T}")]
    return c
def ld_w(n):
    c = flat([f"s_add_u32 m0, s{S_WL}, {32768 + slot(n)*16384}"])
    if n < 7:
        c += tag([f"buffer_load_dwordx4 v{V4_DW+d}, {s(SRD_W0,4)}, s{S4_WH} offen offset:{d*1024} lds" for d in range(4)], ("w", n))
        if n < 6: c += wrap_add(S4_WH, 65536, f"s{S4_WE}", 7*65536)
    else:
        c += tag([f"buffer_load_dwordx4 v{V4_DW+d}, {s(SRD_W1,4)}, s{S4_WC} offen offset:{d*1024} lds" for d in range(4)], ("w", n))
        if n & 1: c += flat([f"s_add_u32 s{S4_WC}, s{S4_WC}, 65536"])
        elif n < NP - 1: c += flat([f"s_xor_b32 s{S4_WC}, s{S4_WB}, s{S4_HW}"]) + wrap_add(S4_HW, 1 << 17, 8 << 17, 7 << 17)
    return c
def ld_a(n):
    so = S4_AH if n < 7 else S4_AC
    c = []
    for sl in range(2):
        for j in range(2):
            c += tag([f"buffer_load_dwordx4 {a_(A4_X + (n % 8)*16 + (j*2+sl)*4, 4)}, v{V4_A+j}, {s(SRD_WS,4)}, s{so} offen offset:{sl*2048} sc1"], ("a", n))
    if n < 6: c += wrap_add(S4_AH, 4096, f"s{S4_AE}", 7*4096)
    elif n >= 7:
        if n & 1: c += flat([f"s_add_u32 s{S4_AC}, s{S4_AC}, 4096"])
        elif n < NP - 1: c += flat([f"s_xor_b32 s{S4_AC}, s{S4_OA}, s{S4_HA}", f"s_add_u32 s{S4_AC}, s{S4_AC}, s{S4_AB}"]) + wrap_add(S4_HA, 1 << 13, 8 << 13, 7 << 13)
    return c
def rd_wf(n, i):
    part = int(n >= 7); sl_ = slot(n)
    base = V4_RB + (sl_ >> 2)*8 + i
    ro = 2048 if part else 4096
    return [f"ds_read_b64_tr_b16 {v(V4_WF + (i*2+sl)*4 + 2*r, 2)}, v{base} offset:{(sl_ & 3)*16384 + sl*8192 + r*ro}" for sl in range(2) for r in range(2)]

def with_nop(g):
    out = []
    for x in g:
        out.append(x)
        if ("s", "m0") in x.defs: out.append(Ins("s_nop 0"))
    return out

def p4_setup():
    L, T = V_LANE, V4_T
    G, L16 = T + 10, T + 11
    c = srd(SRD_W0, P_WD, 1792*1024) + srd(SRD_W1, P_WO, 4096*1024)
    c += [f"s_lshr_b32 s{S4_KS}, s{S_H}, 3", f"s_bfe_u32 s{S_T1}, s{S_H}, 0x10002", f"s_mul_i32 s{S_T1}, s{S_T1}, 15", f"s_xor_b32 s{S4_MT}, s{S_P}, s{S_T1}"]
    c += [f"s_and_b32 s{S_T2}, s{S_H}, 3", f"s_lshl_b32 s{S_T2}, s{S_T2}, 8", f"s_lshl_b32 s{S_T1}, s{S_W}, 14", f"s_add_u32 s{S_T2}, s{S_T2}, s{S_T1}",
          f"s_mul_i32 s{S4_WH}, s{S4_KS}, {448*1024}", f"s_add_u32 s{S4_WH}, s{S4_WH}, s{S_T2}",
          f"s_lshl_b32 s{S4_WB}, s{S4_KS}, 20", f"s_add_u32 s{S4_WB}, s{S4_WB}, s{S_T2}",
          f"s_and_b32 s{S_T2}, s{S_H}, 7", f"s_lshl_b32 s{S_T1}, s{S_T2}, 17", f"s_add_u32 s{S4_WB}, s{S4_WB}, s{S_T1}", f"s_mov_b32 s{S4_WC}, s{S4_WB}", f"s_lshl_b32 s{S4_OA}, s{S_T2}, 13"]
    if opt.rot4: c += [f"s_max_u32 s{S_T1}, s{S_P}, 1"]
    else: c += [f"s_mov_b32 s{S_T1}, 1"]
    c += [f"s_lshl_b32 s{S4_HW}, s{S_T1}, 17", f"s_lshl_b32 s{S4_HA}, s{S_T1}, 13"]
    c += [f"s_lshl_b32 s{S_T2}, s{S4_MT}, 2", f"s_add_u32 s{S_T2}, s{S_T2}, s{S_W}", f"s_mul_i32 s{S_T1}, s{S_T2}, {NSL*2048}", f"s_add_u32 s{S_T1}, s{S_T1}, {WS_A}",
          f"s_mul_i32 s{S4_AH}, s{S4_KS}, {14*2048}", f"s_add_u32 s{S4_AH}, s{S4_AH}, s{S_T1}",
          f"s_lshl_b32 s{S4_AB}, s{S4_KS}, 16", f"s_add_u32 s{S4_AB}, s{S4_AB}, s{S_T1}", f"s_add_u32 s{S4_AB}, s{S4_AB}, {56*2048}",
          f"s_lshl_b32 s{S4_GO}, s{S_T2}, 7", f"s_add_u32 s{S4_GO}, s{S4_GO}, {WS_G}", f"s_add_u32 s{S4_AC}, s{S4_AB}, s{S4_OA}"]
    if opt.rot4:
        c += [f"s_add_u32 s{S4_WE}, s{S4_WH}, {7*65536}", f"s_add_u32 s{S4_AE}, s{S4_AH}, {7*4096}",
              f"s_and_b32 s{S_T1}, s{S_H}, 3", f"s_lshl_b32 s{S_T1}, s{S_T1}, 1", f"s_add_u32 s{S_T1}, s{S_T1}, s{S_P}",
              f"s_mul_i32 s{S_T2}, s{S_T1}, 37", f"s_lshr_b32 s{S_T2}, s{S_T2}, 8", f"s_mul_i32 s{S_T2}, s{S_T2}, 7", f"s_sub_u32 s{S_T1}, s{S_T1}, s{S_T2}",
              f"s_lshl_b32 s{S_T2}, s{S_T1}, 16", f"s_add_u32 s{S4_WH}, s{S4_WH}, s{S_T2}", f"s_lshl_b32 s{S_T2}, s{S_T1}, 12", f"s_add_u32 s{S4_AH}, s{S4_AH}, s{S_T2}"]
    sc = c
    c = [f"v_lshrrev_b32 v{G}, 4, v{L}", f"v_and_b32 v{L16}, 15, v{L}"]
    c += [f"v_lshlrev_b32 v{T}, 10, v{G}", f"v_lshlrev_b32 v{T+1}, 1, v{G}", f"v_xor_b32 v{T+1}, v{T+1}, v{L16}", f"v_xor_b32 v{T+2}, 8, v{T+1}",
          f"v_lshl_add_u32 v{V4_DW}, v{T+1}, 4, v{T}", f"v_lshl_add_u32 v{T+2}, v{T+2}, 4, v{T}", f"v_add_u32 v{V4_DW+1}, {4096 - 1024}, v{T+2}",
          f"v_add_u32 v{V4_DW+2}, {2*(4096 - 1024)}, v{V4_DW}", f"v_add_u32 v{V4_DW+3}, {3*(4096 - 1024)}, v{T+2}"]
    c += [f"s_and_b32 s{S_T2}, s{S4_KS}, 1", f"s_lshl_b32 s{S_T1}, s{S_T2}, 10", f"v_lshl_add_u32 v{V4_A}, v{L}, 4, s{S_T1}", f"v_xor_b32 v{V4_A+1}, 0x400, v{V4_A}",
          f"s_lshl_b32 s{S_T1}, s{S_T2}, 6", f"v_lshl_add_u32 v{V4_GA}, v{L16}, 2, s{S_T1}", f"v_xor_b32 v{V4_GA+1}, 64, v{V4_GA}"]
    c += [f"v_lshrrev_b32 v{T+2}, 2, v{L16}", f"v_and_b32 v{T+3}, 3, v{L16}", f"v_and_b32 v{T+4}, 1, v{G}", f"v_lshl_add_u32 v{T+5}, v{T+4}, 2, v{T+2}",
          f"v_lshl_add_u32 v{T+6}, v{G}, 2, v{T+2}", f"v_lshrrev_b32 v{T+7}, 1, v{G}", f"v_lshlrev_b32 v{V4_DL}, 11, v{T+7}",
          f"v_lshlrev_b32 v{T+3}, 3, v{T+3}", f"v_lshl_add_u32 v{T+6}, v{T+6}, 8, v{T+3}", f"v_add_u32 v{T+6}, 0x8000, v{T+6}",
          f"s_lshr_b32 s{S_T2}, s{S4_KS}, 1", f"s_lshl_b32 s{S_T2}, s{S_T2}, 2", f"v_xor_b32 v{T+5}, s{S_T2}, v{T+5}"]
    for i in range(8):
        c += [f"v_xor_b32 v{T+8}, {i}, v{T+5}", f"v_lshl_add_u32 v{V4_RB+i}, v{T+8}, 5, v{T+6}", f"v_add_u32 v{V4_RB+8+i}, 0x10000, v{V4_RB+i}"]
    c += [f"v_and_b32 v{V4_FA}, 7, v{L}", f"v_lshlrev_b32 v{V4_FA}, 2, v{V4_FA}", f"v_lshlrev_b32 v{V4_OA}, 10, v{L16}", f"v_lshl_add_u32 v{V4_OA}, v{G}, 3, v{V4_OA}"]
    c += [f"s_lshl_b32 s{S_T1}, s{S_P}, 7", f"s_add_u32 s{S_T1}, s{S_T1}, {WS_FH}", f"v_and_b32 v{V_PA}, 31, v{L}", f"v_lshl_add_u32 v{V_PA}, v{V_PA}, 2, s{S_T1}"]
    return flat(sc), flat(c)

def poll_h(): return flat([f"buffer_load_dword v{V_PV}, v{V_PA}, {s(SRD_WS,4)}, 0 offen sc1"])
def pre_e():
    c = flat(["s_waitcnt vmcnt(8)", f"v_cmp_ne_u32 vcc, s{S_TAG}, v{V_PV}", "s_cbranch_vccnz L_spin_h", "L_spin_h_r:"])
    spin("L_spin_h", V_PA, SRD_WS, "0", f"s{S_TAG}", V_PV, "L_spin_h_r")
    return c
def early_loads():
    a = with_nop(ld_w(0)) + ld_a(0)
    b = with_nop(ld_w(1))
    b += tag([f"buffer_load_dword v{V4_G+j}, v{V4_GA+j}, {s(SRD_WS,4)}, s{S4_GO} offen sc1" for j in range(2)], "g")
    b += ld_a(1)
    return a, b, ld_a(2) + ld_a(3), ld_a(4) + ld_a(5)

S4_X = (None, S4_AH, S4_WH, S4_GO)
def comb(q):
    B, A = V4_ACC
    j, hf = q & 1, q >> 1
    return [f"v_fmac_f32 v{B + ((4*hf+i)*2+j)*4 + b}, v{A + ((4*hf+i)*2+j)*4 + b}, v{V4_G+j}" for i in range(4) for b in range(4)]
def send(q):
    B, A = V4_ACC
    j, hf = q & 1, q >> 1
    P = 32 + 8*(q & 1)
    cb = comb(q); e = []
    for i in range(4):
        r = B + ((4*hf+i)*2+j)*4
        e += cb[4*i:4*i+4] + [f"v_cvt_pk_bf16_f32 v{P+2*i}, v{r}, v{r+1}", f"v_cvt_pk_bf16_f32 v{P+2*i+1}, v{r+2}, v{r+3}"]
        if i & 1: e += [f"buffer_store_dwordx4 {v(P + 4*(i >> 1), 4)}, v{V4_T}, {s(SRD_WS,4)}, s{S4_X[q]} offen offset:{(i >> 1)*1024} sc1"]
    return tag(e, "x")
def tail_setup():
    T = V4_T
    e = [f"v_lshlrev_b32 v{T}, 4, v{V_LANE}", f"s_lshl_b32 s{S_T1}, s{S4_KS}, 15", f"s_add_u32 s{S_T1}, s{S_T1}, s{S_XO}"]
    for q in range(1, 4):
        d = S4_X[q]
        e += [f"s_xor_b32 s{d}, s{S4_KS}, {q}", f"s_lshl_b32 s{d}, s{d}, 15", f"s_add_u32 s{d}, s{d}, s{S_XO}", f"s_add_u32 s{d}, s{d}, {q*8192}"]
    e += [f"s_lshl_b32 s{S_T0}, s{S4_MT}, 2", f"s_add_u32 s{S_T0}, s{S_T0}, s{S_W}", f"s_lshl_b32 s{S_T0}, s{S_T0}, 1", f"s_and_b32 s{S_T2}, s{S4_KS}, 1", f"s_add_u32 s{S_T0}, s{S_T0}, s{S_T2}",
          f"s_lshl_b32 s{S_T0}, s{S_T0}, 14", f"s_and_b32 s{S_T2}, s{S_H}, 3", f"s_lshl_b32 s{S_T2}, s{S_T2}, 8", f"s_add_u32 s{S_T0}, s{S_T0}, s{S_T2}",
          f"s_lshr_b32 s{S_T2}, s{S4_KS}, 1", f"s_lshl_b32 s{S_T2}, s{S_T2}, 7", f"s_add_u32 s{S_T0}, s{S_T0}, s{S_T2}",
          f"v_add_u32 v{T+2}, 8192, v{T}", f"v_add_u32 v{T+3}, 16384, v{T}", f"v_add_u32 v{T+4}, 24576, v{T}", f"s_mov_b32 s{S_T4}, 0", f"s_mov_b32 s{S_T2}, 0xffff0000"]
    return flat(e)

def p4():
    T = V4_T
    L, PA, PE, PV = V_LANE, V4_FA, V_PE, V_PV
    vm0 = ["g"]*2 + [("a", k) for k in range(1, 6) for _ in range(4)]
    ep, sts = o_epilogue(1, 64, pk=128, so=S_RING)
    rds = []
    for i in range(7): rds += flat(rd_wf(0, i))
    lds_ = with_nop(ld_w(2)) + with_nop(ld_w(3)) + flat(srd(SRD_V, P_OUT, 2048*1024))
    c = ep[:13] + merge_streams([ep[13:120], rds, lds_]) + ep[120:]
    c += stamp()
    plan = {0: "s0 w4", 1: "s1 w5", 2: "a6 w6", 3: "w7 a7", 4: "a8 w8", 5: "w9 w10", 6: "w11 w12", 7: "a9 a10"}
    for n in range(8, 20): plan[n] = f"a{n+3}" + (f" w{n+5}" if n + 5 < NP else "")
    sig = signal("c", "L_sig_c", 0)
    for n in range(NP):
        part = int(n >= 7)
        bar = (n & 1) if opt.bar2 else (0 < n < NP - 1)
        need = [("a", n)] + ([("w", n + 1), ("w", n + 1 + opt.bar2)] if bar else [])
        if n == opt.sig_it: need += ["ctx"]; assert bar
        if n == 7: need += ["F"]
        it = [VmWait(need, lg0=8)]
        if bar: it += [Ins("s_barrier")]
        if opt.fine == 2 and n < 12 and n != 7: it += stamp()
        if n == opt.sig_it: it += sig
        if n == 7:
            it += stamp()
            it += flat([f"v_cmp_ne_u32 vcc, s{S_TAG}, v{PV}", "s_cbranch_vccnz L_spin_c", "L_spin_c_r:"])
            spin("L_spin_c", PA, SRD_WS, f"s{S_T3}", f"s{S_TAG}", PV, "L_spin_c_r")
            it += stamp()
        mf = []
        order = [(i, j) for i in range(8) for j in range(2)]
        if n == NP - 1: order = [(i, 1) for i in range(4)] + [(i, 0) for i in range(4, 8)] + [(i, 1) for i in range(4, 8)] + [(i, 0) for i in range(4)]
        for i, j in order:
            for sl in range(2):
                d = v(V4_ACC[part] + (i*2+j)*4, 4)
                mf.append(f"{MF16} {d}, {v(V4_WF + (i*2+sl)*4, 4)}, {a_(A4_X + (n % 8)*16 + (j*2+sl)*4, 4)}, {'0' if n in (0, 7) and sl == 0 else d}")
        pin = {}
        for gi in range(8):
            if gi and n + 1 >= NP: break
            r = rd_wf(n + 1, gi - 1) if gi else rd_wf(n, 7)
            pin[4*gi] = r[:2]; pin[4*gi + 1] = r[2:]
        if n < NP - 1:
            pin.setdefault(15, []).append(Ins("s_waitcnt lgkmcnt(8)"))
        st = []
        if n == opt.f_it - 1:
            st += flat([f"s_lshl_b32 s{S_T3}, s{S_P}, 2", f"s_add_u32 s{S_T3}, s{S_T3}, s{S4_KS}", f"s_lshl_b32 s{S_T3}, s{S_T3}, 5", f"s_add_u32 s{S_T3}, s{S_T3}, {WS_F}"])
        if n == opt.f_it:
            it += tag([f"buffer_load_dword v{PV}, v{PA}, {s(SRD_WS,4)}, s{S_T3} offen sc1"], "F")
        for x in plan.get(n, "").split():
            m = int(x[1:])
            if x[0] == "w": assert n >= ((m - 7) | 1)
            st += {"w": lambda: ld_w(m), "a": lambda: ld_a(m), "s": lambda: sts[:5] if m == 0 else sts[5:]}[x[0]]()
        ex = []
        if n == 7: ex = [f"v_add_u32 v{V4_RB+i}, v{V4_RB+i}, v{V4_DL}" for i in range(8)]
        if n == 6:
            for i in range(7): pin.setdefault(max(0, 4*i - 1), []).append(Ins(f"v_add_u32 v{V4_RB+8+i}, v{V4_RB+8+i}, v{V4_DL}"))
            pin.setdefault(31, []).append(Ins(f"v_add_u32 v{V4_RB+15}, v{V4_RB+15}, v{V4_DL}"))
        if n == 8: ex = [f"v_sub_f32 v{V4_G+2+j}, 1.0, v{V4_G+j}" for j in range(2)]
        if 9 <= n < 21:
            allm = [f"v_mul_f32 v{V4_ACC[0] + (i*2+j)*4 + b}, v{V4_ACC[0] + (i*2+j)*4 + b}, v{V4_G+2+j}" for i in range(8) for j in range(2) for b in range(4)]
            cut = [0, 3, 6, 9, 12, 15, 18, 21, 24, 27, 39, 51, 64]
            ex = allm[cut[n - 9]:cut[n - 8]]
        st = merge_streams([st, flat(ex)])
        if n == NP - 2: st += tail_setup()
        fill, over = place_dp(32, pin, st, 30, 8)
        if n == NP - 1:
            for q, lo in ((1, 11), (2, 19), (3, 27)):
                x = send(q)
                for k, y in enumerate(x): fill.setdefault(min(31, lo + (k*8)//len(x)), []).append(y)
        code = interleave(mf, fill)
        fixed = []
        for k, x in enumerate(code):
            if x.kind == "dma" and ("s", "m0") in code[k-1].defs: fixed.append(Ins("s_nop 0"))
            fixed.append(x)
        c += it + fixed
    c, _ = auto_wait([x for x in c], [[]])
    c, vm = vm_pass(c, vm0)
    c += stamp()
    B, A = V4_ACC
    e = []
    R = 192
    e += ["L_x:"]
    for q in range(1, 4):
        e += [f"buffer_load_dwordx4 {v(R + 8*q + 4*k, 4)}, v{T+1+q}, {s(SRD_WS,4)}, s{S_T1} offen offset:{k*1024} sc1" for k in range(2)]
    e += [f"s_cmp_lg_u32 s{S_T4}, 0", "s_cbranch_scc1 L_x2"] + comb(0) + ["L_x2:", "s_waitcnt vmcnt(0)"]
    e += [f"v_max3_u32 v{T+5}, v{R+8}, v{R+9}, v{R+10}"]
    for k in range(11, 31, 2): e += [f"v_max3_u32 v{T+5}, v{T+5}, v{R+k}, v{R+k+1}"]
    e += [f"v_max_u32 v{T+5}, v{T+5}, v{R+31}", f"v_cmp_eq_u32 vcc, -1, v{T+5}", f"s_add_u32 s{S_T4}, s{S_T4}, 1", "s_cbranch_vccz L_x_ok",
          "s_sleep 1", f"s_cmp_lt_u32 s{S_T4}, 100000", "s_cbranch_scc1 L_x", "L_x_ok:"]
    e += stamp()
    for i in range(4):
        r = B + i*8
        for q in range(1, 4):
            x = R + 8*q + 2*i
            u = 128 + 4*q
            e += [f"v_lshlrev_b32 v{u}, 16, v{x}", f"v_and_b32 v{u+1}, s{S_T2}, v{x}", f"v_lshlrev_b32 v{u+2}, 16, v{x+1}", f"v_and_b32 v{u+3}, s{S_T2}, v{x+1}"]
        for q in range(1, 4):
            u = 128 + 4*q
            e += [f"v_pk_add_f32 {v(r+2*b,2)}, {v(r+2*b,2)}, {v(u+2*b,2)}" for b in range(2)]
        e += [f"v_cvt_pk_bf16_f32 v{r}, v{r}, v{r+1}", f"v_cvt_pk_bf16_f32 v{r+1}, v{r+2}, v{r+3}",
              f"buffer_store_dwordx2 {v(r,2)}, v{V4_OA}, {s(SRD_V,4)}, s{S_T0} offen offset:{32*i}"]
    return c + flat(e)

def auto_wait_seg(code):
    out = []; seg = []
    for x in code:
        if x.kind == "smem":
            if seg: out += auto_wait(seg, [[]])[0]; seg = []
            out.append(x)
        else: seg.append(x)
    out += auto_wait(seg, [[]])[0]
    return out, None

def build():
    nstamp[0] = 0
    del outofline[:]
    c = setup()
    c, vm = vm_pass(c, [])
    c += stamp()
    x, vm, lg = p1(vm)
    c += x
    if opt.stamps: c += stamp()
    c += flat([f"s_cmp_eq_u32 s{S_GLU}, 0", "s_cbranch_scc1 L_p2n"])
    n0 = nstamp[0]
    c += p2(True, vm, lg, p4_setup()[0])
    nstamp[0] = n0
    p2n = p2(False, vm, lg, p4_setup()[0])
    c += flat(["L_p2_done:"])
    if opt.thr:
        c += flat(["s_cmp_lg_u32 s2, 8", "s_cbranch_scc1 L_nx", "s_getreg_b32 s19, hwreg(HW_REG_XCC_ID, 0, 4)", "s_add_u32 s19, s19, 1", "v_mov_b32 v0, s19",
                   f"buffer_store_dword v0, off, {s(SRD_DBG,4)}, 0 offset:8 sc1", "L_nx:"])
    c += p3(pre_e(), p4_setup()[1], poll_h(), early_loads())
    c += stamp()
    c += p4()
    if opt.stamps: c += flat(["s_waitcnt vmcnt(0)"]) + stamp(final=True)
    if opt.thr:
        regs = {0: [94, 12, 13], 1: [94, 95, 12], 2: [94, 12, 13]}[opt.sel] + [18]
        d = ["s_memrealtime vcc", "s_waitcnt lgkmcnt(0)", "s_sub_u32 s18, vcc_lo, s100", f"s_cmp_lt_u32 s18, {opt.thr}", "s_cbranch_scc1 L_end",
             f"s_lshl_b32 s19, s2, 2", f"s_add_u32 s19, s19, s{S_W}", "s_cmp_lg_u32 s19, 0", "s_cbranch_scc1 L_end",
             f"buffer_load_dword v0, off, {s(SRD_DBG,4)}, 0 offset:8 sc1", "s_getreg_b32 s19, hwreg(HW_REG_XCC_ID, 0, 4)", "s_add_u32 s19, s19, 1", "s_waitcnt vmcnt(0)",
             "v_readfirstlane_b32 s20, v0", "s_nop 3", "s_cmp_lg_u32 s19, s20", "s_cbranch_scc1 L_end"]
        for k, r in enumerate(regs):
            d += [f"s_lshr_b32 s19, s{r}, 7", f"s_and_b32 s20, s{r}, 127", "v_cvt_f32_u32 v0, s19", "v_cvt_f32_u32 v1, s20", f"v_cvt_pk_bf16_f32 v{4+k}, v0, v1"]
        d += [f"buffer_store_dwordx4 v[4:7], off, {s(SRD_V,4)}, 0"]
        c += flat(d)
    c += flat(["L_end:", "s_endpgm"])
    c += flat(["L_p2n:"]) + p2n + flat(["s_branch L_p2_done"])
    c += outofline
    c += flat(["s_endpgm", ".fill 1024, 4, 0xbf800000"])
    c = unglue(c)
    errs = check_hazards(c)
    for e in errs[:40]: print("HAZARD", e, file=sys.stderr)
    assert not errs
    hdr = open("cdna_kernels/" + NAME + ".s.ref").read().split("; Override launch")[0]
    out = hdr + f"""; Written with my own generator script: one fused persistent kernel, 256 workgroups, one per CU.
; @launch grid=(256,1,1) block=(256,1,1) lds=163840
.amdgcn_target "amdgcn-amd-amdhsa--gfx950"
.text
.globl {NAME}_kernel
.p2align 8
.type {NAME}_kernel,@function
{NAME}_kernel:
""" + text(c) + f""".section .rodata,"a"
.p2align 6
.amdhsa_kernel {NAME}_kernel
  .amdhsa_next_free_vgpr 512
  .amdhsa_next_free_sgpr 102
  .amdhsa_accum_offset 256
  .amdhsa_group_segment_fixed_size 0
  .amdhsa_kernarg_size 112
  .amdhsa_user_sgpr_count 2
  .amdhsa_user_sgpr_kernarg_segment_ptr 1
  .amdhsa_system_sgpr_workgroup_id_x 1
.end_amdhsa_kernel
"""
    return out

if __name__ == "__main__":
    opt.stamps = "--stamps" in sys.argv
    opt.sig_it = 3
    opt.e_vm = 14
    opt.f_it = 6
    opt.bar2 = 1
    opt.rot4 = 1
    opt.pfcode = 21
    for a in sys.argv[2:]:
        if "=" in a:
            k, x = a.split("="); setattr(opt, k, int(x))
    o = build()
    open(sys.argv[1], "w").write(o)
    print("nstamps", nstamp[0], "bytes", len(o), file=sys.stderr)
```
